```python
import torch

def _softmax(x, axis=-1):
    return torch.softmax(x, dim=axis)
def _gelu(x):
    return torch.nn.functional.gelu(x, approximate="tanh")
def _silu(x):
    return torch.nn.functional.silu(x)
def _sigmoid(x):
    return torch.sigmoid(x)
def _layernorm(x, axis=-1, eps=1e-5):
    m = x.mean(dim=axis, keepdim=True)
    v = x.var(dim=axis, keepdim=True, unbiased=False)
    return (x - m) / torch.sqrt(v + eps)
def _scatter_add(tgt, idx, src, axis=0):
    return tgt.clone().index_add_(axis, idx, src)
def _segment_sum(src, seg, n):
    out = torch.zeros((n,) + src.shape[1:], dtype=src.dtype)
    return out.index_add_(0, seg, src)
def _pad(x, pw):
    flat = tuple(v for pair in reversed(pw) for v in pair)
    return torch.nn.functional.pad(x, flat)

kernel_name = 'recurrent_scan__sliding_local_dilated__dense_activation_relu__prompt'

def setup_inputs():

    _w = (lambda a: (lambda t: t.to(torch.bfloat16) if t.is_floating_point() else t)(torch.as_tensor(a)))
    def _A_setup():
        B, S, D = 1, 2048, 576
        return {
            "x": _w((lambda *s: torch.randn(*s, dtype=torch.bfloat16) * 0.05)(B, S, D)),
            "wqkv": _w((lambda *s: torch.randn(*s, dtype=torch.bfloat16) * 0.05)(D, 3 * D)),
            "wo": _w((lambda *s: torch.randn(*s, dtype=torch.bfloat16) * 0.05)(D, D)),
        }
    _A_in = _A_setup()

    def _B_setup():
        B, S, D, Dff = 1, 2048, 576, 4608
        return {
            "x": _w((lambda *s: torch.randn(*s, dtype=torch.bfloat16) * 0.05)(B, S, D)),
            "w1": _w((lambda *s: torch.randn(*s, dtype=torch.bfloat16) * 0.05)(D, Dff)),
            "w2": _w((lambda *s: torch.randn(*s, dtype=torch.bfloat16) * 0.05)(Dff, D)),
        }
    _B_in = _B_setup()

    return {
        "A_x": _A_in["x"],
        "A_wqkv": _A_in["wqkv"],
        "A_wo": _A_in["wo"],
        "B_x": _B_in["x"],
        "B_w1": _B_in["w1"],
        "B_w2": _B_in["w2"],
    }

def reference(A_x, A_wqkv, A_wo, B_x, B_w1, B_w2):
    def _A_ref(x, wqkv, wo):
        B, S, D = x.shape
        H = 32; Dh = D // H
        W, dil = 8, 2
        qkv = (lambda x, *d: x.permute(*d))((x @ wqkv).reshape(B, S, 3, H, Dh), 2, 0, 3, 1, 4)
        q, k, v = qkv[0], qkv[1], qkv[2]
        scale = Dh ** -0.5
        pos = torch.arange(S)
        off = torch.arange(W) * dil
        idx = pos[:, None] - off[None, :]
        mask = idx >= 0
        idx_c = torch.where(mask, idx, 0).reshape(-1)
        kg = k[:, :, idx_c, :].reshape(B, H, S, W, Dh)
        vg = v[:, :, idx_c, :].reshape(B, H, S, W, Dh)
        logits = torch.einsum("bhsd,bhswd->bhsw", q, kg) * scale
        logits = torch.where(mask[None, None, :, :], logits, -1e9)
        attn = _softmax(logits, axis=-1)
        o = torch.einsum("bhsw,bhswd->bhsd", attn, vg)
        return (lambda x, *d: x.permute(*d))(o, 0, 2, 1, 3).reshape(B, S, D) @ wo

    def _B_ref(x, w1, w2):
        h = torch.einsum("bsd,df->bsf", x, w1)
        zero = torch.zeros_like(h)
        h = torch.maximum(h, zero)
        return torch.einsum("bsf,fd->bsd", h, w2)

    x = A_x
    xn = _layernorm(x, axis=-1)
    s = _A_ref(xn, A_wqkv, A_wo)
    g = _silu(_B_ref(xn, B_w1, B_w2))
    return x + s * g
```

```python
import sys
NAME = "recurrent_scan__sliding_local_dilated__dense_activation_relu__prompt"
L = []
def e(s): L.append("    " + s)
def lab(s): L.append(s + ":")
def c(s): L.append("    ; " + s)

SLOT = 24576
NSLOT = 6
KVBASE = 73728
KVSTR = 592
PCHUNK = 147456
HALO_OFF = 256 * PCHUNK
WS_BYTES = HALO_OFF + 64 * 9216
D = 5
R = 8

vTID, vLANE, vM, vHH = 0, 1, 2, 3
vA, vB, vA0, vB0, vA0n, vB0n = 4, 5, 6, 7, 8, 9
vDOFF, vDBASE, vCI = 10, 11, 12
vRSTD, vST, vDOFF2 = 13, 14, 15
ACC = [16, 32]
TMP = [48, 64]
PK = [80, 88]
vT = 96
X = 112
vBASE_G2, vBASE_AG2, vCOLP = 108, 109, 110
U = 64
FR = 0
H = 64
sSRD, sX, sWS, sDBG = 4, 8, 12, 16
sWAVE, sRB, sJOB, sATT = 20, 21, 22, 23
sSOFF, sPS0, sPS1, sKC, sKCN, sROWSTEP, sWRAP, sDCNT = 24, 25, 26, 27, 28, 29, 30, 31
sRD, sWR, sM0B, sG, sNG, sRELU = 32, 33, 34, 35, 36, 37
sP0, sP1, sP2 = 38, 39, 40
sONES, sSELLO, sSELHI = 41, 42, 43
sNB0, sNB1, sNSZ, sNSOFF, sNPS0, sNPS1, sNKCN, sNROW, sNWRAP, sNDCNT = 44, 45, 46, 47, 48, 49, 50, 51, 52, 53
sT0, sT1, sT2, sT3 = 54, 55, 56, 57
sSTOFF, sW6K, sCUR, sSH = 58, 59, 60, 61
sK = 64
sEX = 84
uid = [0]
def newlab(p):
    uid[0] += 1
    return f"L{p}_{uid[0]}"

def vr(b, n): return f"v[{b}:{b+n-1}]"
def ar(b, n): return f"a[{b}:{b+n-1}]"
def sr(b, n): return f"s[{b}:{b+n-1}]"

def dma_piece(p):
    o = []
    if p == 0:
        o.append(f"s_mov_b32 m0, s{sM0B}")
        o.append(f"s_mov_b32 s{sCUR}, s{sSOFF}")
    else:
        o.append("s_addk_i32 m0, 0x400")
        o.append(f"s_add_u32 s{sCUR}, s{sCUR}, s{sPS0 if p % 2 == 1 else sPS1}")
    o.append(f"buffer_load_dwordx4 v{vDOFF}, {sr(sSRD,4)}, s{sCUR} offen lds")
    return o

def dma_voff_calc():
    return [
        f"v_mov_b32 v{vT}, s{sP2}",
        f"v_mov_b32 v{vT+1}, s{sP1}",
        f"v_cmp_gt_u32 vcc, 18, v{vCI}",
        f"v_mov_b32 v{vT+2}, s{sP0}",
        "s_nop 0",
        f"v_cndmask_b32 v{vT}, v{vT}, v{vT+1}, vcc",
        f"v_cmp_gt_u32 vcc, 9, v{vCI}",
        "s_nop 1",
        f"v_cndmask_b32 v{vT}, v{vT}, v{vT+2}, vcc",
        f"v_lshlrev_b32 v{vT+1}, s{sSH}, v{vCI}",
        f"v_add3_u32 v{vDOFF}, v{vDBASE}, v{vT}, v{vT+1}",
    ]

def dma_advance():
    o = []
    l1, l2 = newlab("nowrap"), newlab("nosw")
    o.append(f"s_add_u32 s{sSOFF}, s{sSOFF}, s{sROWSTEP}")
    o.append(f"s_add_u32 s{sWR}, s{sWR}, {SLOT}")
    o.append(f"s_cmp_eq_u32 s{sWR}, {SLOT*NSLOT}")
    o.append(f"s_cselect_b32 s{sWR}, 0, s{sWR}")
    o.append(f"s_add_u32 s{sM0B}, s{sWR}, s{sW6K}")
    o.append(f"s_add_u32 s{sKC}, s{sKC}, 1")
    o.append(f"s_cmp_eq_u32 s{sKC}, s{sKCN}")
    o.append(f"s_cbranch_scc0 {l1}")
    o.append(f"s_mov_b32 s{sKC}, 0")
    o.append(f"s_add_u32 s{sSOFF}, s{sSOFF}, s{sWRAP}")
    o.append(f"v_add_u32 v{vCI}, 4, v{vCI}")
    o += dma_voff_calc()
    o.append(f"{l1}:")
    o.append(f"s_sub_u32 s{sDCNT}, s{sDCNT}, 1")
    o.append(f"s_cmp_eq_u32 s{sDCNT}, 0")
    o.append(f"s_cbranch_scc0 {l2}")
    o.append(f"s_mov_b32 s{sSRD}, s{sNB0}")
    o.append(f"s_mov_b32 s{sSRD+1}, s{sNB1}")
    o.append(f"s_mov_b32 s{sSRD+2}, s{sNSZ}")
    o.append(f"s_mov_b32 s{sSOFF}, s{sNSOFF}")
    o.append(f"s_mov_b32 s{sPS0}, s{sNPS0}")
    o.append(f"s_mov_b32 s{sPS1}, s{sNPS1}")
    o.append(f"s_mov_b32 s{sKCN}, s{sNKCN}")
    o.append(f"s_mov_b32 s{sROWSTEP}, s{sNROW}")
    o.append(f"s_mov_b32 s{sWRAP}, s{sNWRAP}")
    o.append(f"s_mov_b32 s{sDCNT}, s{sNDCNT}")
    o.append(f"s_mov_b32 s{sKC}, 0")
    o.append(f"s_mov_b32 s{sP0}, 0")
    o.append(f"s_mov_b32 s{sP1}, 0")
    o.append(f"s_mov_b32 s{sP2}, 0")
    o.append(f"v_mov_b32 v{vDBASE}, v{vDOFF2}")
    o.append(f"v_mov_b32 v{vDOFF}, v{vDOFF2}")
    o.append(f"v_mov_b32 v{vCI}, 0")
    o.append(f"s_mov_b32 s{sNSOFF}, 0x40000000")
    o.append(f"s_mov_b32 s{sNROW}, 0")
    o.append(f"s_mov_b32 s{sNWRAP}, 0")
    o.append(f"s_mov_b32 s{sNDCNT}, 0x1000")
    o.append(f"{l2}:")
    return o

def emit_list(lst):
    for s in lst:
        if s.endswith(":"): L.append(s)
        else: e(s)

def tr_reads(fr, addr, off, second):
    return [f"ds_read_b64_tr_b16 {ar(FR+4*fr,2)}, v{addr} offset:{off}",
            f"ds_read_b64_tr_b16 {ar(FR+4*fr+2,2)}, v{addr} offset:{off+second}"]

def round_bf16(v, tmp):
    return [f"v_cvt_pk_bf16_f32 v{tmp}, v{v}, v{v}", f"v_lshlrev_b32 v{v}, 16, v{tmp}"]

def gemm_body(nst, bop, fill, first_c0=True):
    n = 24 * nst
    for i in range(n):
        st, w = divmod(i, 24)
        tile, ks = divmod(w, 12)
        j = (i + D) % n
        w2 = j % 24
        t2, ks2 = divmod(w2, 12)
        emit_list(tr_reads((i + D) % R, vA if t2 == 0 else vB, ks2 * 2048, 512))
        e(f"s_waitcnt lgkmcnt({2*D})")
        acc = vr(ACC[tile], 16)
        cc = "0" if (st == 0 and ks == 0) else acc
        e(f"v_mfma_f32_32x32x16_bf16 {acc}, {ar(FR+4*(i%R),4)}, {bop(12*st+ks)}, {cc}")
        emit_list(fill.get(i, []))

def add(fill, slot, ins):
    fill.setdefault(slot, []).extend(ins)

def stage_fill(fill, st, nst, wait_ins):
    b = 24 * st
    add(fill, b + 9, wait_ins + ["s_barrier"])
    for p in range(6):
        add(fill, b + 10 + 2 * p, dma_piece(p))
    add(fill, b + 21, dma_advance())
    last = (st == nst - 1)
    add(fill, b + 12, [f"s_add_u32 s{sRD}, s{sRD}, {SLOT}", f"s_cmp_eq_u32 s{sRD}, {SLOT*NSLOT}",
                       f"s_cselect_b32 s{sRD}, 0, s{sRD}"])
    add(fill, b + 13, [f"v_add_u32 v{vA}, s{sRD}, v{vA0n if last else vA0}"])
    add(fill, b + 23, [f"v_add_u32 v{vB}, s{sRD}, v{vB0n if last else vB0}"])

def k1():
    kn = "k1_kernel"
    L.append(f".globl {kn}\n.p2align 8\n.type {kn},@function")
    lab(kn)
    e("s_cmp_ge_u32 s2, 256")
    e("s_cbranch_scc1 Lend1")
    e(f"s_load_dwordx16 {sr(sK,16)}, s[0:1], 0")
    e(f"s_load_dwordx2 {sr(sK+16,2)}, s[0:1], 64")
    kx, kqkv, kwo, kw1, kw2, kdbg, kws = sK, sK+2, sK+4, sK+8, sK+10, sK+14, sK+16
    c("lane decode")
    e(f"v_and_b32 v{vLANE}, 63, v0")
    e(f"v_lshrrev_b32 v{vT}, 6, v0")
    e(f"v_and_b32 v{vM}, 31, v0")
    e(f"v_readfirstlane_b32 s{sWAVE}, v{vT}")
    e(f"v_bfe_u32 v{vHH}, v0, 5, 1")
    c("wg decode: xcd=wg%8, q=wg/8; jg=xcd%4; i=q%4; rb=(xcd/4)*8+q/4")
    e(f"s_and_b32 s{sT0}, s2, 3")
    e(f"s_bfe_u32 s{sT1}, s2, 0x20003")
    e(f"s_bfe_u32 s{sT2}, s2, 0x10002")
    e(f"s_lshr_b32 s{sT3}, s2, 5")
    e(f"s_lshl_b32 s{sRB}, s{sT2}, 3")
    e(f"s_add_u32 s{sRB}, s{sRB}, s{sT3}")
    e(f"s_mul_i32 s{sJOB}, s{sT0}, 3")
    e(f"s_add_u32 s{sJOB}, s{sJOB}, s{sT1}")
    e(f"s_add_u32 s{sT2}, s{sT0}, 12")
    e(f"s_cmp_eq_u32 s{sT1}, 3")
    e(f"s_cselect_b32 s{sJOB}, s{sT2}, s{sJOB}")
    e(f"s_cselect_b32 s{sATT}, 1, 0")
    e(f"s_mul_i32 s{sW6K}, s{sWAVE}, 6144")
    e(f"s_mov_b32 s{sONES}, 0x3f803f80")
    e(f"s_mov_b32 s{sSELLO}, 0x00003f80")
    e(f"s_mov_b32 s{sSELHI}, 0x3f800000")
    c("x dma voffsets: i=lane/8, j'=lane%8; key=(i>>1)|(par<<2); off=i*1152+((j'^key)*16)")
    e(f"v_lshrrev_b32 v{vT}, 3, v{vLANE}")
    e(f"v_and_b32 v{vT+1}, 7, v{vLANE}")
    e(f"v_lshrrev_b32 v{vT+2}, 1, v{vT}")
    e(f"v_xor_b32 v{vT+2}, v{vT+1}, v{vT+2}")
    e(f"v_mul_u32_u24 v{vT+3}, 1152, v{vT}")
    e(f"v_lshl_add_u32 v{vT+4}, v{vT+2}, 4, v{vT+3}")
    e(f"v_xor_b32 v{vT+5}, 64, v{vT+4}")
    e("s_waitcnt lgkmcnt(0)")
    c("SRDs")
    for (s, k, sz) in ((sX, kx, 2048*1152), (sWS, kws, WS_BYTES), (sDBG, kdbg, 256)):
        e(f"s_mov_b32 s{s}, s{k}")
        e(f"s_and_b32 s{s+1}, s{k+1}, 0xffff")
        e(f"s_mov_b32 s{s+2}, {sz}")
        e(f"s_mov_b32 s{s+3}, 0x00020000")
    c("x rows base")
    e(f"s_lshl_b32 s{sT0}, s{sRB}, 7")
    e(f"s_lshl_b32 s{sT1}, s{sWAVE}, 5")
    e(f"s_add_u32 s{sT0}, s{sT0}, s{sT1}")
    e(f"s_mul_i32 s{sT0}, s{sT0}, 1152")
    e(f"s_add_u32 s{sT1}, s{sT0}, {8*1152}")
    e(f"s_add_u32 s{sT2}, s{sT0}, {16*1152}")
    e(f"s_add_u32 s{sT3}, s{sT0}, {24*1152}")
    e(f"s_mul_i32 s{sCUR}, s{sWAVE}, 36864")
    for cg in range(9):
        for br in range(4):
            e(f"s_add_u32 m0, s{sCUR}, {(br*9+cg)*1024 - cg*128}")
            e("s_nop 0")
            e(f"buffer_load_dwordx4 v{vT+4+(br&1)}, {sr(sX,4)}, s{sT0+br} offen offset:{cg*128} lds")
    c("x frag read addresses: base + (m/8)*9216 + (m%8)*128 + (((2q+hh)^key)*16), key=(m>>1)&7")
    e(f"v_lshrrev_b32 v{vT}, 3, v{vM}")
    e(f"v_mul_u32_u24 v{vT}, 9216, v{vT}")
    e(f"v_and_b32 v{vT+1}, 7, v{vM}")
    e(f"v_lshl_add_u32 v{vT}, v{vT+1}, 7, v{vT}")
    e(f"v_add_u32 v{vT}, s{sCUR}, v{vT}")
    e(f"v_bfe_u32 v{vT+1}, v{vM}, 1, 3")
    e(f"v_xor_b32 v{vT+1}, v{vT+1}, v{vHH}")
    for q in range(4):
        e(f"v_xor_b32 v{vT+2}, {2*q}, v{vT+1}")
        e(f"v_lshl_add_u32 v{vT+6+q}, v{vT+2}, 4, v{vT}")
    c("tr-read lane bases. g=lane/16: ch=g&1, hh=g>>1; r=(lane%16)/4, cc=lane%4")
    tr, tc, tch, trow, tsw = U+10, U+11, U+12, U+13, U+14
    e(f"v_bfe_u32 v{tr}, v{vLANE}, 2, 2")
    e(f"v_and_b32 v{tc}, 3, v{vLANE}")
    e(f"v_bfe_u32 v{tch}, v{vLANE}, 4, 1")
    e(f"v_lshl_add_u32 v{trow}, v{vHH}, 3, v{tr}")
    e(f"v_lshlrev_b32 v{trow}, 7, v{trow}")
    e(f"v_lshrrev_b32 v{tsw}, 1, v{tr}")
    c(" FFN gemm1: sw*64 + ch*32 + c*8")
    e(f"v_lshl_add_u32 v{vA0}, v{tsw}, 6, v{trow}")
    e(f"v_lshl_add_u32 v{vA0}, v{tch}, 5, v{vA0}")
    e(f"v_lshl_add_u32 v{vA0}, v{tc}, 3, v{vA0}")
    e(f"v_xor_b32 v{vB0}, 64, v{vA0}")
    c(" gemm2 (both): sw*64 + (c%2)*32 + ch*16 + (c/2)*8   -> kept in v{vCOLP}/v{vBASE_G2} (col part only in v{vCOLP})")
    e(f"v_and_b32 v{U+15}, 1, v{tc}")
    e(f"v_lshlrev_b32 v{vCOLP}, 6, v{tsw}")
    e(f"v_lshl_add_u32 v{vCOLP}, v{U+15}, 5, v{vCOLP}")
    e(f"v_lshl_add_u32 v{vCOLP}, v{tch}, 4, v{vCOLP}")
    e(f"v_lshrrev_b32 v{vT+2}, 1, v{tc}")
    e(f"v_lshl_add_u32 v{vCOLP}, v{vT+2}, 3, v{vCOLP}")
    e(f"v_add_u32 v{vBASE_G2}, v{vCOLP}, v{trow}")
    c(" attention gemm1: list=(c%2): list*64 + (tt^sw)*32 + ch*16 + (c/2)*8")
    e(f"v_lshl_add_u32 v{vT+3}, v{U+15}, 6, v{trow}")
    e(f"v_lshl_add_u32 v{vT+3}, v{tsw}, 5, v{vT+3}")
    e(f"v_lshl_add_u32 v{vT+3}, v{tch}, 4, v{vT+3}")
    e(f"v_lshl_add_u32 v{vT+3}, v{vT+2}, 3, v{vT+3}")
    c(" attention gemm2 row base (72hh+r)*128 + col part -> v{vBASE_AG2}")
    e(f"v_mul_u32_u24 v{vBASE_AG2}, 72, v{vHH}")
    e(f"v_add_u32 v{vBASE_AG2}, v{vBASE_AG2}, v{tr}")
    e(f"v_lshl_add_u32 v{vBASE_AG2}, v{vBASE_AG2}, 7, v{vCOLP}")
    c("dma lane decode")
    di, dj, dsw = U+10, U+11, U+12
    e(f"v_lshrrev_b32 v{di}, 3, v{vLANE}")
    e(f"v_and_b32 v{dj}, 7, v{vLANE}")
    e(f"v_bfe_u32 v{dsw}, v{di}, 1, 1")
    e(f"s_mul_i32 s{sT0}, s{sWAVE}, 48")
    e(f"s_cmp_eq_u32 s{sATT}, 1")
    e("s_cbranch_scc1 Lsetup_att")
    c("---- FFN setup")
    e(f"v_lshlrev_b32 v{U+13}, 2, v{dsw}")
    e(f"v_xor_b32 v{U+13}, v{dj}, v{U+13}")
    e(f"v_lshlrev_b32 v{U+13}, 4, v{U+13}")
    e(f"v_add_u32 v{U+14}, s{sT0}, v{di}")
    e(f"v_mul_u32_u24 v{U+14}, 9216, v{U+14}")
    e(f"v_add_u32 v{vDBASE}, v{U+14}, v{U+13}")
    c(" W2: row = 48w + 8*(i/4) + i%4")
    e(f"v_lshrrev_b32 v{U+14}, 2, v{di}")
    e(f"v_and_b32 v{U+15}, 3, v{di}")
    e(f"v_lshl_add_u32 v{U+14}, v{U+14}, 3, v{U+15}")
    e(f"v_add_u32 v{U+14}, s{sT0}, v{U+14}")
    e(f"v_mul_u32_u24 v{U+14}, 1152, v{U+14}")
    e(f"v_add_u32 v{vDOFF2}, v{U+14}, v{U+13}")
    e(f"v_mov_b32 v{vCI}, 0")
    e(f"s_mov_b32 s{sSRD}, s{kw1}")
    e(f"s_and_b32 s{sSRD+1}, s{kw1+1}, 0xffff")
    e(f"s_mov_b32 s{sSRD+2}, {576*9216}")
    e(f"s_mul_i32 s{sSOFF}, s{sJOB}, 768")
    e(f"s_mov_b32 s{sPS0}, {8*9216}")
    e(f"s_mov_b32 s{sPS1}, {8*9216}")
    e(f"s_mov_b32 s{sROWSTEP}, {192*9216}")
    e(f"s_mov_b32 s{sWRAP}, {(- 3*192*9216) & 0xffffffff}")
    e(f"s_mov_b32 s{sDCNT}, 18")
    e(f"s_mov_b32 s{sP0}, 0")
    e(f"s_mov_b32 s{sP1}, 0")
    e(f"s_mov_b32 s{sP2}, 0")
    e(f"s_mov_b32 s{sNB0}, s{kw2}")
    e(f"s_and_b32 s{sNB1}, s{kw2+1}, 0xffff")
    e(f"s_mov_b32 s{sNSZ}, {4608*1152}")
    e(f"s_mul_i32 s{sNSOFF}, s{sJOB}, {384*1152}")
    e(f"s_mov_b32 s{sNPS0}, {4*1152}")
    e(f"s_mov_b32 s{sNPS1}, {12*1152}")
    e(f"s_mov_b32 s{sNKCN}, 2")
    e(f"s_mov_b32 s{sNROW}, {192*1152}")
    e(f"s_mov_b32 s{sNWRAP}, {(- 2*192*1152) & 0xffffffff}")
    e(f"s_mov_b32 s{sNDCNT}, 18")
    e(f"s_mov_b32 s{sNG}, 6")
    e(f"s_mov_b32 s{sRELU}, 0")
    e(f"s_mov_b32 s{sSH}, 5")
    e("s_branch Lsetup_done")
    lab("Lsetup_att")
    c("---- attention setup: u'=j'/2, u=u'^sw, list=u/2, tt=u%2, ci=2tt+(j'%2)")
    e(f"v_mov_b32 v{vA0}, v{vT+3}")
    e(f"v_xor_b32 v{vB0}, 32, v{vT+3}")
    e(f"v_lshrrev_b32 v{U+13}, 1, v{dj}")
    e(f"v_xor_b32 v{U+13}, v{U+13}, v{dsw}")
    e(f"v_and_b32 v{U+14}, 1, v{U+13}")
    e(f"v_and_b32 v{U+15}, 1, v{dj}")
    e(f"v_lshl_add_u32 v{vCI}, v{U+14}, 1, v{U+15}")
    e(f"v_lshrrev_b32 v{U+13}, 1, v{U+13}")
    e(f"v_mul_u32_u24 v{U+13}, 144, v{U+13}")
    e(f"v_add_u32 v{U+14}, s{sT0}, v{di}")
    e(f"v_mul_u32_u24 v{U+14}, 3456, v{U+14}")
    e(f"v_add_u32 v{vDBASE}, v{U+14}, v{U+13}")
    c(" Wo dma voffset: row=40w+i natural, chunk j=j'^(4sw)")
    e(f"v_lshlrev_b32 v{U+13}, 2, v{dsw}")
    e(f"v_xor_b32 v{U+13}, v{dj}, v{U+13}")
    e(f"v_lshlrev_b32 v{U+13}, 4, v{U+13}")
    e(f"s_mul_i32 s{sT1}, s{sWAVE}, 40")
    e(f"v_add_u32 v{U+14}, s{sT1}, v{di}")
    e(f"v_mul_u32_u24 v{U+14}, 1152, v{U+14}")
    e(f"v_add_u32 v{vDOFF2}, v{U+14}, v{U+13}")
    e(f"s_mov_b32 s{sSRD}, s{kqkv}")
    e(f"s_and_b32 s{sSRD+1}, s{kqkv+1}, 0xffff")
    e(f"s_mov_b32 s{sSRD+2}, {576*3456}")
    e(f"s_sub_u32 s{sT1}, s{sJOB}, 12")
    e(f"s_mul_i32 s{sSOFF}, s{sT1}, 288")
    e(f"s_mov_b32 s{sPS0}, {8*3456}")
    e(f"s_mov_b32 s{sPS1}, {8*3456}")
    e(f"s_mov_b32 s{sROWSTEP}, {192*3456}")
    e(f"s_mov_b32 s{sWRAP}, {(- 3*192*3456) & 0xffffffff}")
    e(f"s_mov_b32 s{sDCNT}, 21")
    c(" piecewise offsets, biased by +288 folded into soff start to keep lane offsets non-negative")
    e(f"s_mov_b32 s{sP0}, 1152")
    e(f"s_mov_b32 s{sP1}, 2160")
    e(f"s_mov_b32 s{sP2}, {(-288) & 0xffffffff}")
    e(f"s_mov_b32 s{sNB0}, s{kwo}")
    e(f"s_and_b32 s{sNB1}, s{kwo+1}, 0xffff")
    e(f"s_mov_b32 s{sNSZ}, {576*1152}")
    e(f"s_mov_b32 s{sNSOFF}, 0x40000000")
    e(f"s_mov_b32 s{sNPS0}, 0")
    e(f"s_mov_b32 s{sNPS1}, 0")
    e(f"s_mov_b32 s{sNKCN}, 3")
    e(f"s_mov_b32 s{sNROW}, 0")
    e(f"s_mov_b32 s{sNWRAP}, 0")
    e(f"s_mov_b32 s{sNDCNT}, 0x1000")
    e(f"s_mov_b32 s{sNG}, 7")
    e(f"s_mov_b32 s{sRELU}, 0x80008000")
    e(f"s_mov_b32 s{sSH}, 4")
    lab("Lsetup_done")
    e(f"s_mov_b32 s{sSRD+3}, 0x00020000")
    e(f"s_mov_b32 s{sKC}, 0")
    e(f"s_mov_b32 s{sKCN}, 3")
    e(f"s_mov_b32 s{sWR}, 0")
    e(f"s_mov_b32 s{sRD}, 0")
    e(f"s_mov_b32 s{sM0B}, s{sW6K}")
    e(f"s_mov_b32 s{sG}, 0")
    e(f"v_mov_b32 v{vA0n}, v{vA0}")
    e(f"v_mov_b32 v{vB0n}, v{vB0}")
    e(f"v_mov_b32 v{vA}, v{vA0}")
    e(f"v_mov_b32 v{vB}, v{vB0}")
    c("partial store: voffset = lane*16 ; soffset base = ((rb*16+job)*4+wave)*36864")
    e(f"v_lshlrev_b32 v{vST}, 4, v{vLANE}")
    e(f"s_lshl_b32 s{sT0}, s{sRB}, 4")
    e(f"s_add_u32 s{sT0}, s{sT0}, s{sJOB}")
    e(f"s_lshl_b32 s{sT0}, s{sT0}, 2")
    e(f"s_add_u32 s{sT0}, s{sT0}, s{sWAVE}")
    e(f"s_mul_i32 s{sSTOFF}, s{sT0}, 36864")
    c("save x read addrs (v102..105 are clobbered by voff calc? uses v96..98 only)")
    emit_list(dma_voff_calc())
    c("attention: lane offset is biased by +288; remove via base (att only): vDBASE-288 may go negative for row 0 -> fold in SRD base instead")
    c("---- read x frags, row sums")
    s0 = TMP[0]
    for i in range(4): e(f"v_mov_b32 v{s0+i}, 0")
    for cg in range(9):
        e(f"s_waitcnt vmcnt({36 - 4*(cg+1)})")
        for q in range(4):
            s = 4 * cg + q
            e(f"ds_read_b128 {vr(X+4*s,4)}, v{vT+6+q} offset:{cg*1024}")
        if cg > 0:
            e("s_waitcnt lgkmcnt(4)")
            for i in range(16):
                e(f"v_dot2c_f32_bf16 v{s0+i%4}, s{sONES}, v{X+16*(cg-1)+i}")
    e("s_waitcnt lgkmcnt(0)")
    e("s_barrier")
    c("prime ring: stages 0..4")
    for i in range(16):
        e(f"v_dot2c_f32_bf16 v{s0+i%4}, s{sONES}, v{X+128+i}")
    e(f"s_mov_b32 s{sT3}, 5")
    lab("Lprime")
    for p in range(6): emit_list(dma_piece(p))
    emit_list(dma_advance())
    e(f"s_sub_u32 s{sT3}, s{sT3}, 1")
    e(f"s_cmp_lg_u32 s{sT3}, 0")
    e("s_cbranch_scc1 Lprime")
    c("---- LN")
    e(f"v_add_f32 v{s0}, v{s0}, v{s0+1}")
    e(f"v_add_f32 v{s0+2}, v{s0+2}, v{s0+3}")
    e(f"v_add_f32 v{s0}, v{s0}, v{s0+2}")
    e(f"v_mov_b32 v{s0+1}, v{s0}")
    e("s_nop 1")
    e(f"v_permlane32_swap_b32 v{s0}, v{s0+1}")
    e("s_nop 1")
    e(f"v_add_f32 v{s0}, v{s0}, v{s0+1}")
    e(f"v_mul_f32 v{s0}, {1.0/576:.9e}, v{s0}")
    e(f"v_mov_b32 v{s0+1}, v{s0}")
    emit_list(round_bf16(s0+1, s0+2))
    e(f"v_sub_f32 v{s0+3}, v{s0}, v{s0+1}")
    e(f"v_sub_f32 v{s0+2}, 0, v{s0+1}")
    negm, dm, q0 = s0+2, s0+3, s0+4
    for i in range(4): e(f"v_mov_b32 v{q0+i}, 0")
    t = TMP[1]
    for b in range(0, 144, 4):
        tb = t + (8 if (b // 4) % 2 else 0)
        for i in range(4):
            e(f"v_dot2_f32_bf16 v{tb+2*i}, v{X+b+i}, s{sSELLO}, v{negm}")
            e(f"v_dot2_f32_bf16 v{tb+2*i+1}, v{X+b+i}, s{sSELHI}, v{negm}")
        if b > 0:
            pb = t + (8 if (b // 4 - 1) % 2 else 0)
            for i in range(4):
                e(f"v_cvt_pk_bf16_f32 v{X+b-4+i}, v{pb+2*i}, v{pb+2*i+1}")
        if b > 4:
            for i in range(4):
                e(f"v_dot2c_f32_bf16 v{q0+i}, v{X+b-8+i}, v{X+b-8+i}")
    e("s_nop 2")
    pb = t + (8 if (35) % 2 else 0)
    for i in range(4):
        e(f"v_cvt_pk_bf16_f32 v{X+140+i}, v{pb+2*i}, v{pb+2*i+1}")
    for i in range(8):
        e(f"v_dot2c_f32_bf16 v{q0+i%4}, v{X+136+i}, v{X+136+i}")
    e("s_nop 2")
    e(f"v_add_f32 v{q0}, v{q0}, v{q0+1}")
    e(f"v_add_f32 v{q0+2}, v{q0+2}, v{q0+3}")
    e(f"v_add_f32 v{q0}, v{q0}, v{q0+2}")
    e(f"v_mov_b32 v{q0+1}, v{q0}")
    e("s_nop 1")
    e(f"v_permlane32_swap_b32 v{q0}, v{q0+1}")
    e("s_nop 1")
    e(f"v_add_f32 v{q0}, v{q0}, v{q0+1}")
    e(f"v_mul_f32 v{q0}, {1.0/576:.9e}, v{q0}")
    e(f"v_fma_f32 v{q0}, -v{dm}, v{dm}, v{q0}")
    e(f"v_max_f32 v{q0}, 0, v{q0}")
    emit_list(round_bf16(q0, q0+1))
    e(f"v_add_f32 v{q0}, 0x3727c5ac, v{q0}")
    emit_list(round_bf16(q0, q0+1))
    e(f"v_sqrt_f32 v{q0}, v{q0}")
    e("s_nop 0")
    emit_list(round_bf16(q0, q0+1))
    e(f"v_rcp_f32 v{vRSTD}, v{q0}")
    c("stage 0 landed?")
    e("s_waitcnt vmcnt(24)")
    e("s_barrier")
    for i in range(D):
        emit_list(tr_reads(i % R, vA, i * 2048, 512))
    c("================ phase 1 loop")
    def epi1(fill, tile, s_mul, gshift):
        sl = lambda x: x % 72
        for i in range(16):
            add(fill, sl(s_mul + i // 2), [f"v_mul_f32 v{TMP[tile]+i}, v{ACC[tile]+i}, v{vRSTD}"])
        for i in range(8):
            add(fill, sl(s_mul + 9 + i), [f"v_cvt_pk_bf16_f32 v{PK[tile]+i}, v{TMP[tile]+2*i}, v{TMP[tile]+2*i+1}"])
            add(fill, sl(s_mul + 10 + i), [f"v_pk_max_i16 v{PK[tile]+i}, v{PK[tile]+i}, s{sRELU}"])
        for g in range(7):
            lb = newlab("hw")
            ins = [f"s_cmp_eq_u32 s{sG}, {g + gshift}", f"s_cbranch_scc0 {lb}"]
            ins += [f"v_accvgpr_write_b32 a{H+16*g+8*tile+i}, v{PK[tile]+i}" for i in range(8)]
            ins += [f"{lb}:"]
            add(fill, sl(s_mul + 19 + g), ins)
    fill = {}
    for st in range(3):
        stage_fill(fill, st, 3, ["s_waitcnt vmcnt(18)"])
    epi1(fill, 0, 63, 1)
    epi1(fill, 1, 3, 1)
    lb = newlab("lastg")
    add(fill, 50, [f"s_add_u32 s{sT0}, s{sG}, 1", f"s_cmp_eq_u32 s{sT0}, s{sNG}", f"s_cbranch_scc0 {lb}",
                   f"v_mov_b32 v{vA0n}, v{vBASE_G2}", f"v_xor_b32 v{vB0n}, 64, v{vBASE_G2}", f"{lb}:"])
    lb = newlab("pub")
    pub = [f"s_cmp_eq_u32 s{sG}, 5", f"s_cbranch_scc0 {lb}", f"s_cmp_eq_u32 s{sATT}, 1", f"s_cbranch_scc0 {lb}",
           f"s_cmp_eq_u32 s{sWAVE}, 3", f"s_cbranch_scc0 {lb}",
           f"s_lshl_b32 s{sT0}, s{sRB}, 2", f"s_add_u32 s{sT0}, s{sT0}, s{sJOB}", f"s_sub_u32 s{sT0}, s{sT0}, 12",
           f"s_mul_i32 s{sT0}, s{sT0}, 9216", f"s_add_u32 s{sT0}, s{sT0}, {HALO_OFF}",
           f"v_and_b32 v{vT+3}, 15, v{vM}", f"v_mul_u32_u24 v{vT+3}, 576, v{vT+3}",
           f"v_mul_u32_u24 v{vT+4}, 288, v{vHH}", f"v_add_u32 v{vT+3}, v{vT+3}, v{vT+4}",
           f"v_cmp_lt_u32 vcc, 15, v{vM}", f"s_and_saveexec_b64 {sr(sEX,2)}, vcc"]
    pub += [f"buffer_store_dwordx4 {ar(H+4*u,4)}, v{vT+3}, {sr(sWS,4)}, s{sT0} offen offset:{16*u} sc0 sc1" for u in range(18)]
    pub += [f"s_mov_b64 exec, {sr(sEX,2)}", "s_nop 3", f"{lb}:"]
    add(fill, 32, pub)
    lb = newlab("flag")
    flg = [f"s_cmp_eq_u32 s{sG}, 6", f"s_cbranch_scc0 {lb}", f"s_cmp_eq_u32 s{sWAVE}, 3", f"s_cbranch_scc0 {lb}",
           "s_waitcnt vmcnt(18)",
           f"s_lshl_b32 s{sT0}, s{sRB}, 2", f"s_add_u32 s{sT0}, s{sT0}, s{sJOB}", f"s_sub_u32 s{sT0}, s{sT0}, 12",
           f"s_lshl_b32 s{sT0}, s{sT0}, 2",
           f"v_mov_b32 v{vT+3}, 0", f"v_mov_b32 v{vT+4}, 1",
           f"v_cmp_eq_u32 vcc, 0, v{vLANE}", f"s_and_saveexec_b64 {sr(sEX,2)}, vcc",
           f"buffer_store_dword v{vT+4}, v{vT+3}, {sr(sDBG,4)}, s{sT0} offen sc0 sc1",
           f"s_mov_b64 exec, {sr(sEX,2)}", "s_nop 3", f"{lb}:"]
    add(fill, 31, flg)
    add(fill, 71, [f"s_add_u32 s{sG}, s{sG}, 1", f"s_cmp_lt_u32 s{sG}, s{sNG}"])
    e(".p2align 6")
    lab("Lp1")
    gemm_body(3, lambda s: vr(X + 4 * s, 4), fill)
    e("s_cbranch_scc1 Lp1")
    c("finish epilogues of last group (A: cvt.. pending, B: all)")
    e("s_nop 7")
    e("s_nop 3")
    for i in range(16):
        e(f"v_mul_f32 v{TMP[1]+i}, v{ACC[1]+i}, v{vRSTD}")
    for tile in range(2):
        for i in range(8):
            e(f"v_cvt_pk_bf16_f32 v{PK[tile]+i}, v{TMP[tile]+2*i}, v{TMP[tile]+2*i+1}")
        for i in range(8):
            e(f"v_pk_max_i16 v{PK[tile]+i}, v{PK[tile]+i}, s{sRELU}")
    e(f"s_cmp_eq_u32 s{sATT}, 1")
    e("s_cbranch_scc1 Latt")
    for i in range(16):
        e(f"v_accvgpr_write_b32 a{H+80+i}, v{PK[0]+i}")
    e(f"v_mov_b32 v{vA0}, v{vA0n}")
    e(f"v_mov_b32 v{vB0}, v{vB0n}")
    e(f"s_mov_b32 s{sG}, 0")
    e(f"s_mov_b32 s{sT2}, 0x40000000")
    c("================ phase 2 loop (FFN)")
    fill = {}
    for st in range(2):
        l1, l2 = newlab("w18"), newlab("wd")
        w = [f"s_cmp_lt_u32 s{sG}, 2", f"s_cbranch_scc1 {l1}", "s_waitcnt vmcnt(26)", f"s_branch {l2}",
             f"{l1}:", "s_waitcnt vmcnt(18)", f"{l2}:"]
        stage_fill(fill, st, 2, w)
    for i in range(8):
        add(fill, 39 + i // 2 + (1 if i >= 4 else 0), [f"v_cvt_pk_bf16_f32 v{PK[0]+i}, v{ACC[0]+2*i}, v{ACC[0]+2*i+1}"])
        add(fill, 3 + i // 2, [f"v_cvt_pk_bf16_f32 v{PK[1]+i}, v{ACC[1]+2*i}, v{ACC[1]+2*i+1}"])
    add(fill, 46, [f"buffer_store_dwordx4 {vr(PK[0],4)}, v{vST}, {sr(sWS,4)}, s{sSTOFF} offen sc0 sc1"])
    add(fill, 47, [f"buffer_store_dwordx4 {vr(PK[0]+4,4)}, v{vST}, {sr(sWS,4)}, s{sSTOFF} offen offset:1024 sc0 sc1"])
    add(fill, 7, [f"buffer_store_dwordx4 {vr(PK[1],4)}, v{vST}, {sr(sWS,4)}, s{sT2} offen offset:2048 sc0 sc1"])
    add(fill, 8, [f"buffer_store_dwordx4 {vr(PK[1]+4,4)}, v{vST}, {sr(sWS,4)}, s{sT2} offen offset:3072 sc0 sc1"])
    add(fill, 47, [f"s_mov_b32 s{sT2}, s{sSTOFF}", f"s_add_u32 s{sSTOFF}, s{sSTOFF}, 4096",
                   f"s_add_u32 s{sG}, s{sG}, 1", f"s_cmp_lt_u32 s{sG}, 9"])
    e(".p2align 6")
    lab("Lp2")
    gemm_body(2, lambda s: ar(H + 4 * s, 4), fill)
    e("s_cbranch_scc1 Lp2")
    e("s_nop 7")
    e("s_nop 3")
    for i in range(8):
        e(f"v_cvt_pk_bf16_f32 v{PK[1]+i}, v{ACC[1]+2*i}, v{ACC[1]+2*i+1}")
    e(f"buffer_store_dwordx4 {vr(PK[1],4)}, v{vST}, {sr(sWS,4)}, s{sT2} offen offset:2048 sc0 sc1")
    e(f"buffer_store_dwordx4 {vr(PK[1]+4,4)}, v{vST}, {sr(sWS,4)}, s{sT2} offen offset:3072 sc0 sc1")
    e("s_endpgm")
    attention()
    lab("Lend1")
    e("s_endpgm")

def wo_stage(j):
    o = []
    for p in range(5):
        o.append(f"s_add_u32 m0, s{sCUR}, {(j % 6) * SLOT + p * 1024}")
        o.append(f"s_add_u32 s{sT1}, s{sT3}, {p * 8 * 1152 + j * 128}")
        o.append(f"buffer_load_dwordx4 v{vDOFF2}, {sr(sSRD,4)}, s{sT1} offen lds")
    return o

def attention():
    lab("Latt")
    c("q tail: group 6 -> packed idx 96..111 stay in PK (v80..v{vBASE_G2} clobbers v{vBASE_AG2}..95!) -> save bases first")
    Q = 16
    for i in range(24): e(f"v_accvgpr_read_b32 v{Q+i}, a{H+72+i}")
    for i in range(12): e(f"v_mov_b32 v{Q+24+i}, v{PK[0]+i}")
    e("s_waitcnt vmcnt(0) lgkmcnt(0)")
    e("s_barrier")
    c("Wo stages 0..2")
    e(f"s_mul_i32 s{sCUR}, s{sWAVE}, 5120")
    e(f"s_sub_u32 s{sT3}, s{sJOB}, 12")
    e(f"s_mul_i32 s{sT3}, s{sT3}, {144*1152}")
    for j in range(3): emit_list(wo_stage(j))
    c("write k,v to LDS")
    kva = vT
    e(f"s_lshl_b32 s{sT0}, s{sWAVE}, 5")
    e(f"s_add_u32 s{sT0}, s{sT0}, 16")
    e(f"v_add_u32 v{kva}, s{sT0}, v{vM}")
    e(f"v_mul_u32_u24 v{kva}, {KVSTR}, v{kva}")
    e(f"v_mul_u32_u24 v{kva+1}, 288, v{vHH}")
    e(f"v_add3_u32 v{kva}, v{kva}, v{kva+1}, 0")
    e(f"v_add_u32 v{kva}, {KVBASE}, v{kva}")
    for u in range(18):
        e(f"ds_write_b128 v{kva}, {ar(H+4*u,4)} offset:{16*u}")
    c("halo (wave 0)")
    e(f"s_cmp_eq_u32 s{sWAVE}, 0")
    e("s_cbranch_scc0 Lhalo_done")
    HB = 112
    e(f"v_and_b32 v{kva+2}, 15, v{vM}")
    e(f"v_lshrrev_b32 v{kva+3}, 4, v{vM}")
    e(f"v_mul_u32_u24 v{kva+3}, 144, v{kva+3}")
    e(f"v_add_u32 v{kva+3}, v{kva+3}, v{kva+1}")
    e(f"v_mul_u32_u24 v{kva+4}, 576, v{kva+2}")
    e(f"v_add_u32 v{kva+4}, v{kva+4}, v{kva+3}")
    e(f"v_mul_u32_u24 v{kva+5}, {KVSTR}, v{kva+2}")
    e(f"v_add_u32 v{kva+5}, v{kva+5}, v{kva+3}")
    e(f"v_add_u32 v{kva+5}, {KVBASE}, v{kva+5}")
    for i in range(36): e(f"v_mov_b32 v{HB+i}, 0")
    e(f"s_cmp_eq_u32 s{sRB}, 0")
    e("s_cbranch_scc1 Lhalo_wr")
    e(f"s_lshl_b32 s{sT0}, s{sRB}, 2")
    e(f"s_add_u32 s{sT0}, s{sT0}, s{sJOB}")
    e(f"s_sub_u32 s{sT0}, s{sT0}, 16")
    e(f"s_lshl_b32 s{sT1}, s{sT0}, 2")
    e(f"v_mov_b32 v{kva+6}, 0")
    lab("Lpoll")
    e(f"buffer_load_dword v{kva+7}, v{kva+6}, {sr(sDBG,4)}, s{sT1} offen sc0 sc1")
    e("s_waitcnt vmcnt(0)")
    e(f"v_readfirstlane_b32 s{sT2}, v{kva+7}")
    e("s_nop 3")
    e(f"s_cmp_eq_u32 s{sT2}, 0")
    e("s_cbranch_scc0 Lpoll_ok")
    e("s_sleep 2")
    e("s_branch Lpoll")
    lab("Lpoll_ok")
    e(f"s_mul_i32 s{sT0}, s{sT0}, 9216")
    e(f"s_add_u32 s{sT0}, s{sT0}, {HALO_OFF}")
    for i in range(9):
        e(f"buffer_load_dwordx4 {vr(HB+4*i,4)}, v{kva+4}, {sr(sWS,4)}, s{sT0} offen offset:{16*i} sc0 sc1")
    e("s_waitcnt vmcnt(0)")
    lab("Lhalo_wr")
    for i in range(9):
        e(f"ds_write_b128 v{kva+5}, {vr(HB+4*i,4)} offset:{16*i}")
    lab("Lhalo_done")
    e("s_waitcnt lgkmcnt(0)")
    e("s_barrier")
    c("QK^T")
    LG = 52
    KB = [112, 148]
    e(f"v_subrev_u32 v{kva}, {14*KVSTR}, v{kva}")
    for i in range(32): e(f"v_mov_b32 v{LG+i}, 0")
    def rd(w, buf, voff):
        for i in range(9):
            e(f"ds_read_b128 {vr(KB[buf]+4*i,4)}, v{kva} offset:{(14-2*w)*KVSTR + voff + 16*i}")
    rd(0, 0, 0)
    for w in range(8):
        if w < 7: rd(w + 1, (w + 1) % 2, 0)
        else: rd(0, 0, 144)
        e("s_waitcnt lgkmcnt(9)")
        b = KB[w % 2]
        for i in range(9):
            for h in range(4):
                e(f"v_dot2c_f32_bf16 v{LG+8*h+w}, v{Q+9*h+i}, v{b+9*h+i}")
    c("mask + softmax")
    e(f"s_lshl_b32 s{sT0}, s{sRB}, 7")
    e(f"s_lshl_b32 s{sT1}, s{sWAVE}, 5")
    e(f"s_add_u32 s{sT0}, s{sT0}, s{sT1}")
    e(f"v_add_u32 v{kva+2}, s{sT0}, v{vM}")
    e(f"v_mov_b32 v{kva+3}, 0xce6e6b28")
    sc = (18 ** -0.5)
    for i in range(32):
        emit_list(round_bf16(LG+i, kva+4+(i % 4)))
    import struct
    for i in range(32):
        e(f"v_mul_f32 v{LG+i}, {sc:.9e}, v{LG+i}")
    for i in range(32):
        emit_list(round_bf16(LG+i, kva+4+(i % 4)))
    for w in range(1, 8):
        e(f"v_cmp_le_u32 vcc, {2*w}, v{kva+2}")
        e("s_nop 1")
        for h in range(4):
            e(f"v_cndmask_b32 v{LG+8*h+w}, v{kva+3}, v{LG+8*h+w}, vcc")
    MX = kva + 4
    for h in range(4):
        b = LG + 8 * h
        e(f"v_max3_f32 v{MX+h}, v{b}, v{b+1}, v{b+2}")
        e(f"v_max3_f32 v{MX+h}, v{MX+h}, v{b+3}, v{b+4}")
        e(f"v_max3_f32 v{MX+h}, v{MX+h}, v{b+5}, v{b+6}")
        e(f"v_max_f32 v{MX+h}, v{MX+h}, v{b+7}")
    for h in range(4):
        for w in range(8):
            e(f"v_sub_f32 v{LG+8*h+w}, v{LG+8*h+w}, v{MX+h}")
    for i in range(32): e(f"v_mul_f32 v{LG+i}, 0x3fb8aa3b, v{LG+i}")
    for i in range(32): e(f"v_exp_f32 v{LG+i}, v{LG+i}")
    e("s_nop 0")
    for h in range(4):
        b = LG + 8 * h
        e(f"v_add_f32 v{MX+h}, v{b}, v{b+1}")
    for w in range(2, 8):
        for h in range(4):
            e(f"v_add_f32 v{MX+h}, v{MX+h}, v{LG+8*h+w}")
    for h in range(4): e(f"v_rcp_f32 v{MX+h}, v{MX+h}")
    e("s_nop 0")
    for h in range(4):
        for w in range(8):
            e(f"v_mul_f32 v{LG+8*h+w}, v{LG+8*h+w}, v{MX+h}")
    PLO, PHI = LG, 16
    for i in range(32):
        e(f"v_cvt_pk_bf16_f32 v{PLO+i}, v{LG+i}, 0")
    for i in range(32):
        e(f"v_lshlrev_b32 v{PHI+i}, 16, v{PLO+i}")
    O = 184
    for i in range(72): e(f"v_mov_b32 v{O+i}, 0")
    c("PV")
    for w in range(8):
        if w < 7:
            rd(w + 1, (w + 1) % 2, 144)
            e("s_waitcnt lgkmcnt(9)")
        else:
            e("s_waitcnt lgkmcnt(0)")
        b = KB[w % 2]
        for i in range(36):
            h = i // 9
            e(f"v_dot2c_f32_bf16 v{O+2*i}, v{b+i}, v{PLO+8*h+w}")
            e(f"v_dot2c_f32_bf16 v{O+2*i+1}, v{b+i}, v{PHI+8*h+w}")
    e("s_barrier")
    c("kv area free: Wo stages 3..5")
    for j in range(3, 6): emit_list(wo_stage(j))
    OP = 112
    for i in range(36):
        e(f"v_cvt_pk_bf16_f32 v{OP+i}, v{O+2*i}, v{O+2*i+1}")
    c("gemm2 (attention): 9 stages x 18 slots, unrolled")
    e("s_waitcnt vmcnt(25)")
    e("s_barrier")
    R2, D2 = 9, 5
    AB = 148
    for q in range(6):
        e(f"v_add_u32 v{AB+2*q}, {q*SLOT}, v{vBASE_AG2}")
        e(f"v_xor_b32 v{AB+2*q+1}, 64, v{AB+2*q}")
    n = 9 * 18
    def rds(i):
        j, w = divmod(i, 18)
        t, ks = divmod(w, 9)
        return tr_reads(i % R2, AB + 2 * (j % 6) + t, ks * 1024, 512)
    for i in range(D2): emit_list(rds(i))
    vmq = [("wo", j) for j in range(6) for _ in range(5)]
    fill = {}
    for i in range(n):
        j, w = divmod(i, 18)
        t, ks = divmod(w, 9)
        if i + D2 < n:
            emit_list(rds(i + D2))
            e(f"s_waitcnt lgkmcnt({2*D2})")
        else:
            e(f"s_waitcnt lgkmcnt({2*(n-1-i)})")
        acc = vr(ACC[t], 16)
        e(f"v_mfma_f32_32x32x16_bf16 {acc}, {ar(FR+4*(i%R2),4)}, {vr(OP+4*ks,4)}, {'0' if ks == 0 else acc}")
        if w == 8 and j < 8:
            idx = max(k for k, x in enumerate(vmq) if x == ("wo", j + 1))
            e(f"s_waitcnt vmcnt({len(vmq) - 1 - idx})")
            e("s_barrier")
            if j >= 1 and j + 5 < 9:
                emit_list(wo_stage(j + 5))
                vmq += [("wo", j + 5)] * 5
        if 12 <= w <= 15:
            for i2 in (2 * (w - 12), 2 * (w - 12) + 1):
                e(f"v_cvt_pk_bf16_f32 v{PK[0]+i2}, v{ACC[0]+2*i2}, v{ACC[0]+2*i2+1}")
        if w in (16, 17):
            hf = w - 16
            e(f"s_add_u32 s{sT0}, s{sSTOFF}, {j*4096}")
            e(f"buffer_store_dwordx4 {vr(PK[0]+4*hf,4)}, v{vST}, {sr(sWS,4)}, s{sT0} offen offset:{1024*hf} sc0 sc1")
            vmq.append(("st", 0))
        if j > 0 and 3 <= w <= 6:
            for i2 in (2 * (w - 3), 2 * (w - 3) + 1):
                e(f"v_cvt_pk_bf16_f32 v{PK[1]+i2}, v{ACC[1]+2*i2}, v{ACC[1]+2*i2+1}")
        if j > 0 and w == 7:
            e(f"s_add_u32 s{sT0}, s{sSTOFF}, {(j-1)*4096}")
            for hf in range(2):
                e(f"buffer_store_dwordx4 {vr(PK[1]+4*hf,4)}, v{vST}, {sr(sWS,4)}, s{sT0} offen offset:{2048+1024*hf} sc0 sc1")
                vmq.append(("st", 0))
    e("s_nop 7")
    e("s_nop 3")
    for i2 in range(8):
        e(f"v_cvt_pk_bf16_f32 v{PK[1]+i2}, v{ACC[1]+2*i2}, v{ACC[1]+2*i2+1}")
    e(f"s_add_u32 s{sT0}, s{sSTOFF}, {8*4096}")
    for hf in range(2):
        e(f"buffer_store_dwordx4 {vr(PK[1]+4*hf,4)}, v{vST}, {sr(sWS,4)}, s{sT0} offen offset:{2048+1024*hf} sc0 sc1")
    e("s_endpgm")

def k2():
    kn = "k2_kernel"
    L.append(f".globl {kn}\n.p2align 8\n.type {kn},@function")
    lab(kn)
    e("s_cmp_ge_u32 s2, 576")
    e("s_cbranch_scc1 Lend2")
    e("s_load_dwordx2 s[4:5], s[0:1], 0")
    e("s_load_dwordx2 s[6:7], s[0:1], 48")
    e("s_load_dwordx2 s[8:9], s[0:1], 64")
    e("v_lshrrev_b32 v1, 6, v0")
    e("v_and_b32 v2, 63, v0")
    e("v_readfirstlane_b32 s3, v1")
    c("rb = wg/36 ; wv = (wg%36)*4+wave")
    e("s_mul_i32 s10, s2, 1821")
    e("s_lshr_b32 s10, s10, 16")
    e("s_mul_i32 s11, s10, 36")
    e("s_sub_u32 s11, s2, s11")
    e("s_lshl_b32 s11, s11, 2")
    e("s_add_u32 s11, s11, s3")
    e("s_mul_i32 s24, s11, 1821")
    e("s_lshr_b32 s24, s24, 16")
    e("s_mul_i32 s25, s24, 36")
    e("s_sub_u32 s25, s11, s25")
    e("s_and_b32 s26, s25, 1")
    e("s_lshr_b32 s25, s25, 1")
    c("partial offset = rb*16*PCHUNK + wv*1024 + lane*16")
    e(f"s_mul_i32 s27, s10, {16*PCHUNK}")
    e("s_lshl_b32 s28, s11, 10")
    e("s_add_u32 s27, s27, s28")
    e("v_lshlrev_b32 v3, 4, v2")
    c("x/out offset = (128rb+32r+lane%32)*1152 + tile*64 + (lane/32)*32 + half*16")
    e("s_lshl_b32 s28, s10, 7")
    e("s_lshl_b32 s29, s24, 5")
    e("s_add_u32 s28, s28, s29")
    e("s_mul_i32 s28, s28, 1152")
    e("s_lshl_b32 s29, s25, 6")
    e("s_add_u32 s28, s28, s29")
    e("s_lshl_b32 s29, s26, 4")
    e("s_add_u32 s28, s28, s29")
    e("v_and_b32 v4, 31, v2")
    e("v_mul_u32_u24 v4, 1152, v4")
    e("v_lshrrev_b32 v5, 5, v2")
    e("v_lshl_add_u32 v4, v5, 5, v4")
    e("s_mov_b32 s30, 0x00003f80")
    e("s_mov_b32 s31, 0x3f800000")
    e("s_waitcnt lgkmcnt(0)")
    for (s, k, sz) in ((12, 4, 2048*1152), (16, 6, 2048*1152), (20, 8, WS_BYTES)):
        e(f"s_mov_b32 s{s}, s{k}")
        e(f"s_and_b32 s{s+1}, s{k+1}, 0xffff")
        e(f"s_mov_b32 s{s+2}, {sz}")
        e(f"s_mov_b32 s{s+3}, 0x00020000")
    P = 32
    for j in range(16):
        e(f"buffer_load_dwordx4 {vr(P+4*j,4)}, v3, s[20:23], s27 offen")
        if j < 15: e(f"s_add_u32 s27, s27, {PCHUNK}")
    e("buffer_load_dwordx4 v[28:31], v4, s[12:15], s28 offen")
    F, S = 8, 16
    for i in range(16): e(f"v_mov_b32 v{F+i}, 0")
    for j in range(16):
        e(f"s_waitcnt vmcnt({16-j})")
        a = F if j < 12 else S
        for i in range(4):
            e(f"v_dot2c_f32_bf16 v{a+2*i}, s30, v{P+4*j+i}")
            e(f"v_dot2c_f32_bf16 v{a+2*i+1}, s31, v{P+4*j+i}")
    e("s_nop 2")
    T = 32
    c("f,s -> bf16")
    for i in range(8):
        e(f"v_cvt_pk_bf16_f32 v{T+i}, v{F+2*i}, v{F+2*i+1}")
    for i in range(8):
        e(f"v_lshlrev_b32 v{F+2*i}, 16, v{T+i}")
        e(f"v_and_b32 v{F+2*i+1}, 0xffff0000, v{T+i}")
    c("g = silu(f) = f/(1+exp(-f))")
    for i in range(8): e(f"v_mul_f32 v{T+i}, 0xbfb8aa3b, v{F+i}")
    for i in range(8): e(f"v_exp_f32 v{T+i}, v{T+i}")
    for i in range(8): e(f"v_add_f32 v{T+i}, 1.0, v{T+i}")
    for i in range(8): e(f"v_rcp_f32 v{T+i}, v{T+i}")
    for i in range(8): e(f"v_mul_f32 v{F+i}, v{F+i}, v{T+i}")
    for i in range(4): e(f"v_cvt_pk_bf16_f32 v{T+i}, v{F+2*i}, v{F+2*i+1}")
    for i in range(4):
        e(f"v_lshlrev_b32 v{F+2*i}, 16, v{T+i}")
        e(f"v_and_b32 v{F+2*i+1}, 0xffff0000, v{T+i}")
    for i in range(8): e(f"v_mul_f32 v{F+i}, v{F+i}, v{S+i}")
    for i in range(4): e(f"v_cvt_pk_bf16_f32 v{T+i}, v{F+2*i}, v{F+2*i+1}")
    e("s_waitcnt vmcnt(0)")
    for i in range(4):
        e(f"v_lshlrev_b32 v{F+2*i}, 16, v{T+i}")
        e(f"v_and_b32 v{F+2*i+1}, 0xffff0000, v{T+i}")
        e(f"v_lshlrev_b32 v{S+2*i}, 16, v{28+i}")
        e(f"v_and_b32 v{S+2*i+1}, 0xffff0000, v{28+i}")
    for i in range(8): e(f"v_add_f32 v{F+i}, v{F+i}, v{S+i}")
    for i in range(4): e(f"v_cvt_pk_bf16_f32 v{T+i}, v{F+2*i}, v{F+2*i+1}")
    e(f"buffer_store_dwordx4 {vr(T,4)}, v4, s[16:19], s28 offen")
    lab("Lend2")
    e("s_endpgm")

def desc(kn, vg, acc, sg):
    return f""".amdhsa_kernel {kn}
  .amdhsa_next_free_vgpr {vg}
  .amdhsa_next_free_sgpr {sg}
  .amdhsa_accum_offset {acc}
  .amdhsa_group_segment_fixed_size 0
  .amdhsa_kernarg_size 72
  .amdhsa_user_sgpr_count 2
  .amdhsa_user_sgpr_kernarg_segment_ptr 1
  .amdhsa_system_sgpr_workgroup_id_x 1
.end_amdhsa_kernel
"""

def main(out):
    hdr = open(f"cdna_kernels/{NAME}.s.ref").read().split("; Override")[0]
    L.append(hdr.rstrip("\n"))
    L.append("; @launch kernel=k1_kernel grid=(256,1,1) block=(256,1,1) lds=163840")
    L.append("; @launch kernel=k2_kernel grid=(576,1,1) block=(256,1,1) lds=0")
    L.append('.amdgcn_target "amdgcn-amd-amdhsa--gfx950"')
    L.append(".text")
    k1()
    k2()
    L.append('.section .rodata,"a"')
    L.append(".p2align 6")
    L.append(desc("k1_kernel", 512, 256, 102))
    L.append(".p2align 6")
    L.append(desc("k2_kernel", 96, 96, 40))
    open(out, "w").write("\n".join(L) + "\n")

if __name__ == "__main__":
    main(sys.argv[1] if len(sys.argv) > 1 else f"cdna_kernels/{NAME}.s")
```

```python
import sys
NAME = "recurrent_scan__sliding_local_dilated__dense_activation_relu__prompt"
L = []
def e(s): L.append("    " + s)
def lab(s): L.append(s + ":")
def c(s): L.append("    ; " + s)

SLOT = 24576
NSLOT = 6
KVBASE = 73728
KVSTR = 592
PCHUNK = 147456
HALO_OFF = 256 * PCHUNK
WS_BYTES = HALO_OFF + 64 * 9216
D = 6
R = 8

XN_OFF = WS_BYTES
WS_BYTES += 2048 * 1152
WCOPY = 4
vTID, vLANE, vM, vHH = 0, 1, 2, 3
vA01, vB01, vA2, vB2, vMASKA, vWO = 4, 5, 6, 7, 8, 9
vRSTD, vST, vCI, vCUR, vBASE_G2, vBASE_AG2 = 10, 11, 12, 13, 14, 15
ACC = [16, 32]
PK = [48, 56]
vD, vD2 = 64, 70
vS = 76
H = 80
vT = 96
U = 80
X = 112
NXA = 36
XA = 64
FR = 0
sSRD, sX, sWS, sDBG = 4, 8, 12, 16
sWAVE, sRB, sJOB, sATT = 20, 21, 22, 23
sSOFF, sINC = 24, 25
sMB0, sMB1, sRD, sG, sIDX = 28, 29, 30, 31, 32
sONES, sSELLO, sSELHI = 41, 42, 43
sT0, sT1, sT2, sT3 = 54, 55, 56, 57
sSTOFF, sW6K, sCUR = 58, 59, 60
sK = 64
sEX = 84
kx, kqkv, kwo, kw1, kw2, kdbg, kws = sK, sK+2, sK+4, sK+8, sK+10, sK+14, sK+16
TOG = 0x12000
def xop(s_): return f"a[{XA+4*s_}:{XA+4*s_+3}]" if s_ < NXA else f"v[{X+4*s_}:{X+4*s_+3}]"
import os
PROF = os.environ.get("PROF", "0") == "1"
if PROF: WS_BYTES = 128 << 20
def stamp(i, real=False):
    if not PROF: return
    e(("s_memrealtime" if real else "s_memtime") + " s[86:87]")
    e("s_waitcnt lgkmcnt(0)")
    e(f"s_mov_b32 s{88+i}, s86")
def prof_out():
    if not PROF: return
    stamp(1, True)
    e(f"s_lshl_b32 s86, s2, 2")
    e(f"s_add_u32 s86, s86, s{sWAVE}")
    e(f"s_lshl_b32 s86, s86, 7")
    e(f"s_add_u32 s86, s86, {64<<20}")
    e("v_mov_b32 v1, 0")
    e("v_mov_b32 v3, 0")
    e("v_cmp_eq_u32 vcc, 0, v0")
    e("v_and_b32 v0, 63, v0")
    e("v_cmp_eq_u32 vcc, 0, v0")
    e(f"s_and_saveexec_b64 {sr(sEX,2)}, vcc")
    for i in range(12):
        e(f"v_mov_b32 v2, s{88+i}")
        e(f"buffer_store_dwordx2 v[2:3], v1, {sr(sWS,4)}, s86 offen offset:{8*i}")
        e("s_nop 1")
    e("s_waitcnt vmcnt(0)")
NOW = os.environ.get("NOW", "0") == "1"
NOST = os.environ.get("NOST", "0") == "1"
NODMA = os.environ.get("NODMA", "0") == "1"
NORD = os.environ.get("NORD", "0") == "1"
LIN = os.environ.get("LIN", "0") == "1"
NOPF = os.environ.get("NOPF", "0") == "1"
sPF = 44
sPF2, sPFO, sPFO2 = 48, 52, 53
vPF, vPF2 = 70, 71
def pf_srd(k, sz, r=sPF):
    e(f"s_mov_b32 s{r}, s{k}")
    e(f"s_and_b32 s{r+1}, s{k+1}, 0xffff")
    e(f"s_mov_b32 s{r+2}, {0 if (NOW or NOPF) else sz}")
    e(f"s_mov_b32 s{r+3}, 0x00020000")
uid = [0]
def newlab(p):
    uid[0] += 1
    return f"L{p}_{uid[0]}"

def vr(b, n): return f"v[{b}:{b+n-1}]"
def ar(b, n): return f"a[{b}:{b+n-1}]"
def sr(b, n): return f"s[{b}:{b+n-1}]"

IMM = [0, 1024, 2048, 3072, 0, 1024]
def dma_ld(p):
    if NODMA: return []
    return [f"buffer_load_dwordx4 v{vD+p}, {sr(sSRD,4)}, s{sSOFF} offen offset:{IMM[p]} lds"]
def att_delta():
    return [
        f"v_add_u32 v{vCI}, 4, v{vCI}",
        f"v_subrev_u32 v{vS}, 27, v{vCI}",
        f"v_min_u32 v{vCI}, v{vCI}, v{vS}",
        f"v_mul_u32_u24 v{vS}, 57, v{vCI}",
        f"v_lshrrev_b32 v{vS}, 9, v{vS}",
        f"v_mul_u32_u24 v{vS}, 864, v{vS}",
        f"v_lshl_add_u32 v{vS+1}, v{vCI}, 5, v{vS}",
        f"v_sub_u32 v{vS}, v{vS+1}, v{vCUR}",
        f"v_mov_b32 v{vCUR}, v{vS+1}",
    ]

def emit_list(lst):
    for s in lst:
        if s.endswith(":"): L.append(s)
        else: e(s)

def tr_reads(fr, addr, off, second):
    if NORD: return []
    return [f"ds_read_b64_tr_b16 {ar(FR+4*fr,2)}, v{addr} offset:{off}",
            f"ds_read_b64_tr_b16 {ar(FR+4*fr+2,2)}, v{addr} offset:{off+second}"]

def round_bf16(v, tmp):
    return [f"v_cvt_pk_bf16_f32 v{tmp}, v{v}, v{v}", f"v_lshlrev_b32 v{v}, 16, v{tmp}"]

def gemm_body(nst, bop, fill, raddr):
    n = 24 * nst
    for i in range(n):
        st, w = divmod(i, 24)
        tile, ks = divmod(w, 12)
        j = (i + D) % n
        st2, w2 = divmod(j, 24)
        t2, ks2 = divmod(w2, 12)
        a, off = raddr(st2, t2)
        emit_list(tr_reads((i + D) % R, a, off + ks2 * 2048, 512))
        if i % 2 == 0: e(f"s_waitcnt lgkmcnt({2*D-2})")
        acc = vr(ACC[tile], 16)
        cc = "0" if (st == 0 and ks == 0) else acc
        e(f"v_mfma_f32_32x32x16_bf16 {acc}, {ar(FR+4*(i%R),4)}, {bop(12*st+ks)}, {cc}")
        emit_list(fill.get(i, []))

def add(fill, slot, ins):
    fill.setdefault(slot, []).extend(ins)

class Sched:
    def __init__(self, n):
        self.n = n; self.fill = {}; self.load = [0] * n
    def cap(self, i): return 3 if i % 2 == 0 else 2
    def put(self, slot, ins, cost=None):
        slot %= self.n
        add(self.fill, slot, ins)
        self.load[slot] += len(ins) if cost is None else cost
    def seq(self, lo, hi, groups):
        over = 0
        while True:
            ld = list(self.load); pos = []; i = lo; ok = True
            for g in groups:
                while i <= hi and ld[i % self.n] + len(g) > self.cap(i) + over and ld[i % self.n] > 0: i += 1
                if i > hi: ok = False; break
                pos.append(i); ld[i % self.n] += len(g)
            if ok: break
            over += 1
        for g, i in zip(groups, pos): self.put(i, g)
        return pos[-1]
    def vmwait(self, bar_slot, p5_slot_back):
        cnt = 0
        for a in range(p5_slot_back + 1, bar_slot + 1):
            cnt += sum(1 for x in self.fill.get(a % self.n, []) if x.startswith("buffer_"))
        return cnt

BAR = 9
def bars(S, nst, w, tag=None):
    for st in range(nst):
        b = 24 * st
        n = S.vmwait(b + BAR, b - 72 + BAR + 1 + w + 20 - 24)
        if NODMA: n = 63
        if tag and st == 0:
            S.put(b + BAR, [f"s_cmp_eq_u32 s{sG}, 0", f"s_cbranch_scc1 Lw0_{tag}", f"s_waitcnt vmcnt({n})", f"Lw0r_{tag}:", "s_barrier"], cost=4)
            RARE0.extend([f"Lw0_{tag}:", f"s_waitcnt vmcnt({min(63, n + 12)})", f"s_branch Lw0r_{tag}"])
        else:
            S.put(b + BAR, [f"s_waitcnt vmcnt({n})", "s_barrier"])
RARE0 = []

RARE = []
def phase1(att, w):
    tag = f"{'a' if att else 'f'}{w}"
    S = Sched(72)
    for st in range(3):
        b = 24 * st
        for p in range(6):
            sl = b + BAR + 1 + w + 4 * p
            if p in (0, 4):
                r, k = [(sMB1, 2 * SLOT), (sMB0, 0), (sMB0, SLOT)][st]
                if sl - 1 >= 72: r = sMB1 if r == sMB0 else sMB0
                S.put(sl - 1, [f"s_add_u32 m0, s{r}, {k + w*6144 + (4096 if p == 4 else 0)}"])
            S.put(sl, dma_ld(p), cost=3)
        S.put(b + BAR + 1 + w + 21, [f"s_add_u32 s{sSOFF}, s{sSOFF}, s{sINC+st}"])
    bars(S, 3, w, tag)
    S.seq(36, 60, [[f"v_xor_b32 v{vA01}, v{vMASKA}, v{vA01}"]])
    S.seq(42, 70, [[f"v_xor_b32 v{vB01}, {TOG}, v{vB01}"]])
    S.seq(54, 71, [[f"v_xor_b32 v{vA2}, {TOG}, v{vA2}"]])
    S.seq(66, 71, [[f"v_xor_b32 v{vB2}, {TOG}, v{vB2}"]])
    S.put(71, [f"s_xor_b32 s{sMB0}, s{sMB0}, {TOG}", f"s_xor_b32 s{sMB1}, s{sMB1}, {TOG}",
               f"s_add_u32 s{sG}, s{sG}, 1", f"s_cmp_lt_u32 s{sG}, {7 if att else 6}"])
    sw = 32 + w
    if att:
        S.put(sw, [f"s_cmp_ge_u32 s{sG}, 5", f"s_cselect_b32 s{sSRD+2}, 0, s{sSRD+2}"])
        dl = att_delta()
        S.seq(12, 28, [[x] for x in dl])
        for p in range(6):
            lo = BAR + 1 + w + 4 * p + 1
            S.seq(max(lo, 29), 24 + BAR + w + 4 * p, [[f"v_add_u32 v{vD+p}, v{vD+p}, v{vS}"]])
    else:
        S.put(sw, [f"s_cmp_ge_u32 s{sG}, 4", f"s_cbranch_scc1 Lsw_{tag}", f"Lswr_{tag}:"], cost=2)
        r = [f"Lsw_{tag}:", f"s_cmp_eq_u32 s{sG}, 4", f"s_cbranch_scc0 Lsw5_{tag}",
             f"s_mov_b32 s{sSRD}, s{kw2}", f"s_and_b32 s{sSRD+1}, s{kw2+1}, 0xffff",
             f"s_mov_b32 s{sSRD+2}, {0 if NOW else 4608*1152}", f"s_mul_i32 s{sSOFF}, s{sJOB}, {384*1152}",
             f"s_mov_b32 s{sINC}, {192*1152}", f"s_mov_b32 s{sINC+1}, {192*1152}", f"s_mov_b32 s{sINC+2}, {(128-192*1152) & 0xffffffff}"]
        r += [f"v_mov_b32 v{vD+p}, v{vD2+p}" for p in range(6)]
        r += [f"s_branch Lswr_{tag}", f"Lsw5_{tag}:",
              f"s_mov_b32 s{sINC+2}, {192*1152}", f"s_mov_b32 s{sINC+1}, {(128-192*1152) & 0xffffffff}",
              f"v_xor_b32 v{vMASKA}, v{vA01}, v{vBASE_G2}", f"s_branch Lswr_{tag}"]
        RARE.extend(r)
    def idxblk(tile):
        o = [f"s_set_gpr_idx_on s{sIDX}, 0x8", "s_nop 0"]
        for i in range(8):
            if att: o.append(f"v_cvt_pk_bf16_f32 v{H+8*tile+i}, v{ACC[tile]+2*i}, v{ACC[tile]+2*i+1}")
            else: o.append(f"v_pk_max_i16 v{H+8*tile+i}, v{PK[tile]+i}, 0")
        o.append("s_set_gpr_idx_off")
        return o
    def pre(slot, ins):
        S.fill[slot % 72] = ins + S.fill.get(slot % 72, []); S.load[slot % 72] += len(ins)
    if att:
        sl = [x for x in (71, 70, 69) if (x - (BAR + 1 + w)) % 4 != 0][0]
        k = SLOT + (4096 if sl >= 48 + BAR + w + 16 else 0)
        pre(sl, idxblk(0) + [f"s_add_u32 m0, s{sMB0}, {k + w*6144}"])
        sl = [x for x in (11, 10) if (x - (BAR + 1 + w)) % 4 != 0][0]
        fix = [f"s_add_u32 m0, s{sMB1}, {2*SLOT + w*6144}"] if sl >= BAR + w else []
        S.put(sl, idxblk(1) + fix + [f"s_add_u32 s{sIDX}, s{sIDX}, s{sIDX+1}", f"s_mov_b32 s{sIDX+1}, 16"])
        if w == 3:
            S.seq(40, 44, [[f"s_cmp_ge_u32 s{sG}, 5", f"s_cbranch_scc1 Lpub", "Lpubr:"]])
    else:
        S.seq(61, 71, [[f"v_cvt_pk_bf16_f32 v{PK[0]+i}, v{ACC[0]+2*i}, v{ACC[0]+2*i+1}"] for i in range(8)])
        S.seq(1, 11, [[f"v_cvt_pk_bf16_f32 v{PK[1]+i}, v{ACC[1]+2*i}, v{ACC[1]+2*i+1}"] for i in range(8)])
        pre(BAR + w + 16, idxblk(0))
        pre(24 + BAR + w + 16, idxblk(1) + [f"s_add_u32 s{sIDX}, s{sIDX}, s{sIDX+1}", f"s_mov_b32 s{sIDX+1}, 16"])
    if tag == "f0": e("s_branch Lp1_f0")
    emit_list(RARE0); RARE0.clear()
    e(".p2align 6")
    lab(f"Lp1_{tag}")
    gemm_body(3, xop, S.fill, lambda st, t: ([vA01, vB01][t], st * SLOT) if st < 2 else ([vA2, vB2][t], 0))
    e(f"s_cbranch_scc1 Lp1_{tag}")

def phase2(w):
    S = Sched(48)
    vA, vB, vB0 = vA01, vB01, vA2
    for st in range(2):
        b = 24 * st
        for p in range(6):
            sl = b + BAR + 1 + w + 4 * p
            if p in (0, 4):
                r, k = [(sMB1, SLOT), (sMB0, 0)][st]
                if sl - 1 >= 48: r = sMB1
                S.put(sl - 1, [f"s_add_u32 m0, s{r}, {k + w*6144 + (4096 if p == 4 else 0)}"])
            S.put(sl, dma_ld(p), cost=3)
        inc = [128 - 192 * 1152, 192 * 1152][st]
        S.put(b + BAR + 1 + w + 21, [f"s_add_u32 s{sSOFF}, s{sSOFF}, {inc & 0xffffffff}"])
    S.put(32 + w, [f"s_cmp_ge_u32 s{sG}, 6", f"s_cselect_b32 s{sSRD+2}, 0, s{sSRD+2}"])
    st_ = lambda r, so, off: [f"buffer_store_dwordx4 {vr(r,4)}, v{vST}, {sr(sWS,4)}, s{so} offen offset:{off} sc0 sc1"]
    d0 = (BAR + 1 + w) % 4
    ssl = lambda lo: [x for x in range(lo, lo + 8) if (x - d0) % 4 == 2]
    a0, a1 = ssl(2); b0, b1 = ssl(14)
    S.put(a0, st_(PK[0], sT2, 0), cost=3); S.put(a1, st_(PK[0] + 4, sT2, 1024), cost=3)
    S.put(b0, st_(PK[1], sT2, 2048), cost=3); S.put(b1, st_(PK[1] + 4, sT2, 3072), cost=3)
    bars(S, 2, w)
    S.seq(37, 47, [[f"v_cvt_pk_bf16_f32 v{PK[0]+i}, v{ACC[0]+2*i}, v{ACC[0]+2*i+1}"] for i in range(8)])
    S.seq(1, 11, [[f"v_cvt_pk_bf16_f32 v{PK[1]+i}, v{ACC[1]+2*i}, v{ACC[1]+2*i+1}"] for i in range(8)])
    S.seq(24, 34, [[f"s_add_u32 s{sRD}, s{sRD}, {2*SLOT}", f"s_cmp_eq_u32 s{sRD}, {6*SLOT}", f"s_cselect_b32 s{sRD}, 0, s{sRD}"]])
    S.seq(35, 40, [[f"v_add_u32 v{vA}, s{sRD}, v{vBASE_G2}"]])
    S.seq(42, 46, [[f"v_add_u32 v{vB}, s{sRD}, v{vB0}"]])
    S.seq(24, 46, [[f"s_mov_b32 s{sT2}, s{sSTOFF}"], [f"s_add_u32 s{sSTOFF}, s{sSTOFF}, 4096"]])
    S.put(47, [f"s_mov_b32 s{sMB1}, s{sMB0}", f"s_mov_b32 s{sMB0}, s{sRD}",
               f"s_add_u32 s{sG}, s{sG}, 1", f"s_cmp_lt_u32 s{sG}, 9"])
    e(".p2align 6")
    lab(f"Lp2_{w}")
    gemm_body(2, lambda s_: vr(H + 4 * s_, 4), S.fill, lambda st, t: ([vA, vB][t], st * SLOT))
    e(f"s_cbranch_scc1 Lp2_{w}")

def k1():
    kn = "k1_kernel"
    L.append(f".globl {kn}\n.p2align 8\n.type {kn},@function")
    lab(kn)
    e("s_cmp_ge_u32 s2, 256")
    e("s_cbranch_scc1 Lend1")
    e(f"s_load_dwordx16 {sr(sK,16)}, s[0:1], 0")
    e(f"s_load_dwordx2 {sr(sK+16,2)}, s[0:1], 64")
    if PROF:
        for i in range(12): e(f"s_mov_b32 s{88+i}, 0")
    stamp(0, True)
    stamp(2)
    c("lane decode")
    e(f"v_and_b32 v{vLANE}, 63, v0")
    e(f"v_lshrrev_b32 v{vT}, 6, v0")
    e(f"v_and_b32 v{vM}, 31, v0")
    e(f"v_readfirstlane_b32 s{sWAVE}, v{vT}")
    e(f"v_bfe_u32 v{vHH}, v0, 5, 1")
    c("wg decode: xcd=wg%8, q=wg/8; jg=xcd%4; i=q%4; rb=(xcd/4)*8+q/4")
    e(f"s_and_b32 s{sT0}, s2, 3")
    e(f"s_bfe_u32 s{sT1}, s2, 0x20003")
    e(f"s_bfe_u32 s{sT2}, s2, 0x10002")
    e(f"s_lshr_b32 s{sT3}, s2, 5")
    e(f"s_lshl_b32 s{sRB}, s{sT2}, 3")
    e(f"s_add_u32 s{sRB}, s{sRB}, s{sT3}")
    e(f"s_mul_i32 s{sJOB}, s{sT0}, 3")
    e(f"s_add_u32 s{sJOB}, s{sJOB}, s{sT1}")
    e(f"s_add_u32 s{sT2}, s{sT0}, 12")
    e(f"s_cmp_eq_u32 s{sT1}, 3")
    e(f"s_cselect_b32 s{sJOB}, s{sT2}, s{sJOB}")
    e(f"s_cselect_b32 s{sATT}, 1, 0")
    e(f"s_mul_i32 s{sW6K}, s{sWAVE}, 6144")
    e(f"s_mov_b32 s{sONES}, 0x3f803f80")
    e(f"s_mov_b32 s{sSELLO}, 0x00003f80")
    e(f"s_mov_b32 s{sSELHI}, 0x3f800000")
    e("s_waitcnt lgkmcnt(0)")
    c("SRDs")
    for (s, k, sz) in ((sWS, kws, WS_BYTES), (sDBG, kdbg, 256)):
        e(f"s_mov_b32 s{s}, s{k}")
        e(f"s_and_b32 s{s+1}, s{k+1}, 0xffff")
        e(f"s_mov_b32 s{s+2}, {sz}")
        e(f"s_mov_b32 s{s+3}, 0x00020000")
    c("tr-read lane bases. g=lane/16: ch=g&1, hh=g>>1; r=(lane%16)/4, cc=lane%4")
    tr, tc, tch, trow, tsw = U+10, U+11, U+12, U+13, U+14
    e(f"v_bfe_u32 v{tr}, v{vLANE}, 2, 2")
    e(f"v_and_b32 v{tc}, 3, v{vLANE}")
    e(f"v_bfe_u32 v{tch}, v{vLANE}, 4, 1")
    e(f"v_lshl_add_u32 v{trow}, v{vHH}, 3, v{tr}")
    e(f"v_lshlrev_b32 v{trow}, 7, v{trow}")
    e(f"v_lshrrev_b32 v{tsw}, 1, v{tr}")
    vCOLP = U + 9
    c(" FFN gemm1: sw*64 + ch*32 + c*8")
    e(f"v_lshl_add_u32 v{vA01}, v{tsw}, 6, v{trow}")
    e(f"v_lshl_add_u32 v{vA01}, v{tch}, 5, v{vA01}")
    e(f"v_lshl_add_u32 v{vA01}, v{tc}, 3, v{vA01}")
    c(" gemm2 mapping: sw*64 + (c%2)*32 + ch*16 + (c/2)*8")
    e(f"v_and_b32 v{U+15}, 1, v{tc}")
    e(f"v_lshlrev_b32 v{vCOLP}, 6, v{tsw}")
    e(f"v_lshl_add_u32 v{vCOLP}, v{U+15}, 5, v{vCOLP}")
    e(f"v_lshl_add_u32 v{vCOLP}, v{tch}, 4, v{vCOLP}")
    e(f"v_lshrrev_b32 v{vT+2}, 1, v{tc}")
    e(f"v_lshl_add_u32 v{vCOLP}, v{vT+2}, 3, v{vCOLP}")
    e(f"v_add_u32 v{vBASE_G2}, v{vCOLP}, v{trow}")
    e(f"v_mul_u32_u24 v{vBASE_AG2}, 72, v{vHH}")
    e(f"v_add_u32 v{vBASE_AG2}, v{vBASE_AG2}, v{tr}")
    e(f"v_lshl_add_u32 v{vBASE_AG2}, v{vBASE_AG2}, 7, v{vCOLP}")
    c("dma lane decode")
    di, dj, dsw = U+10, U+11, U+12
    e(f"v_lshrrev_b32 v{di}, 3, v{vLANE}")
    e(f"v_and_b32 v{dj}, 7, v{vLANE}")
    e(f"v_bfe_u32 v{dsw}, v{di}, 1, 1")
    e(f"v_lshlrev_b32 v{U+13}, 2, v{dsw}")
    e(f"v_xor_b32 v{dj}, v{dj}, v{U+13}")
    e(f"v_lshlrev_b32 v{U+13}, 4, v{dj}")
    e(f"s_mul_i32 s{sT0}, s{sWAVE}, 48")
    e(f"v_add_u32 v{U+14}, s{sT0}, v{di}")
    e(f"v_mov_b32 v{vWO}, 0")
    for p_ in range(6): e(f"v_mov_b32 v{vD2+p_}, 0")
    e(f"s_cmp_eq_u32 s{sATT}, 1")
    e("s_cbranch_scc1 Lsetup_att")
    c("---- FFN setup")
    e(f"v_mul_u32_u24 v{U+14}, 9216, v{U+14}")
    e(f"v_add_u32 v{vD}, v{U+14}, v{U+13}")
    for p_ in range(1, 6): e(f"v_add_u32 v{vD+p_}, {p_*8*9216 - IMM[p_]}, v{vD}")
    c(" W2: row = 48w + 8*(i/4) + i%4")
    e(f"v_lshrrev_b32 v{U+14}, 2, v{di}")
    e(f"v_and_b32 v{U+15}, 3, v{di}")
    e(f"v_lshl_add_u32 v{U+14}, v{U+14}, 3, v{U+15}")
    e(f"v_add_u32 v{U+14}, s{sT0}, v{U+14}")
    e(f"v_mul_u32_u24 v{U+14}, 1152, v{U+14}")
    e(f"v_add_u32 v{vD2}, v{U+14}, v{U+13}")
    for p_ in range(1, 6): e(f"v_add_u32 v{vD2+p_}, {((p_//2)*16 + (p_%2)*4)*1152 - IMM[p_]}, v{vD2}")
    e(f"s_mov_b32 s{sSRD}, s{kw1}")
    e(f"s_and_b32 s{sSRD+1}, s{kw1+1}, 0xffff")
    e(f"s_mov_b32 s{sSRD+2}, {576*9216}")
    e(f"s_mul_i32 s{sSOFF}, s{sJOB}, 768")
    e(f"s_mov_b32 s{sINC}, {(128 - 2*192*9216) & 0xffffffff}")
    e(f"s_mov_b32 s{sINC+1}, {192*9216}")
    e(f"s_mov_b32 s{sINC+2}, {192*9216}")
    e(f"v_mov_b32 v{vS}, 0")
    e("s_branch Lsetup_done")
    lab("Lsetup_att")
    c("---- attention setup: ci = 9 + j/2 ; base = row*3456 + 16*(j%2) + 32*ci + 864")
    e(f"v_mov_b32 v{vA01}, v{vBASE_G2}")
    e(f"v_lshrrev_b32 v{U+15}, 1, v{dj}")
    e(f"v_add_u32 v{vCI}, 9, v{U+15}")
    e(f"v_lshlrev_b32 v{vCUR}, 5, v{vCI}")
    e(f"v_add_u32 v{vCUR}, 864, v{vCUR}")
    e(f"v_mul_u32_u24 v{U+14}, 3456, v{U+14}")
    e(f"v_add3_u32 v{vD}, v{U+14}, v{U+13}, 0")
    e(f"v_add_u32 v{vD}, 1152, v{vD}")
    for p_ in range(1, 6): e(f"v_add_u32 v{vD+p_}, {p_*8*3456 - IMM[p_]}, v{vD}")
    c(" Wo dma voffset: row=40w+i natural")
    e(f"s_mul_i32 s{sT1}, s{sWAVE}, 40")
    e(f"v_add_u32 v{U+14}, s{sT1}, v{di}")
    e(f"v_mul_u32_u24 v{U+14}, 1152, v{U+14}")
    e(f"v_add_u32 v{vWO}, v{U+14}, v{U+13}")
    e(f"s_mov_b32 s{sSRD}, s{kqkv}")
    e(f"s_and_b32 s{sSRD+1}, s{kqkv+1}, 0xffff")
    e(f"s_mov_b32 s{sSRD+2}, {576*3456}")
    e(f"s_sub_u32 s{sT1}, s{sJOB}, 12")
    e(f"s_mul_i32 s{sSOFF}, s{sT1}, 288")
    e(f"s_mov_b32 s{sINC}, {(- 2*192*3456) & 0xffffffff}")
    e(f"s_mov_b32 s{sINC+1}, {192*3456}")
    e(f"s_mov_b32 s{sINC+2}, {192*3456}")
    emit_list(att_delta())
    lab("Lsetup_done")
    e(f"s_mov_b32 s{sSRD+3}, 0x00020000")
    if NOW: e(f"s_mov_b32 s{sSRD+2}, 0")
    e(f"s_mov_b32 s{sMB0}, 0")
    e(f"s_mov_b32 s{sMB1}, {TOG}")
    e(f"s_mov_b32 s{sG}, 0")
    e(f"s_mov_b32 s{sIDX}, 0")
    e(f"s_mov_b32 s{sIDX+1}, 0")
    e(f"v_xor_b32 v{vB01}, 64, v{vA01}")
    e(f"v_add_u32 v{vA2}, {2*SLOT}, v{vA01}")
    e(f"v_add_u32 v{vB2}, {2*SLOT}, v{vB01}")
    e(f"v_mov_b32 v{vMASKA}, {TOG}")
    c("partial store: voffset = lane*16 ; soffset base = ((rb*16+job)*4+wave)*36864")
    e(f"v_lshlrev_b32 v{vST}, 4, v{vLANE}")
    e(f"s_lshl_b32 s{sT0}, s{sRB}, 4")
    e(f"s_add_u32 s{sT0}, s{sT0}, s{sJOB}")
    e(f"s_lshl_b32 s{sT0}, s{sT0}, 2")
    e(f"s_add_u32 s{sT0}, s{sT0}, s{sWAVE}")
    e(f"s_mul_i32 s{sSTOFF}, s{sT0}, 36864")
    if NOST: e(f"s_mov_b32 s{sSTOFF}, 0x40000000")
    stamp(3)
    c("prime ring (stages 0..3 + pieces 0..2 of stage 4) interleaved with xn fragment loads")
    e(f"s_lshl_b32 s{sT0}, s{sRB}, 2")
    e(f"s_add_u32 s{sT0}, s{sT0}, s{sWAVE}")
    e(f"s_mul_i32 s{sT0}, s{sT0}, 36864")
    e(f"s_add_u32 s{sT0}, s{sT0}, {XN_OFF}")
    for t_ in range(5):
        if t_ < 3:
            for s_ in range(12 * t_, 12 * t_ + 12):
                e(f"buffer_load_dwordx4 {xop(s_)}, v{vST}, {sr(sWS,4)}, s{sT0} offen offset:{(s_%4)*1024}")
                if s_ % 4 == 3: e(f"s_add_u32 s{sT0}, s{sT0}, 4096")
        for p_ in range(6 if t_ < 4 else 3):
            if p_ in (0, 4):
                e(f"s_add_u32 m0, s{sW6K}, {t_*SLOT + (4096 if p_ == 4 else 0)}")
                e("s_nop 0")
            emit_list(dma_ld(p_))
            if t_ == 2: e(f"v_add_u32 v{vD+p_}, v{vD+p_}, v{vS}")
        if t_ < 4: e(f"s_add_u32 s{sSOFF}, s{sSOFF}, s{sINC + (0 if t_ == 2 else 1)}")
    stamp(4)
    c("stage 0 + first third of xn landed?")
    e("s_waitcnt vmcnt(45)")
    e("s_barrier")
    stamp(5)
    for i in range(D):
        emit_list(tr_reads(i % R, vA01, i * 2048, 512))
    e(f"s_cmp_lt_u32 s{sWAVE}, 2")
    e("s_cbranch_scc0 Lno3")
    emit_list(dma_ld(3))
    lab("Lno3")
    e(f"s_lshl_b32 s{sT0}, s{sATT}, 2")
    e(f"s_add_u32 s{sT0}, s{sT0}, s{sWAVE}")
    for k_ in range(1, 8):
        e(f"s_cmp_eq_u32 s{sT0}, {k_}")
        e(f"s_cbranch_scc1 Lp1_{'a' if k_ >= 4 else 'f'}{k_ % 4}")
    for w in range(4):
        c(f"================ FFN wave {w}")
        phase1(False, w)
        stamp(6)
        e(f"s_mov_b32 s{sT2}, 0x40000000")
        for i in range(8): e(f"v_pk_max_i16 v{H+80+i}, v{PK[0]+i}, 0")
        for i in range(4):
            e(f"buffer_store_dwordx4 {vr(PK[0],4)}, v{vST}, {sr(sWS,4)}, s{sT2} offen")
        e(f"v_xor_b32 v{vA2}, 64, v{vBASE_G2}")
        e(f"v_xor_b32 v{vB01}, 64, v{vBASE_G2}")
        e(f"s_mov_b32 s{sG}, 0")
        e(f"s_mov_b32 s{sRD}, 0")
        e(f"s_mov_b32 s{sMB0}, 0")
        e(f"s_mov_b32 s{sMB1}, {4*SLOT}")
        e("s_nop 3")
        for i in range(8): e(f"v_cvt_pk_bf16_f32 v{PK[1]+i}, v{ACC[1]+2*i}, v{ACC[1]+2*i+1}")
        for i in range(8): e(f"v_pk_max_i16 v{H+88+i}, v{PK[1]+i}, 0")
        phase2(w)
        if w < 3: e("s_branch Lffn_end")
    lab("Lffn_end")
    st_ = lambda r, off: e(f"buffer_store_dwordx4 {vr(r,4)}, v{vST}, {sr(sWS,4)}, s{sT2} offen offset:{off} sc0 sc1")
    st_(PK[0], 0); st_(PK[0] + 4, 1024)
    e("s_nop 7")
    e("s_nop 3")
    for i in range(8):
        e(f"v_cvt_pk_bf16_f32 v{PK[1]+i}, v{ACC[1]+2*i}, v{ACC[1]+2*i+1}")
    st_(PK[1], 2048); st_(PK[1] + 4, 3072)
    stamp(7)
    if PROF: e("s_waitcnt vmcnt(0)")
    stamp(8)
    prof_out()
    e("s_endpgm")
    emit_list(RARE)
    c("halo publish / flag (attention wave 3)")
    lab("Lpub")
    e(f"s_lshl_b32 s{sT0}, s{sRB}, 2")
    e(f"s_add_u32 s{sT0}, s{sT0}, s{sJOB}")
    e(f"s_sub_u32 s{sT0}, s{sT0}, 12")
    e(f"s_cmp_eq_u32 s{sG}, 5")
    e("s_cbranch_scc0 Lflag")
    e(f"s_mul_i32 s{sT0}, s{sT0}, 9216")
    e(f"s_add_u32 s{sT0}, s{sT0}, {HALO_OFF}")
    e(f"v_and_b32 v{vS+2}, 15, v{vM}")
    e(f"v_mul_u32_u24 v{vS+2}, 576, v{vS+2}")
    e(f"v_lshl_add_u32 v{vS+2}, v{vHH}, 5, v{vS+2}")
    e(f"v_cmp_lt_u32 vcc, 15, v{vM}")
    e(f"s_and_saveexec_b64 {sr(sEX,2)}, vcc")
    for u in range(18):
        e(f"buffer_store_dwordx4 {vr(H+4*u,4)}, v{vS+2}, {sr(sWS,4)}, s{sT0} offen offset:{64*(u//2)+16*(u%2)} sc0 sc1")
    e(f"s_mov_b64 exec, {sr(sEX,2)}")
    e("s_nop 3")
    e("s_branch Lpubr")
    lab("Lflag")
    e("s_waitcnt vmcnt(16)")
    e(f"s_lshl_b32 s{sT0}, s{sT0}, 2")
    e(f"v_mov_b32 v{vS+2}, 0")
    e(f"v_mov_b32 v{vS+3}, 1")
    e(f"v_cmp_eq_u32 vcc, 0, v{vLANE}")
    e(f"s_and_saveexec_b64 {sr(sEX,2)}, vcc")
    e(f"buffer_store_dword v{vS+3}, v{vS+2}, {sr(sDBG,4)}, s{sT0} offen sc0 sc1")
    e(f"s_mov_b64 exec, {sr(sEX,2)}")
    e("s_nop 3")
    e("s_branch Lpubr")
    for w in range(4):
        c(f"================ attention wave {w}")
        phase1(True, w)
        if w < 3: e("s_branch Latt")
    attention()
    lab("Lend1")
    e("s_endpgm")

def wo_stage(j):
    o = []
    for p in range(5):
        o.append(f"s_add_u32 m0, s{sCUR}, {(j % 6) * SLOT + p * 1024}")
        o.append(f"s_add_u32 s{sT1}, s{sT3}, {p * 8 * 1152 + j * 128}")
        o.append(f"buffer_load_dwordx4 v{vWO}, {sr(sSRD,4)}, s{sT1} offen lds")
    return o

def attention():
    lab("Latt")
    stamp(6)
    Q = 16
    QBASE, QSTR = 30720, 336
    e(f"s_mov_b32 s{sSRD}, s{kwo}")
    e(f"s_and_b32 s{sSRD+1}, s{kwo+1}, 0xffff")
    e(f"s_mov_b32 s{sSRD+2}, {0 if NOW else 576*1152}")
    e(f"s_mul_i32 s{sCUR}, s{sWAVE}, 5120")
    e(f"s_sub_u32 s{sT3}, s{sJOB}, 12")
    e(f"s_mul_i32 s{sT3}, s{sT3}, {144*1152}")
    wa = 192
    e(f"s_lshl_b32 s{sT0}, s{sWAVE}, 5")
    e("s_nop 7")
    e(f"v_add_u32 v{wa+2}, s{sT0}, v{vM}")
    e(f"v_mul_u32_u24 v{wa}, {KVSTR}, v{wa+2}")
    e(f"v_add_u32 v{wa}, {KVBASE + 16*KVSTR}, v{wa}")
    e(f"v_lshl_add_u32 v{wa+3}, v{vHH}, 5, v{wa}")
    e(f"v_mul_u32_u24 v{wa+4}, {QSTR}, v{wa+2}")
    e(f"v_add_u32 v{wa+4}, {QBASE}, v{wa+4}")
    e(f"v_lshl_add_u32 v{wa+5}, v{vHH}, 5, v{wa+4}")
    e(f"v_mul_u32_u24 v{wa+1}, 144, v{vHH}")
    e(f"v_add_u32 v{wa}, v{wa}, v{wa+1}")
    e(f"v_add_u32 v{wa+4}, v{wa+4}, v{wa+1}")
    e(f"v_lshlrev_b32 v{wa+1}, 1, v{wa+1}")
    for i in range(8): e(f"v_cvt_pk_bf16_f32 v{H+104+i}, v{ACC[1]+2*i}, v{ACC[1]+2*i+1}")
    e("s_waitcnt vmcnt(0) lgkmcnt(0)")
    e("s_barrier")
    c("Wo stage 0")
    emit_list(wo_stage(0))
    c("write q,k,v to LDS")
    for u in range(10):
        e(f"ds_write_b128 v{wa+5}, {vr(H+72+4*u,4)} offset:{64*(u//2)+16*(u%2)}")
    for u in range(18):
        e(f"ds_write_b128 v{wa+3}, {vr(H+4*u,4)} offset:{64*(u//2)+16*(u%2)}")
    for i in range(9):
        e(f"ds_read_b128 {vr(Q+4*i,4)}, v{wa+4} offset:{16*i}")
    kva = vT
    e("s_waitcnt lgkmcnt(9)")
    e(f"v_mov_b32 v{kva}, v{wa}")
    e(f"v_mov_b32 v{kva+1}, v{wa+1}")
    c("halo (wave 0)")
    e(f"s_cmp_eq_u32 s{sWAVE}, 0")
    e("s_cbranch_scc0 Lhalo_done")
    HB = 112
    e(f"v_and_b32 v{kva+2}, 15, v{vM}")
    e(f"v_lshrrev_b32 v{kva+3}, 4, v{vM}")
    e(f"v_mul_u32_u24 v{kva+3}, 144, v{kva+3}")
    e(f"v_add_u32 v{kva+3}, v{kva+3}, v{kva+1}")
    e(f"v_mul_u32_u24 v{kva+4}, 576, v{kva+2}")
    e(f"v_add_u32 v{kva+4}, v{kva+4}, v{kva+3}")
    e(f"v_mul_u32_u24 v{kva+5}, {KVSTR}, v{kva+2}")
    e(f"v_add_u32 v{kva+5}, v{kva+5}, v{kva+3}")
    e(f"v_add_u32 v{kva+5}, {KVBASE}, v{kva+5}")
    for i in range(36): e(f"v_mov_b32 v{HB+i}, 0")
    e(f"s_cmp_eq_u32 s{sRB}, 0")
    e("s_cbranch_scc1 Lhalo_wr")
    e(f"s_lshl_b32 s{sT0}, s{sRB}, 2")
    e(f"s_add_u32 s{sT0}, s{sT0}, s{sJOB}")
    e(f"s_sub_u32 s{sT0}, s{sT0}, 16")
    e(f"s_lshl_b32 s{sT1}, s{sT0}, 2")
    e(f"v_mov_b32 v{kva+6}, 0")
    lab("Lpoll")
    e(f"buffer_load_dword v{kva+7}, v{kva+6}, {sr(sDBG,4)}, s{sT1} offen sc0 sc1")
    e("s_waitcnt vmcnt(0)")
    e(f"v_readfirstlane_b32 s{sT2}, v{kva+7}")
    e("s_nop 3")
    e(f"s_cmp_eq_u32 s{sT2}, 0")
    e("s_cbranch_scc0 Lpoll_ok")
    e("s_sleep 2")
    e("s_branch Lpoll")
    lab("Lpoll_ok")
    e(f"s_mul_i32 s{sT0}, s{sT0}, 9216")
    e(f"s_add_u32 s{sT0}, s{sT0}, {HALO_OFF}")
    for i in range(9):
        e(f"buffer_load_dwordx4 {vr(HB+4*i,4)}, v{kva+4}, {sr(sWS,4)}, s{sT0} offen offset:{16*i} sc0 sc1")
    e("s_waitcnt vmcnt(0)")
    lab("Lhalo_wr")
    for i in range(9):
        e(f"ds_write_b128 v{kva+5}, {vr(HB+4*i,4)} offset:{16*i}")
    lab("Lhalo_done")
    e("s_waitcnt lgkmcnt(0)")
    e("s_barrier")
    stamp(7)
    for j in range(1, 3): emit_list(wo_stage(j))
    c("QK^T")
    LG = 52
    KB = [112, 148]
    e(f"v_subrev_u32 v{kva}, {14*KVSTR}, v{kva}")
    for i in range(32): e(f"v_mov_b32 v{LG+i}, 0")
    def rd(w, buf, voff):
        for i in range(9):
            e(f"ds_read_b128 {vr(KB[buf]+4*i,4)}, v{kva} offset:{(14-2*w)*KVSTR + voff + 16*i}")
    rd(0, 0, 0)
    for w in range(8):
        if w < 7: rd(w + 1, (w + 1) % 2, 0)
        else: rd(0, 0, 288)
        e("s_waitcnt lgkmcnt(9)")
        b = KB[w % 2]
        for i in range(9):
            for h in range(4):
                e(f"v_dot2c_f32_bf16 v{LG+8*h+w}, v{Q+9*h+i}, v{b+9*h+i}")
    c("mask + softmax")
    e(f"s_lshl_b32 s{sT0}, s{sRB}, 7")
    e(f"s_lshl_b32 s{sT1}, s{sWAVE}, 5")
    e(f"s_add_u32 s{sT0}, s{sT0}, s{sT1}")
    e(f"v_add_u32 v{kva+2}, s{sT0}, v{vM}")
    e(f"v_mov_b32 v{kva+3}, 0xce6e6b28")
    sc = (18 ** -0.5)
    for i in range(32):
        emit_list(round_bf16(LG+i, kva+4+(i % 4)))
    import struct
    for i in range(32):
        e(f"v_mul_f32 v{LG+i}, {sc:.9e}, v{LG+i}")
    for i in range(32):
        emit_list(round_bf16(LG+i, kva+4+(i % 4)))
    for w in range(1, 8):
        e(f"v_cmp_le_u32 vcc, {2*w}, v{kva+2}")
        e("s_nop 1")
        for h in range(4):
            e(f"v_cndmask_b32 v{LG+8*h+w}, v{kva+3}, v{LG+8*h+w}, vcc")
    MX = kva + 4
    for h in range(4):
        b = LG + 8 * h
        e(f"v_max3_f32 v{MX+h}, v{b}, v{b+1}, v{b+2}")
        e(f"v_max3_f32 v{MX+h}, v{MX+h}, v{b+3}, v{b+4}")
        e(f"v_max3_f32 v{MX+h}, v{MX+h}, v{b+5}, v{b+6}")
        e(f"v_max_f32 v{MX+h}, v{MX+h}, v{b+7}")
    for h in range(4):
        for w in range(8):
            e(f"v_sub_f32 v{LG+8*h+w}, v{LG+8*h+w}, v{MX+h}")
    for i in range(32): e(f"v_mul_f32 v{LG+i}, 0x3fb8aa3b, v{LG+i}")
    for i in range(32): e(f"v_exp_f32 v{LG+i}, v{LG+i}")
    e("s_nop 0")
    for h in range(4):
        b = LG + 8 * h
        e(f"v_add_f32 v{MX+h}, v{b}, v{b+1}")
    for w in range(2, 8):
        for h in range(4):
            e(f"v_add_f32 v{MX+h}, v{MX+h}, v{LG+8*h+w}")
    for h in range(4): e(f"v_rcp_f32 v{MX+h}, v{MX+h}")
    e("s_nop 0")
    for h in range(4):
        for w in range(8):
            e(f"v_mul_f32 v{LG+8*h+w}, v{LG+8*h+w}, v{MX+h}")
    PLO, PHI = LG, 16
    for i in range(32):
        e(f"v_cvt_pk_bf16_f32 v{PLO+i}, v{LG+i}, 0")
    for i in range(32):
        e(f"v_lshlrev_b32 v{PHI+i}, 16, v{PLO+i}")
    O = 184
    for i in range(72): e(f"v_mov_b32 v{O+i}, 0")
    c("PV")
    for w in range(8):
        if w < 7:
            rd(w + 1, (w + 1) % 2, 288)
            e("s_waitcnt lgkmcnt(9)")
        else:
            e("s_waitcnt lgkmcnt(0)")
        b = KB[w % 2]
        for i in range(36):
            h = i // 9
            e(f"v_dot2c_f32_bf16 v{O+2*i}, v{b+i}, v{PLO+8*h+w}")
            e(f"v_dot2c_f32_bf16 v{O+2*i+1}, v{b+i}, v{PHI+8*h+w}")
    e("s_barrier")
    stamp(8)
    c("kv area free: Wo stages 3..5")
    for j in range(3, 6): emit_list(wo_stage(j))
    OP = 112
    for i in range(36):
        e(f"v_cvt_pk_bf16_f32 v{OP+i}, v{O+2*i}, v{O+2*i+1}")
    c("gemm2 (attention): 9 stages x 18 slots, unrolled")
    e("s_waitcnt vmcnt(25)")
    e("s_barrier")
    R2, D2 = 9, 5
    AB = 148
    for q in range(6):
        e(f"v_add_u32 v{AB+2*q}, {q*SLOT}, v{vBASE_AG2}")
        e(f"v_xor_b32 v{AB+2*q+1}, 64, v{AB+2*q}")
    n = 9 * 18
    def rds(i):
        j, w = divmod(i, 18)
        t, ks = divmod(w, 9)
        return tr_reads(i % R2, AB + 2 * (j % 6) + t, ks * 1024, 512)
    for i in range(D2): emit_list(rds(i))
    vmq = [("wo", j) for j in range(6) for _ in range(5)]
    fill = {}
    for i in range(n):
        j, w = divmod(i, 18)
        t, ks = divmod(w, 9)
        if i + D2 < n:
            emit_list(rds(i + D2))
            e(f"s_waitcnt lgkmcnt({2*D2})")
        else:
            e(f"s_waitcnt lgkmcnt({2*(n-1-i)})")
        acc = vr(ACC[t], 16)
        e(f"v_mfma_f32_32x32x16_bf16 {acc}, {ar(FR+4*(i%R2),4)}, {vr(OP+4*ks,4)}, {'0' if ks == 0 else acc}")
        if w == 8 and j < 8:
            idx = max(k for k, x in enumerate(vmq) if x == ("wo", j + 1))
            e(f"s_waitcnt vmcnt({len(vmq) - 1 - idx})")
            e("s_barrier")
            if j >= 1 and j + 5 < 9:
                emit_list(wo_stage(j + 5))
                vmq += [("wo", j + 5)] * 5
        if 12 <= w <= 15:
            for i2 in (2 * (w - 12), 2 * (w - 12) + 1):
                e(f"v_cvt_pk_bf16_f32 v{PK[0]+i2}, v{ACC[0]+2*i2}, v{ACC[0]+2*i2+1}")
        if w in (16, 17):
            hf = w - 16
            e(f"s_add_u32 s{sT0}, s{sSTOFF}, {j*4096}")
            e(f"buffer_store_dwordx4 {vr(PK[0]+4*hf,4)}, v{vST}, {sr(sWS,4)}, s{sT0} offen offset:{1024*hf} sc0 sc1")
            vmq.append(("st", 0))
        if j > 0 and 3 <= w <= 6:
            for i2 in (2 * (w - 3), 2 * (w - 3) + 1):
                e(f"v_cvt_pk_bf16_f32 v{PK[1]+i2}, v{ACC[1]+2*i2}, v{ACC[1]+2*i2+1}")
        if j > 0 and w == 7:
            e(f"s_add_u32 s{sT0}, s{sSTOFF}, {(j-1)*4096}")
            for hf in range(2):
                e(f"buffer_store_dwordx4 {vr(PK[1]+4*hf,4)}, v{vST}, {sr(sWS,4)}, s{sT0} offen offset:{2048+1024*hf} sc0 sc1")
                vmq.append(("st", 0))
    e("s_nop 7")
    e("s_nop 3")
    for i2 in range(8):
        e(f"v_cvt_pk_bf16_f32 v{PK[1]+i2}, v{ACC[1]+2*i2}, v{ACC[1]+2*i2+1}")
    e(f"s_add_u32 s{sT0}, s{sSTOFF}, {8*4096}")
    for hf in range(2):
        e(f"buffer_store_dwordx4 {vr(PK[1]+4*hf,4)}, v{vST}, {sr(sWS,4)}, s{sT0} offen offset:{2048+1024*hf} sc0 sc1")
    stamp(9)
    prof_out()
    e("s_endpgm")

K0PF = int(os.environ.get("K0PF", "1"))
def k0():
    kn = "k0_kernel"
    L.append(f".globl {kn}\n.p2align 8\n.type {kn},@function")
    lab(kn)
    e("s_cmp_ge_u32 s2, 256")
    e("s_cbranch_scc1 Lend0")
    e("s_load_dwordx16 s[32:47], s[0:1], 0")
    e("s_load_dwordx2 s[48:49], s[0:1], 64")
    e("v_lshrrev_b32 v1, 6, v0")
    e("v_and_b32 v2, 63, v0")
    e("v_readfirstlane_b32 s3, v1")
    e("v_lshlrev_b32 v3, 4, v2")
    e("v_mov_b32 v4, 0x40000000")
    e("v_cmp_gt_u32 vcc, 36, v2")
    e("s_lshl_b32 s4, s2, 3")
    e("v_cndmask_b32 v3, v4, v3, vcc")
    e("s_add_u32 s4, s4, s3")
    e("s_mul_i32 s4, s4, 1152")
    e("s_mov_b32 s5, 0x3f803f80")
    e("s_waitcnt lgkmcnt(0)")
    def srd(r, k, sz):
        e(f"s_mov_b32 s{r}, s{k}"); e(f"s_and_b32 s{r+1}, s{k+1}, 0xffff"); e(f"s_mov_b32 s{r+2}, {sz}"); e(f"s_mov_b32 s{r+3}, 0x00020000")
    srd(8, 32, 2048*1152)
    e("buffer_load_dwordx4 v[8:11], v3, s[8:11], s4 offen")
    e("buffer_load_dwordx4 v[12:15], v3, s[8:11], s4 offen offset:576")
    srd(12, 48, WS_BYTES)
    npf = 0
    if K0PF:
        c("cache warm-up: one dword per 128-B line. jg = wg&3, q = wg>>3 (0..31); unit u = q*8+wave (0..255)")
        srd(16, 40, 576*9216); srd(20, 42, 4608*1152); srd(24, 34, 576*3456); srd(28, 36, 576*1152)
        e("s_and_b32 s6, s2, 3")
        e("s_lshr_b32 s7, s2, 3")
        e("s_lshl_b32 s7, s7, 3")
        e("s_add_u32 s7, s7, s3")
        e("v_lshlrev_b32 v5, 7, v2")
        c(" W1 slice: 576 rows x 18 lines = 10368 lines = 256 x 40.5 -> 41 per unit, line id n = 41u+l: row n/18")
        e("s_mul_i32 s50, s7, 41")
        e("v_min_u32 v6, 40, v2")
        e("v_add_u32 v6, s50, v6")
        e("v_min_u32 v6, 10367, v6")
        e("v_mul_u32_u24 v7, 3641, v6")
        e("v_lshrrev_b32 v7, 16, v7")
        e(f"v_mul_u32_u24 v7, {9216 - 2304}, v7")
        e("v_lshl_add_u32 v7, v6, 7, v7")
        e("s_mul_i32 s51, s6, 2304")
        e("buffer_load_dword v16, v7, s[16:19], s51 offen")
        c(" W2 slice: contiguous 10368 lines")
        e("v_lshlrev_b32 v6, 7, v6")
        e(f"s_mul_i32 s51, s6, {1152*1152}")
        e("buffer_load_dword v17, v6, s[20:23], s51 offen")
        c(" Wqkv: 576*3 segments x 3 lines = 5184 lines -> 21 per unit ; Wo: 1296 lines -> 6 per unit")
        e("s_mul_i32 s50, s7, 21")
        e("v_min_u32 v6, 20, v2")
        e("v_add_u32 v6, s50, v6")
        e("v_min_u32 v6, 5183, v6")
        e("v_mul_u32_u24 v7, 21846, v6")
        e("v_lshrrev_b32 v7, 16, v7")
        e(f"v_mul_u32_u24 v7, {1152 - 384}, v7")
        e("v_lshl_add_u32 v7, v6, 7, v7")
        e("s_lshl_b32 s51, s6, 8")
        e("buffer_load_dword v18, v7, s[24:27], s51 offen")
        e("s_mul_i32 s50, s7, 6")
        e("v_min_u32 v6, 5, v2")
        e("v_add_u32 v6, s50, v6")
        e("v_min_u32 v6, 1295, v6")
        e("v_lshlrev_b32 v6, 7, v6")
        e(f"s_mul_i32 s51, s6, {144*1152}")
        e("buffer_load_dword v19, v6, s[28:31], s51 offen")
        npf = 4
    def wred(v, sdst):
        for ctl in ("row_shr:1", "row_shr:2", "row_shr:4", "row_shr:8", "row_bcast:15 row_mask:0xa", "row_bcast:31 row_mask:0xc"):
            e("s_nop 1")
            e(f"v_add_f32_dpp v{v}, v{v}, v{v} {ctl}" + ("" if "mask" in ctl else " bound_ctrl:0"))
        e("s_nop 1")
        e(f"v_readlane_b32 s{sdst}, v{v}, 63")
    e("v_mov_b32 v20, 0")
    e(f"s_waitcnt vmcnt({npf})")
    for i in range(8): e(f"v_dot2c_f32_bf16 v20, s5, v{8+i}")
    for i in range(8):
        e(f"v_lshlrev_b32 v{24+2*i}, 16, v{8+i}")
        e(f"v_and_b32 v{25+2*i}, 0xffff0000, v{8+i}")
    wred(20, 52)
    e(f"v_mov_b32 v21, {1.0/576:.9e}")
    e("v_mul_f32 v20, s52, v21")
    e("v_cndmask_b32 v22, 0, v20, vcc")
    e("v_mov_b32 v23, 0")
    for i in range(16):
        e(f"v_sub_f32 v{40+i%4}, v{24+i}, v22")
        e(f"v_fmac_f32 v23, v{40+i%4}, v{40+i%4}")
    emit_list(round_bf16(20, 22))
    wred(23, 52)
    e("v_mul_f32 v23, s52, v21")
    emit_list(round_bf16(23, 22))
    e("v_add_f32 v23, 0x3727c5ac, v23")
    emit_list(round_bf16(23, 22))
    e("v_sqrt_f32 v23, v23")
    e("s_nop 0")
    emit_list(round_bf16(23, 22))
    e("v_rcp_f32 v23, v23")
    for i in range(16): e(f"v_sub_f32 v{24+i}, v{24+i}, v20")
    for i in range(8): e(f"v_cvt_pk_bf16_f32 v{8+i}, v{24+2*i}, v{25+2*i}")
    for i in range(8):
        e(f"v_lshlrev_b32 v{24+2*i}, 16, v{8+i}")
        e(f"v_and_b32 v{25+2*i}, 0xffff0000, v{8+i}")
    for i in range(16): e(f"v_mul_f32 v{24+i}, v{24+i}, v23")
    for i in range(8): e(f"v_cvt_pk_bf16_f32 v{8+i}, v{24+2*i}, v{25+2*i}")
    c("transpose through LDS: [chunk][row] 16 B, chunk stride 144 ; lanes >= 36 write to a dump area")
    e("v_mul_u32_u24 v5, 144, v2")
    e("s_lshl_b32 s6, s3, 4")
    e("v_add_u32 v5, s6, v5")
    e(f"v_add_u32 v6, {72*144}, v5")
    e("v_cndmask_b32 v5, v6, v5, vcc")
    e("ds_write_b128 v5, v[8:11]")
    e(f"ds_write_b128 v5, v[12:15] offset:{36*144}")
    c("wave w stores chunks 8w..8w+7 ; wave 0 also 64..71. lane = (cc, row)")
    e("v_lshrrev_b32 v5, 3, v2")
    e("v_and_b32 v6, 7, v2")
    e("v_mul_u32_u24 v7, 144, v5")
    e("v_lshl_add_u32 v7, v6, 4, v7")
    e(f"s_mul_i32 s6, s3, {8*144}")
    e("v_add_u32 v7, s6, v7")
    e("v_lshlrev_b32 v5, 9, v5")
    e("v_lshl_add_u32 v5, v6, 4, v5")
    e("s_lshr_b32 s6, s2, 2")
    e("s_mul_i32 s6, s6, 36864")
    e("s_and_b32 s7, s2, 3")
    e("s_lshl_b32 s7, s7, 7")
    e("s_add_u32 s6, s6, s7")
    e("s_lshl_b32 s7, s3, 12")
    e("s_add_u32 s6, s6, s7")
    e(f"s_add_u32 s6, s6, {XN_OFF}")
    e("s_waitcnt lgkmcnt(0)")
    e("s_barrier")
    e("ds_read_b128 v[8:11], v7")
    e("s_cmp_eq_u32 s3, 0")
    e("s_cbranch_scc0 Lk0a")
    e(f"ds_read_b128 v[12:15], v7 offset:{64*144}")
    e("s_add_u32 s7, s6, 32768")
    e("s_waitcnt lgkmcnt(0)")
    e("buffer_store_dwordx4 v[12:15], v5, s[12:15], s7 offen sc0 sc1")
    lab("Lk0a")
    e("s_waitcnt lgkmcnt(0)")
    e("buffer_store_dwordx4 v[8:11], v5, s[12:15], s6 offen sc0 sc1")
    e("s_waitcnt vmcnt(0)")
    lab("Lend0")
    e("s_endpgm")

def k2():
    kn = "k2_kernel"
    L.append(f".globl {kn}\n.p2align 8\n.type {kn},@function")
    lab(kn)
    e("s_cmp_ge_u32 s2, 576")
    e("s_cbranch_scc1 Lend2")
    e("s_load_dwordx2 s[4:5], s[0:1], 0")
    e("s_load_dwordx2 s[6:7], s[0:1], 48")
    e("s_load_dwordx2 s[8:9], s[0:1], 64")
    if PROF: e("s_memrealtime s[32:33]")
    e("v_lshrrev_b32 v1, 6, v0")
    e("v_and_b32 v2, 63, v0")
    e("v_readfirstlane_b32 s3, v1")
    c("rb = wg/36 ; wv = (wg%36)*4+wave")
    e("s_mul_i32 s10, s2, 1821")
    e("s_lshr_b32 s10, s10, 16")
    e("s_mul_i32 s11, s10, 36")
    e("s_sub_u32 s11, s2, s11")
    e("s_lshl_b32 s11, s11, 2")
    e("s_add_u32 s11, s11, s3")
    e("s_mul_i32 s24, s11, 1821")
    e("s_lshr_b32 s24, s24, 16")
    e("s_mul_i32 s25, s24, 36")
    e("s_sub_u32 s25, s11, s25")
    e("s_and_b32 s26, s25, 1")
    e("s_lshr_b32 s25, s25, 1")
    c("partial offset = rb*16*PCHUNK + wv*1024 + lane*16")
    e(f"s_mul_i32 s27, s10, {16*PCHUNK}")
    e("s_lshl_b32 s28, s11, 10")
    e("s_add_u32 s27, s27, s28")
    e("v_lshlrev_b32 v3, 4, v2")
    c("x/out offset = (128rb+32r+lane%32)*1152 + tile*64 + (lane/32)*32 + half*16")
    e("s_lshl_b32 s28, s10, 7")
    e("s_lshl_b32 s29, s24, 5")
    e("s_add_u32 s28, s28, s29")
    e("s_mul_i32 s28, s28, 1152")
    e("s_lshl_b32 s29, s25, 6")
    e("s_add_u32 s28, s28, s29")
    e("s_lshl_b32 s29, s26, 4")
    e("s_add_u32 s28, s28, s29")
    e("v_and_b32 v4, 31, v2")
    e("v_mul_u32_u24 v4, 1152, v4")
    e("v_lshrrev_b32 v5, 5, v2")
    e("v_lshl_add_u32 v4, v5, 5, v4")
    e("s_mov_b32 s30, 0x00003f80")
    e("s_mov_b32 s31, 0x3f800000")
    e("s_waitcnt lgkmcnt(0)")
    for (s, k, sz) in ((12, 4, 2048*1152), (16, 6, 2048*1152), (20, 8, WS_BYTES)):
        e(f"s_mov_b32 s{s}, s{k}")
        e(f"s_and_b32 s{s+1}, s{k+1}, 0xffff")
        e(f"s_mov_b32 s{s+2}, {sz}")
        e(f"s_mov_b32 s{s+3}, 0x00020000")
    P = 32
    for j in range(16):
        e(f"buffer_load_dwordx4 {vr(P+4*j,4)}, v3, s[20:23], s27 offen")
        if j < 15: e(f"s_add_u32 s27, s27, {PCHUNK}")
    e("buffer_load_dwordx4 v[28:31], v4, s[12:15], s28 offen")
    F, S = 8, 16
    for i in range(16): e(f"v_mov_b32 v{F+i}, 0")
    for j in range(16):
        e(f"s_waitcnt vmcnt({16-j})")
        a = F if j < 12 else S
        for i in range(4):
            e(f"v_dot2c_f32_bf16 v{a+2*i}, s30, v{P+4*j+i}")
            e(f"v_dot2c_f32_bf16 v{a+2*i+1}, s31, v{P+4*j+i}")
    e("s_nop 2")
    T = 32
    c("f,s -> bf16")
    for i in range(8):
        e(f"v_cvt_pk_bf16_f32 v{T+i}, v{F+2*i}, v{F+2*i+1}")
    for i in range(8):
        e(f"v_lshlrev_b32 v{F+2*i}, 16, v{T+i}")
        e(f"v_and_b32 v{F+2*i+1}, 0xffff0000, v{T+i}")
    c("g = silu(f) = f/(1+exp(-f))")
    for i in range(8): e(f"v_mul_f32 v{T+i}, 0xbfb8aa3b, v{F+i}")
    for i in range(8): e(f"v_exp_f32 v{T+i}, v{T+i}")
    for i in range(8): e(f"v_add_f32 v{T+i}, 1.0, v{T+i}")
    for i in range(8): e(f"v_rcp_f32 v{T+i}, v{T+i}")
    for i in range(8): e(f"v_mul_f32 v{F+i}, v{F+i}, v{T+i}")
    for i in range(4): e(f"v_cvt_pk_bf16_f32 v{T+i}, v{F+2*i}, v{F+2*i+1}")
    for i in range(4):
        e(f"v_lshlrev_b32 v{F+2*i}, 16, v{T+i}")
        e(f"v_and_b32 v{F+2*i+1}, 0xffff0000, v{T+i}")
    for i in range(8): e(f"v_mul_f32 v{F+i}, v{F+i}, v{S+i}")
    for i in range(4): e(f"v_cvt_pk_bf16_f32 v{T+i}, v{F+2*i}, v{F+2*i+1}")
    e("s_waitcnt vmcnt(0)")
    for i in range(4):
        e(f"v_lshlrev_b32 v{F+2*i}, 16, v{T+i}")
        e(f"v_and_b32 v{F+2*i+1}, 0xffff0000, v{T+i}")
        e(f"v_lshlrev_b32 v{S+2*i}, 16, v{28+i}")
        e(f"v_and_b32 v{S+2*i+1}, 0xffff0000, v{28+i}")
    for i in range(8): e(f"v_add_f32 v{F+i}, v{F+i}, v{S+i}")
    for i in range(4): e(f"v_cvt_pk_bf16_f32 v{T+i}, v{F+2*i}, v{F+2*i+1}")
    e(f"buffer_store_dwordx4 {vr(T,4)}, v4, s[16:19], s28 offen")
    if PROF:
        e("s_waitcnt vmcnt(0)")
        e("s_memrealtime s[34:35]")
        e("s_waitcnt lgkmcnt(0)")
        e("s_lshl_b32 s36, s2, 2")
        e("s_add_u32 s36, s36, s3")
        e("s_lshl_b32 s36, s36, 4")
        e(f"s_add_u32 s36, s36, {65<<20}")
        e("v_mov_b32 v1, 0")
        e("v_mov_b32 v8, s32")
        e("v_mov_b32 v9, 0")
        e("v_mov_b32 v10, s34")
        e("v_mov_b32 v11, 0")
        e("v_cmp_eq_u32 vcc, 0, v2")
        e("s_and_saveexec_b64 s[38:39], vcc")
        e("buffer_store_dwordx4 v[8:11], v1, s[20:23], s36 offen")
        e("s_waitcnt vmcnt(0)")
    lab("Lend2")
    e("s_endpgm")

def desc(kn, vg, acc, sg):
    return f""".amdhsa_kernel {kn}
  .amdhsa_next_free_vgpr {vg}
  .amdhsa_next_free_sgpr {sg}
  .amdhsa_accum_offset {acc}
  .amdhsa_group_segment_fixed_size 0
  .amdhsa_kernarg_size 72
  .amdhsa_user_sgpr_count 2
  .amdhsa_user_sgpr_kernarg_segment_ptr 1
  .amdhsa_system_sgpr_workgroup_id_x 1
.end_amdhsa_kernel
"""

def main(out):
    hdr = open(f"cdna_kernels/{NAME}.s.ref").read().split("; Override")[0]
    L.append(hdr.rstrip("\n"))
    L.append("; @launch kernel=k0_kernel grid=(256,1,1) block=(512,1,1) lds=25600")
    L.append("; @launch kernel=k1_kernel grid=(256,1,1) block=(256,1,1) lds=163840")
    L.append("; @launch kernel=k2_kernel grid=(576,1,1) block=(256,1,1) lds=0")
    L.append('.amdgcn_target "amdgcn-amd-amdhsa--gfx950"')
    L.append(".text")
    k0()
    k1()
    k2()
    L.append('.section .rodata,"a"')
    L.append(".p2align 6")
    L.append(desc("k0_kernel", 48, 48, 56))
    L.append(".p2align 6")
    L.append(desc("k1_kernel", 512, 256, 102))
    L.append(".p2align 6")
    L.append(desc("k2_kernel", 96, 96, 40))
    open(out, "w").write("\n".join(L) + "\n")

if __name__ == "__main__":
    main(sys.argv[1] if len(sys.argv) > 1 else f"cdna_kernels/{NAME}.s")
```

```python
import sys
NAME = "recurrent_scan__sliding_local_dilated__dense_activation_relu__prompt"
L = []
def e(s): L.append("    " + s)
def lab(s): L.append(s + ":")
def c(s): L.append("    ; " + s)

SLOT = 24576
NSLOT = 6
KVBASE = 73728
KVSTR = 592
PCHUNK = 147456
HALO_OFF = 256 * PCHUNK
WS_BYTES = HALO_OFF + 64 * 9216
D = 6
R = 8

RSTD_OFF = WS_BYTES
WS_BYTES += 8192
WCOPY = 4
vTID, vLANE, vM, vHH = 0, 1, 2, 3
vA01, vB01, vA2, vB2, vMASKA, vWO = 4, 5, 6, 7, 8, 9
vRSTD, vST, vCI, vCUR, vBASE_G2, vBASE_AG2 = 10, 11, 12, 13, 14, 15
ACC = [16, 32]
PK = [48, 56]
vD, vD2 = 64, 70
vS = 76
H = 80
vT = 96
U = 80
X = 112
NXA = 20
XA = 64
FR = 0
sSRD, sX, sWS, sDBG = 4, 8, 12, 16
sWAVE, sRB, sJOB, sATT = 20, 21, 22, 23
sSOFF, sINC = 24, 25
sMB0, sMB1, sRD, sG, sIDX = 28, 29, 30, 31, 32
sONES, sSELLO, sSELHI = 41, 42, 43
sT0, sT1, sT2, sT3 = 54, 55, 56, 57
sSTOFF, sW6K, sCUR = 58, 59, 60
sK = 64
sEX = 84
kx, kqkv, kwo, kw1, kw2, kdbg, kws = sK, sK+2, sK+4, sK+8, sK+10, sK+14, sK+16
TOG = 0x12000
def xop(s_): return f"a[{XA+4*s_}:{XA+4*s_+3}]" if s_ < NXA else f"v[{X+4*s_}:{X+4*s_+3}]"
import os
PROF = os.environ.get("PROF", "0") == "1"
if PROF: WS_BYTES = 128 << 20
def stamp(i, real=False):
    if not PROF: return
    e(("s_memrealtime" if real else "s_memtime") + " s[86:87]")
    e("s_waitcnt lgkmcnt(0)")
    e(f"s_mov_b32 s{88+i}, s86")
def prof_out():
    if not PROF: return
    stamp(1, True)
    e(f"s_lshl_b32 s86, s2, 2")
    e(f"s_add_u32 s86, s86, s{sWAVE}")
    e(f"s_lshl_b32 s86, s86, 7")
    e(f"s_add_u32 s86, s86, {64<<20}")
    e("v_mov_b32 v1, 0")
    e("v_mov_b32 v3, 0")
    e("v_cmp_eq_u32 vcc, 0, v0")
    e("v_and_b32 v0, 63, v0")
    e("v_cmp_eq_u32 vcc, 0, v0")
    e(f"s_and_saveexec_b64 {sr(sEX,2)}, vcc")
    for i in range(12):
        e(f"v_mov_b32 v2, s{88+i}")
        e(f"buffer_store_dwordx2 v[2:3], v1, {sr(sWS,4)}, s86 offen offset:{8*i}")
        e("s_nop 1")
    e("s_waitcnt vmcnt(0)")
NOW = os.environ.get("NOW", "0") == "1"
NOST = os.environ.get("NOST", "0") == "1"
NODMA = os.environ.get("NODMA", "0") == "1"
NORD = os.environ.get("NORD", "0") == "1"
LIN = os.environ.get("LIN", "0") == "1"
NOPF = os.environ.get("NOPF", "0") == "1"
sPF = 44
sPF2, sPFO, sPFO2 = 48, 52, 53
vPF = 79
PFW1 = int(os.environ.get("PFW1", "0"))
PFN = int(os.environ.get("PFN", "14"))
def pf_srd(k, sz, r=sPF):
    e(f"s_mov_b32 s{r}, s{k}")
    e(f"s_and_b32 s{r+1}, s{k+1}, 0xffff")
    e(f"s_mov_b32 s{r+2}, {0 if (NOW or NOPF) else sz}")
    e(f"s_mov_b32 s{r+3}, 0x00020000")
uid = [0]
def newlab(p):
    uid[0] += 1
    return f"L{p}_{uid[0]}"

def vr(b, n): return f"v[{b}:{b+n-1}]"
def ar(b, n): return f"a[{b}:{b+n-1}]"
def sr(b, n): return f"s[{b}:{b+n-1}]"

IMM = [0, 1024, 2048, 3072, 0, 1024]
def dma_ld(p):
    if NODMA: return []
    return [f"buffer_load_dwordx4 v{vD+p}, {sr(sSRD,4)}, s{sSOFF} offen offset:{IMM[p]} lds"]
def att_delta():
    return [
        f"v_add_u32 v{vCI}, 4, v{vCI}",
        f"v_subrev_u32 v{vS}, 27, v{vCI}",
        f"v_min_u32 v{vCI}, v{vCI}, v{vS}",
        f"v_mul_u32_u24 v{vS}, 57, v{vCI}",
        f"v_lshrrev_b32 v{vS}, 9, v{vS}",
        f"v_mul_u32_u24 v{vS}, 864, v{vS}",
        f"v_lshl_add_u32 v{vS+1}, v{vCI}, 5, v{vS}",
        f"v_sub_u32 v{vS}, v{vS+1}, v{vCUR}",
        f"v_mov_b32 v{vCUR}, v{vS+1}",
    ]

def emit_list(lst):
    for s in lst:
        if s.endswith(":"): L.append(s)
        else: e(s)

def tr_reads(fr, addr, off, second):
    if NORD: return []
    return [f"ds_read_b64_tr_b16 {ar(FR+4*fr,2)}, v{addr} offset:{off}",
            f"ds_read_b64_tr_b16 {ar(FR+4*fr+2,2)}, v{addr} offset:{off+second}"]

def round_bf16(v, tmp):
    return [f"v_cvt_pk_bf16_f32 v{tmp}, v{v}, v{v}", f"v_lshlrev_b32 v{v}, 16, v{tmp}"]

def gemm_body(nst, bop, fill, raddr):
    n = 24 * nst
    for i in range(n):
        st, w = divmod(i, 24)
        tile, ks = divmod(w, 12)
        j = (i + D) % n
        st2, w2 = divmod(j, 24)
        t2, ks2 = divmod(w2, 12)
        a, off = raddr(st2, t2)
        emit_list(tr_reads((i + D) % R, a, off + ks2 * 2048, 512))
        if i % 2 == 0: e(f"s_waitcnt lgkmcnt({2*D-2})")
        acc = vr(ACC[tile], 16)
        cc = "0" if (st == 0 and ks == 0) else acc
        e(f"v_mfma_f32_32x32x16_bf16 {acc}, {ar(FR+4*(i%R),4)}, {bop(12*st+ks)}, {cc}")
        emit_list(fill.get(i, []))

def add(fill, slot, ins):
    fill.setdefault(slot, []).extend(ins)

class Sched:
    def __init__(self, n):
        self.n = n; self.fill = {}; self.load = [0] * n
    def cap(self, i): return 3 if i % 2 == 0 else 2
    def put(self, slot, ins, cost=None):
        slot %= self.n
        add(self.fill, slot, ins)
        self.load[slot] += len(ins) if cost is None else cost
    def seq(self, lo, hi, groups):
        over = 0
        while True:
            ld = list(self.load); pos = []; i = lo; ok = True
            for g in groups:
                while i <= hi and ld[i % self.n] + len(g) > self.cap(i) + over and ld[i % self.n] > 0: i += 1
                if i > hi: ok = False; break
                pos.append(i); ld[i % self.n] += len(g)
            if ok: break
            over += 1
        for g, i in zip(groups, pos): self.put(i, g)
        return pos[-1]
    def vmwait(self, bar_slot, p5_slot_back):
        cnt = 0
        for a in range(p5_slot_back + 1, bar_slot + 1):
            cnt += sum(1 for x in self.fill.get(a % self.n, []) if x.startswith("buffer_"))
        return cnt

BAR = 9
def bars(S, nst, w):
    for st in range(nst):
        b = 24 * st
        n = S.vmwait(b + BAR, b - 72 + BAR + 1 + w + 20 - 24)
        if NODMA: n = 63
        S.put(b + BAR, [f"s_waitcnt vmcnt({n})", "s_barrier"])

RARE = []
def phase1(att, w):
    tag = f"{'a' if att else 'f'}{w}"
    S = Sched(72)
    for st in range(3):
        b = 24 * st
        for p in range(6):
            sl = b + BAR + 1 + w + 4 * p
            if p in (0, 4):
                r, k = [(sMB1, 2 * SLOT), (sMB0, 0), (sMB0, SLOT)][st]
                if sl - 1 >= 72: r = sMB1 if r == sMB0 else sMB0
                S.put(sl - 1, [f"s_add_u32 m0, s{r}, {k + w*6144 + (4096 if p == 4 else 0)}"])
            S.put(sl, dma_ld(p), cost=3)
        S.put(b + BAR + 1 + w + 21, [f"s_add_u32 s{sSOFF}, s{sSOFF}, s{sINC+st}"])
    d2 = [x for x in range(14, 30) if (x - (BAR + 1 + w)) % 4 == 2]
    S.put(d2[0], [f"buffer_load_dword a63, v{vPF}, {sr(sPF,4)}, s{sPFO} offen"], cost=3)
    S.seq(d2[0] + 1, 60, [[f"s_add_u32 s{sPFO}, s{sPFO}, {PFN*128}"],
                          [f"s_cmp_ge_u32 s{sG}, {42 // PFN - 1}", f"s_cselect_b32 s{sPF+2}, 0, s{sPF+2}"]])
    bars(S, 3, w)
    S.seq(36, 60, [[f"v_xor_b32 v{vA01}, v{vMASKA}, v{vA01}"]])
    S.seq(42, 70, [[f"v_xor_b32 v{vB01}, {TOG}, v{vB01}"]])
    S.seq(54, 71, [[f"v_xor_b32 v{vA2}, {TOG}, v{vA2}"]])
    S.seq(66, 71, [[f"v_xor_b32 v{vB2}, {TOG}, v{vB2}"]])
    S.put(71, [f"s_xor_b32 s{sMB0}, s{sMB0}, {TOG}", f"s_xor_b32 s{sMB1}, s{sMB1}, {TOG}",
               f"s_add_u32 s{sG}, s{sG}, 1", f"s_cmp_lt_u32 s{sG}, {7 if att else 6}"])
    sw = 32 + w
    if att:
        S.put(sw, [f"s_cmp_ge_u32 s{sG}, 5", f"s_cselect_b32 s{sSRD+2}, 0, s{sSRD+2}"])
        dl = att_delta()
        S.seq(12, 28, [[x] for x in dl])
        for p in range(6):
            lo = BAR + 1 + w + 4 * p + 1
            S.seq(max(lo, 29), 24 + BAR + w + 4 * p, [[f"v_add_u32 v{vD+p}, v{vD+p}, v{vS}"]])
    else:
        S.put(sw, [f"s_cmp_ge_u32 s{sG}, 4", f"s_cbranch_scc1 Lsw_{tag}", f"Lswr_{tag}:"], cost=2)
        r = [f"Lsw_{tag}:", f"s_cmp_eq_u32 s{sG}, 4", f"s_cbranch_scc0 Lsw5_{tag}",
             f"s_mov_b32 s{sSRD}, s{kw2}", f"s_and_b32 s{sSRD+1}, s{kw2+1}, 0xffff",
             f"s_mov_b32 s{sSRD+2}, {0 if NOW else 4608*1152}", f"s_mul_i32 s{sSOFF}, s{sJOB}, {384*1152}",
             f"s_mov_b32 s{sINC}, {192*1152}", f"s_mov_b32 s{sINC+1}, {192*1152}", f"s_mov_b32 s{sINC+2}, {(128-192*1152) & 0xffffffff}"]
        r += [f"v_mov_b32 v{vD+p}, v{vD2+p}" for p in range(6)]
        r += [f"s_branch Lswr_{tag}", f"Lsw5_{tag}:",
              f"s_mov_b32 s{sINC+2}, {192*1152}", f"s_mov_b32 s{sINC+1}, {(128-192*1152) & 0xffffffff}",
              f"v_xor_b32 v{vMASKA}, v{vA01}, v{vBASE_G2}", f"s_branch Lswr_{tag}"]
        RARE.extend(r)
    def idxblk(tile):
        o = [f"s_set_gpr_idx_on s{sIDX}, 0x8", "s_nop 0"]
        for i in range(8):
            if att: o.append(f"v_cvt_pk_bf16_f32 v{H+8*tile+i}, v{ACC[tile]+2*i}, v{ACC[tile]+2*i+1}")
            else: o.append(f"v_pk_max_i16 v{H+8*tile+i}, v{PK[tile]+i}, 0")
        o.append("s_set_gpr_idx_off")
        return o
    def pre(slot, ins):
        S.fill[slot % 72] = ins + S.fill.get(slot % 72, []); S.load[slot % 72] += len(ins)
    if att:
        S.seq(61, 68, [[f"v_mul_f32 v{ACC[0]+i}, v{ACC[0]+i}, v{vRSTD}"] for i in range(16)])
        sl = [x for x in (71, 70, 69) if (x - (BAR + 1 + w)) % 4 != 0][0]
        k = SLOT + (4096 if sl >= 48 + BAR + w + 16 else 0)
        pre(sl, idxblk(0) + [f"s_add_u32 m0, s{sMB0}, {k + w*6144}"])
        S.seq(1, 8, [[f"v_mul_f32 v{ACC[1]+i}, v{ACC[1]+i}, v{vRSTD}"] for i in range(16)])
        sl = [x for x in (11, 10) if (x - (BAR + 1 + w)) % 4 != 0][0]
        fix = [f"s_add_u32 m0, s{sMB1}, {2*SLOT + w*6144}"] if sl >= BAR + w else []
        S.put(sl, idxblk(1) + fix + [f"s_add_u32 s{sIDX}, s{sIDX}, s{sIDX+1}", f"s_mov_b32 s{sIDX+1}, 16"])
        if w == 3:
            S.seq(40, 44, [[f"s_cmp_ge_u32 s{sG}, 5", f"s_cbranch_scc1 Lpub", "Lpubr:"]])
    else:
        S.seq(61, 71, [[f"v_cvt_pk_bf16_f32 v{PK[0]+i}, v{ACC[0]+2*i}, v{ACC[0]+2*i+1}"] for i in range(8)])
        S.seq(1, 11, [[f"v_cvt_pk_bf16_f32 v{PK[1]+i}, v{ACC[1]+2*i}, v{ACC[1]+2*i+1}"] for i in range(8)])
        pre(BAR + w + 16, idxblk(0))
        pre(24 + BAR + w + 16, idxblk(1) + [f"s_add_u32 s{sIDX}, s{sIDX}, s{sIDX+1}", f"s_mov_b32 s{sIDX+1}, 16"])
    e(".p2align 6")
    lab(f"Lp1_{tag}")
    gemm_body(3, xop, S.fill, lambda st, t: ([vA01, vB01][t], st * SLOT) if st < 2 else ([vA2, vB2][t], 0))
    e(f"s_cbranch_scc1 Lp1_{tag}")

def phase2(w):
    S = Sched(48)
    vA, vB, vB0 = vA01, vB01, vA2
    for st in range(2):
        b = 24 * st
        for p in range(6):
            sl = b + BAR + 1 + w + 4 * p
            if p in (0, 4):
                r, k = [(sMB1, SLOT), (sMB0, 0)][st]
                if sl - 1 >= 48: r = sMB1
                S.put(sl - 1, [f"s_add_u32 m0, s{r}, {k + w*6144 + (4096 if p == 4 else 0)}"])
            S.put(sl, dma_ld(p), cost=3)
        inc = [128 - 192 * 1152, 192 * 1152][st]
        S.put(b + BAR + 1 + w + 21, [f"s_add_u32 s{sSOFF}, s{sSOFF}, {inc & 0xffffffff}"])
    S.put(32 + w, [f"s_cmp_ge_u32 s{sG}, 6", f"s_cselect_b32 s{sSRD+2}, 0, s{sSRD+2}"])
    st_ = lambda r, so, off: [f"buffer_store_dwordx4 {vr(r,4)}, v{vST}, {sr(sWS,4)}, s{so} offen offset:{off} sc0 sc1"]
    d0 = (BAR + 1 + w) % 4
    ssl = lambda lo: [x for x in range(lo, lo + 8) if (x - d0) % 4 == 2]
    a0, a1 = ssl(2); b0, b1 = ssl(14)
    S.put(a0, st_(PK[0], sT2, 0), cost=3); S.put(a1, st_(PK[0] + 4, sT2, 1024), cost=3)
    S.put(b0, st_(PK[1], sT2, 2048), cost=3); S.put(b1, st_(PK[1] + 4, sT2, 3072), cost=3)
    bars(S, 2, w)
    S.seq(37, 47, [[f"v_cvt_pk_bf16_f32 v{PK[0]+i}, v{ACC[0]+2*i}, v{ACC[0]+2*i+1}"] for i in range(8)])
    S.seq(1, 11, [[f"v_cvt_pk_bf16_f32 v{PK[1]+i}, v{ACC[1]+2*i}, v{ACC[1]+2*i+1}"] for i in range(8)])
    S.seq(24, 34, [[f"s_add_u32 s{sRD}, s{sRD}, {2*SLOT}", f"s_cmp_eq_u32 s{sRD}, {6*SLOT}", f"s_cselect_b32 s{sRD}, 0, s{sRD}"]])
    S.seq(35, 40, [[f"v_add_u32 v{vA}, s{sRD}, v{vBASE_G2}"]])
    S.seq(42, 46, [[f"v_add_u32 v{vB}, s{sRD}, v{vB0}"]])
    S.seq(24, 46, [[f"s_mov_b32 s{sT2}, s{sSTOFF}"], [f"s_add_u32 s{sSTOFF}, s{sSTOFF}, 4096"]])
    S.put(47, [f"s_mov_b32 s{sMB1}, s{sMB0}", f"s_mov_b32 s{sMB0}, s{sRD}",
               f"s_add_u32 s{sG}, s{sG}, 1", f"s_cmp_lt_u32 s{sG}, 9"])
    e(".p2align 6")
    lab(f"Lp2_{w}")
    gemm_body(2, lambda s_: vr(H + 4 * s_, 4), S.fill, lambda st, t: ([vA, vB][t], st * SLOT))
    e(f"s_cbranch_scc1 Lp2_{w}")

def signal(val, idx_sgpr):
    e(f"v_mov_b32 v{vS+2}, 0")
    e(f"v_mov_b32 v{vS+1}, {val}")
    e(f"v_cmp_eq_u32 vcc, 0, v{vLANE}")
    e(f"s_and_saveexec_b64 {sr(sEX,2)}, vcc")
    e(f"buffer_atomic_add v{vS+1}, v{vS+2}, {sr(sDBG,4)}, s{idx_sgpr} offen sc1")
    e(f"s_mov_b64 exec, {sr(sEX,2)}")
    e("s_nop 3")

def poll(tag, idx_sgpr, shift, width, target, vt):
    e(f"v_mov_b32 v{vt}, 0")
    e(f"s_mov_b32 s{sCUR+1}, 0x8000")
    lab(f"Lpoll_{tag}")
    e(f"buffer_load_dword v{vt+1}, v{vt}, {sr(sDBG,4)}, s{idx_sgpr} offen sc0 sc1")
    e("s_waitcnt vmcnt(0)")
    e(f"v_readfirstlane_b32 s{sT2}, v{vt+1}")
    e("s_nop 3")
    e(f"s_bfe_u32 s{sT2}, s{sT2}, {(width << 16) | shift}")
    e(f"s_cmp_eq_u32 s{sT2}, {target}")
    e(f"s_cbranch_scc1 Lpollok_{tag}")
    e("s_sleep 1")
    e(f"s_sub_u32 s{sCUR+1}, s{sCUR+1}, 1")
    e(f"s_cbranch_scc0 Lpoll_{tag}")
    lab(f"Lpollok_{tag}")

def reduce_tail():
    sO = sPF
    P, XV, F = 80, 16, 28
    Sg = 52
    e(f"s_lshl_b32 s{sT0}, s{sRB}, 2")
    e(f"s_add_u32 s{sT0}, s{sT0}, s{sWAVE}")
    e(f"s_lshl_b32 s{sT3}, s{sT0}, 2")
    c("x/out offsets")
    e(f"s_mul_i32 s{sT0}, s{sT0}, {32*1152}")
    e(f"v_mul_u32_u24 v4, 1152, v{vM}")
    e(f"v_lshl_add_u32 v4, v{vHH}, 5, v4")
    e(f"s_mul_i32 s{sT1}, s{sJOB}, 3")
    for i in range(3):
        e(f"s_add_u32 s{sT2}, s{sT1}, {i}")
        e(f"s_and_b32 s{sINC+i}, s{sT2}, 1")
        e(f"s_lshl_b32 s{sINC+i}, s{sINC+i}, 4")
        e(f"s_lshr_b32 s{sT2}, s{sT2}, 1")
        e(f"s_lshl_b32 s{sT2}, s{sT2}, 6")
        e(f"s_add_u32 s{sINC+i}, s{sINC+i}, s{sT2}")
        e(f"s_add_u32 s{sINC+i}, s{sINC+i}, s{sT0}")
    e(f"s_mov_b32 s{sO}, s{sK+12}")
    e(f"s_and_b32 s{sO+1}, s{sK+13}, 0xffff")
    e(f"s_mov_b32 s{sO+2}, {2048*1152}")
    e(f"s_mov_b32 s{sO+3}, 0x00020000")
    c("partial base = (rb*64 + wave)*36864 + job*3072")
    e(f"s_lshl_b32 s{sT0}, s{sRB}, 6")
    e(f"s_add_u32 s{sT0}, s{sT0}, s{sWAVE}")
    e(f"s_mul_i32 s{sSOFF}, s{sT0}, 36864")
    e(f"s_mul_i32 s{sT0}, s{sJOB}, 3072")
    e(f"s_add_u32 s{sSOFF}, s{sSOFF}, s{sT0}")
    e("s_waitcnt vmcnt(0)")
    signal(1, sT3)
    for i in range(3):
        e(f"buffer_load_dwordx4 {vr(XV+4*i,4)}, v4, {sr(sX,4)}, s{sINC+i} offen")
    for i in range(48): e(f"v_mov_b32 v{F+i}, 0")
    stamp(8)
    poll("f", sT3, 0, 8, 12, 5)
    stamp(9)
    def loads(n, base):
        for j in range(n):
            for i in range(3):
                e(f"buffer_load_dwordx4 {vr(base+12*j+4*i,4)}, v{vST}, {sr(sWS,4)}, s{sSOFF} offen offset:{1024*i} sc0 sc1")
            e(f"s_add_u32 s{sSOFF}, s{sSOFF}, {PCHUNK}")
    def accum(n, base, acc):
        for j in range(n):
            e(f"s_waitcnt vmcnt({3*(n-1-j)})")
            for i in range(12):
                e(f"v_dot2c_f32_bf16 v{acc+2*i}, s{sSELLO}, v{base+12*j+i}")
                e(f"v_dot2c_f32_bf16 v{acc+2*i+1}, s{sSELHI}, v{base+12*j+i}")
    loads(12, P)
    accum(12, P, F)
    e("s_nop 2")
    T = 80
    def rnd(b):
        for i in range(12): e(f"v_cvt_pk_bf16_f32 v{T+i}, v{b+2*i}, v{b+2*i+1}")
        for i in range(12):
            e(f"v_lshlrev_b32 v{b+2*i}, 16, v{T+i}")
            e(f"v_and_b32 v{b+2*i+1}, 0xffff0000, v{T+i}")
    for i in range(24): e(f"v_mul_f32 v{F+i}, v{F+i}, v{vRSTD}")
    rnd(F)
    c("g = silu(f)")
    for i in range(24): e(f"v_mul_f32 v{T+i}, 0xbfb8aa3b, v{F+i}")
    for i in range(24): e(f"v_exp_f32 v{T+i}, v{T+i}")
    for i in range(24): e(f"v_add_f32 v{T+i}, 1.0, v{T+i}")
    for i in range(24): e(f"v_rcp_f32 v{T+i}, v{T+i}")
    for i in range(24): e(f"v_mul_f32 v{F+i}, v{F+i}, v{T+i}")
    rnd(F)
    stamp(10)
    poll("a", sT3, 8, 8, 4, 5)
    stamp(11)
    loads(4, 112)
    accum(4, 112, Sg)
    e("s_nop 2")
    rnd(Sg)
    for i in range(24): e(f"v_mul_f32 v{F+i}, v{F+i}, v{Sg+i}")
    rnd(F)
    for i in range(12):
        e(f"v_lshlrev_b32 v{Sg+2*i}, 16, v{XV+i}")
        e(f"v_and_b32 v{Sg+2*i+1}, 0xffff0000, v{XV+i}")
    for i in range(24): e(f"v_add_f32 v{F+i}, v{F+i}, v{Sg+i}")
    for i in range(12): e(f"v_cvt_pk_bf16_f32 v{T+i}, v{F+2*i}, v{F+2*i+1}")
    for i in range(3):
        e(f"buffer_store_dwordx4 {vr(T+4*i,4)}, v4, {sr(sO,4)}, s{sINC+i} offen")

def k1():
    kn = NAME + "_kernel"
    L.append(f".globl {kn}\n.p2align 8\n.type {kn},@function")
    lab(kn)
    e("s_cmp_ge_u32 s2, 256")
    e("s_cbranch_scc1 Lend1")
    e(f"s_load_dwordx16 {sr(sK,16)}, s[0:1], 0")
    e(f"s_load_dwordx2 {sr(sK+16,2)}, s[0:1], 64")
    if PROF:
        for i in range(12): e(f"s_mov_b32 s{88+i}, 0")
    stamp(0, True)
    stamp(2)
    c("lane decode")
    e(f"v_and_b32 v{vLANE}, 63, v0")
    e(f"v_lshrrev_b32 v{vT}, 6, v0")
    e(f"v_and_b32 v{vM}, 31, v0")
    e(f"v_readfirstlane_b32 s{sWAVE}, v{vT}")
    e(f"v_bfe_u32 v{vHH}, v0, 5, 1")
    c("wg decode: xcd=wg%8, q=wg/8; jg=xcd%4; i=q%4; rb=(xcd/4)*8+q/4")
    e(f"s_and_b32 s{sT0}, s2, 3")
    e(f"s_bfe_u32 s{sT1}, s2, 0x20003")
    e(f"s_bfe_u32 s{sT2}, s2, 0x10002")
    e(f"s_lshr_b32 s{sT3}, s2, 5")
    e(f"s_lshl_b32 s{sRB}, s{sT2}, 3")
    e(f"s_add_u32 s{sRB}, s{sRB}, s{sT3}")
    e(f"s_mul_i32 s{sJOB}, s{sT0}, 3")
    e(f"s_add_u32 s{sJOB}, s{sJOB}, s{sT1}")
    e(f"s_add_u32 s{sT2}, s{sT0}, 12")
    e(f"s_cmp_eq_u32 s{sT1}, 3")
    e(f"s_cselect_b32 s{sJOB}, s{sT2}, s{sJOB}")
    e(f"s_cselect_b32 s{sATT}, 1, 0")
    e(f"s_mul_i32 s{sW6K}, s{sWAVE}, 6144")
    e(f"s_mov_b32 s{sONES}, 0x3f803f80")
    e(f"s_mov_b32 s{sSELLO}, 0x00003f80")
    e(f"s_mov_b32 s{sSELHI}, 0x3f800000")
    c("x dma voffsets: i=lane/8, j'=lane%8; key=(i>>1)|(par<<2); off=i*1152+((j'^key)*16)")
    e(f"v_lshrrev_b32 v{vT}, 3, v{vLANE}")
    e(f"v_and_b32 v{vT+1}, 7, v{vLANE}")
    e(f"v_lshrrev_b32 v{vT+2}, 1, v{vT}")
    e(f"v_xor_b32 v{vT+2}, v{vT+1}, v{vT+2}")
    e(f"v_mul_u32_u24 v{vT+3}, 1152, v{vT}")
    e(f"v_lshl_add_u32 v{vT+4}, v{vT+2}, 4, v{vT+3}")
    e(f"v_xor_b32 v{vT+5}, 64, v{vT+4}")
    e("s_waitcnt lgkmcnt(0)")
    c("SRDs")
    for (s, k, sz) in ((sX, kx, 2048*1152), (sWS, kws, WS_BYTES), (sDBG, kdbg, 256)):
        e(f"s_mov_b32 s{s}, s{k}")
        e(f"s_and_b32 s{s+1}, s{k+1}, 0xffff")
        e(f"s_mov_b32 s{s+2}, {sz}")
        e(f"s_mov_b32 s{s+3}, 0x00020000")
    c("x rows base")
    e(f"s_lshl_b32 s{sT0}, s{sRB}, 7")
    e(f"s_lshl_b32 s{sT1}, s{sWAVE}, 5")
    e(f"s_add_u32 s{sT0}, s{sT0}, s{sT1}")
    e(f"s_mul_i32 s{sT0}, s{sT0}, 1152")
    e(f"s_add_u32 s{sT1}, s{sT0}, {8*1152}")
    e(f"s_add_u32 s{sT2}, s{sT0}, {16*1152}")
    e(f"s_add_u32 s{sT3}, s{sT0}, {24*1152}")
    e(f"s_mul_i32 s{sCUR}, s{sWAVE}, 36864")
    for cg in range(9):
        for br in range(4):
            e(f"s_add_u32 m0, s{sCUR}, {(br*9+cg)*1024 - cg*128}")
            e("s_nop 0")
            e(f"buffer_load_dwordx4 v{vT+4+(br&1)}, {sr(sX,4)}, s{sT0+br} offen offset:{cg*128} lds")
    c("cache warm-up, chip-wide split: unit u = wg*4+wave, one dword per 128-B line")
    e(f"s_lshl_b32 s{sT0}, s2, 2")
    e(f"s_add_u32 s{sT0}, s{sT0}, s{sWAVE}")
    for (k_, sz_, n_) in ((kqkv, 576*3456, 16), (kw1, 576*9216, 41), (kwo, 576*1152, 6)):
        pf_srd(k_, sz_ if (n_ != 41 or PFW1 == 1) else 0)
        e(f"v_min_u32 v{vT}, {n_-1}, v{vLANE}")
        e(f"v_lshlrev_b32 v{vT}, 7, v{vT}")
        e(f"s_mul_i32 s{sT1}, s{sT0}, {n_*128}")
        e(f"buffer_load_dword a63, v{vT}, {sr(sPF,4)}, s{sT1} offen")
    pf_srd(kw2, 4608*1152)
    e(f"v_min_u32 v{vPF}, {PFN-1}, v{vLANE}")
    e(f"v_lshlrev_b32 v{vPF}, 7, v{vPF}")
    e(f"s_mul_i32 s{sPFO}, s{sT0}, {42*128}")
    c("x frag read addresses: base + (m/8)*9216 + (m%8)*128 + (((2q+hh)^key)*16), key=(m>>1)&7")
    e(f"v_lshrrev_b32 v{vT}, 3, v{vM}")
    e(f"v_mul_u32_u24 v{vT}, 9216, v{vT}")
    e(f"v_and_b32 v{vT+1}, 7, v{vM}")
    e(f"v_lshl_add_u32 v{vT}, v{vT+1}, 7, v{vT}")
    e(f"v_add_u32 v{vT}, s{sCUR}, v{vT}")
    e(f"v_bfe_u32 v{vT+1}, v{vM}, 1, 3")
    e(f"v_xor_b32 v{vT+1}, v{vT+1}, v{vHH}")
    for q in range(4):
        e(f"v_xor_b32 v{vT+2}, {2*q}, v{vT+1}")
        e(f"v_lshl_add_u32 v{vT+6+q}, v{vT+2}, 4, v{vT}")
    c("tr-read lane bases. g=lane/16: ch=g&1, hh=g>>1; r=(lane%16)/4, cc=lane%4")
    tr, tc, tch, trow, tsw = U+10, U+11, U+12, U+13, U+14
    e(f"v_bfe_u32 v{tr}, v{vLANE}, 2, 2")
    e(f"v_and_b32 v{tc}, 3, v{vLANE}")
    e(f"v_bfe_u32 v{tch}, v{vLANE}, 4, 1")
    e(f"v_lshl_add_u32 v{trow}, v{vHH}, 3, v{tr}")
    e(f"v_lshlrev_b32 v{trow}, 7, v{trow}")
    e(f"v_lshrrev_b32 v{tsw}, 1, v{tr}")
    vCOLP = U + 9
    c(" FFN gemm1: sw*64 + ch*32 + c*8")
    e(f"v_lshl_add_u32 v{vA01}, v{tsw}, 6, v{trow}")
    e(f"v_lshl_add_u32 v{vA01}, v{tch}, 5, v{vA01}")
    e(f"v_lshl_add_u32 v{vA01}, v{tc}, 3, v{vA01}")
    c(" gemm2 mapping: sw*64 + (c%2)*32 + ch*16 + (c/2)*8")
    e(f"v_and_b32 v{U+15}, 1, v{tc}")
    e(f"v_lshlrev_b32 v{vCOLP}, 6, v{tsw}")
    e(f"v_lshl_add_u32 v{vCOLP}, v{U+15}, 5, v{vCOLP}")
    e(f"v_lshl_add_u32 v{vCOLP}, v{tch}, 4, v{vCOLP}")
    e(f"v_lshrrev_b32 v{vT+2}, 1, v{tc}")
    e(f"v_lshl_add_u32 v{vCOLP}, v{vT+2}, 3, v{vCOLP}")
    e(f"v_add_u32 v{vBASE_G2}, v{vCOLP}, v{trow}")
    e(f"v_mul_u32_u24 v{vBASE_AG2}, 72, v{vHH}")
    e(f"v_add_u32 v{vBASE_AG2}, v{vBASE_AG2}, v{tr}")
    e(f"v_lshl_add_u32 v{vBASE_AG2}, v{vBASE_AG2}, 7, v{vCOLP}")
    c("dma lane decode")
    di, dj, dsw = U+10, U+11, U+12
    e(f"v_lshrrev_b32 v{di}, 3, v{vLANE}")
    e(f"v_and_b32 v{dj}, 7, v{vLANE}")
    e(f"v_bfe_u32 v{dsw}, v{di}, 1, 1")
    e(f"v_lshlrev_b32 v{U+13}, 2, v{dsw}")
    e(f"v_xor_b32 v{dj}, v{dj}, v{U+13}")
    e(f"v_lshlrev_b32 v{U+13}, 4, v{dj}")
    e(f"s_mul_i32 s{sT0}, s{sWAVE}, 48")
    e(f"v_add_u32 v{U+14}, s{sT0}, v{di}")
    e(f"v_mov_b32 v{vWO}, 0")
    for p_ in range(6): e(f"v_mov_b32 v{vD2+p_}, 0")
    e(f"s_cmp_eq_u32 s{sATT}, 1")
    e("s_cbranch_scc1 Lsetup_att")
    c("---- FFN setup")
    e(f"v_mul_u32_u24 v{U+14}, 9216, v{U+14}")
    e(f"v_add_u32 v{vD}, v{U+14}, v{U+13}")
    for p_ in range(1, 6): e(f"v_add_u32 v{vD+p_}, {p_*8*9216 - IMM[p_]}, v{vD}")
    c(" W2: row = 48w + 8*(i/4) + i%4")
    e(f"v_lshrrev_b32 v{U+14}, 2, v{di}")
    e(f"v_and_b32 v{U+15}, 3, v{di}")
    e(f"v_lshl_add_u32 v{U+14}, v{U+14}, 3, v{U+15}")
    e(f"v_add_u32 v{U+14}, s{sT0}, v{U+14}")
    e(f"v_mul_u32_u24 v{U+14}, 1152, v{U+14}")
    e(f"v_add_u32 v{vD2}, v{U+14}, v{U+13}")
    for p_ in range(1, 6): e(f"v_add_u32 v{vD2+p_}, {((p_//2)*16 + (p_%2)*4)*1152 - IMM[p_]}, v{vD2}")
    e(f"s_mov_b32 s{sSRD}, s{kw1}")
    e(f"s_and_b32 s{sSRD+1}, s{kw1+1}, 0xffff")
    e(f"s_mov_b32 s{sSRD+2}, {576*9216}")
    e(f"s_mul_i32 s{sSOFF}, s{sJOB}, 768")
    e(f"s_mov_b32 s{sINC}, {(128 - 2*192*9216) & 0xffffffff}")
    e(f"s_mov_b32 s{sINC+1}, {192*9216}")
    e(f"s_mov_b32 s{sINC+2}, {192*9216}")
    e(f"v_mov_b32 v{vS}, 0")
    e("s_branch Lsetup_done")
    lab("Lsetup_att")
    c("---- attention setup: ci = 9 + j/2 ; base = row*3456 + 16*(j%2) + 32*ci + 864")
    e(f"v_mov_b32 v{vA01}, v{vBASE_G2}")
    e(f"v_lshrrev_b32 v{U+15}, 1, v{dj}")
    e(f"v_add_u32 v{vCI}, 9, v{U+15}")
    e(f"v_lshlrev_b32 v{vCUR}, 5, v{vCI}")
    e(f"v_add_u32 v{vCUR}, 864, v{vCUR}")
    e(f"v_mul_u32_u24 v{U+14}, 3456, v{U+14}")
    e(f"v_add3_u32 v{vD}, v{U+14}, v{U+13}, 0")
    e(f"v_add_u32 v{vD}, 1152, v{vD}")
    for p_ in range(1, 6): e(f"v_add_u32 v{vD+p_}, {p_*8*3456 - IMM[p_]}, v{vD}")
    c(" Wo dma voffset: row=40w+i natural")
    e(f"s_mul_i32 s{sT1}, s{sWAVE}, 40")
    e(f"v_add_u32 v{U+14}, s{sT1}, v{di}")
    e(f"v_mul_u32_u24 v{U+14}, 1152, v{U+14}")
    e(f"v_add_u32 v{vWO}, v{U+14}, v{U+13}")
    e(f"s_mov_b32 s{sSRD}, s{kqkv}")
    e(f"s_and_b32 s{sSRD+1}, s{kqkv+1}, 0xffff")
    e(f"s_mov_b32 s{sSRD+2}, {576*3456}")
    e(f"s_sub_u32 s{sT1}, s{sJOB}, 12")
    e(f"s_mul_i32 s{sSOFF}, s{sT1}, 288")
    e(f"s_mov_b32 s{sINC}, {(- 2*192*3456) & 0xffffffff}")
    e(f"s_mov_b32 s{sINC+1}, {192*3456}")
    e(f"s_mov_b32 s{sINC+2}, {192*3456}")
    emit_list(att_delta())
    lab("Lsetup_done")
    e(f"s_mov_b32 s{sSRD+3}, 0x00020000")
    if NOW: e(f"s_mov_b32 s{sSRD+2}, 0")
    e(f"s_mov_b32 s{sMB0}, 0")
    e(f"s_mov_b32 s{sMB1}, {TOG}")
    e(f"s_mov_b32 s{sG}, 0")
    e(f"s_mov_b32 s{sIDX}, 0")
    e(f"s_mov_b32 s{sIDX+1}, 0")
    e(f"v_xor_b32 v{vB01}, 64, v{vA01}")
    e(f"v_add_u32 v{vA2}, {2*SLOT}, v{vA01}")
    e(f"v_add_u32 v{vB2}, {2*SLOT}, v{vB01}")
    e(f"v_mov_b32 v{vMASKA}, {TOG}")
    c("partial store: voffset = lane*16 ; soffset base = ((rb*16+job)*4+wave)*36864")
    e(f"v_lshlrev_b32 v{vST}, 4, v{vLANE}")
    e(f"s_lshl_b32 s{sT0}, s{sRB}, 4")
    e(f"s_add_u32 s{sT0}, s{sT0}, s{sJOB}")
    e(f"s_lshl_b32 s{sT0}, s{sT0}, 2")
    e(f"s_add_u32 s{sT0}, s{sT0}, s{sWAVE}")
    e(f"s_mul_i32 s{sSTOFF}, s{sT0}, 36864")
    if NOST: e(f"s_mov_b32 s{sSTOFF}, 0x40000000")
    c("---- read x frags, row sums (sum of squares only where rstd is needed)")
    s0 = 16
    for i in range(8): e(f"v_mov_b32 v{s0+i}, 0")
    def sums(cg):
        for i in range(16):
            e(f"v_dot2c_f32_bf16 v{s0+i%4}, s{sONES}, v{X+16*cg+i}")
        for i in range(16):
            e(f"v_dot2c_f32_bf16 v{s0+4+i%4}, v{X+16*cg+i}, v{X+16*cg+i}")
    e(f"s_cmp_eq_u32 s{sATT}, 1")
    for cg in range(9):
        e(f"s_waitcnt vmcnt({39 - 4*(cg+1)})")
        for q in range(4):
            s_ = 4 * cg + q
            e(f"ds_read_b128 {vr(X+4*s_,4)}, v{vT+6+q} offset:{cg*1024}")
        if cg > 0:
            e("s_waitcnt lgkmcnt(4)")
            sums(cg - 1)
        if PFW1 >= 2 and cg == 8:
            pf_srd(kw1, 576*9216, sPF2)
            e(f"v_min_u32 v{vT}, 40, v{vLANE}")
            e(f"v_lshlrev_b32 v{vT}, 7, v{vT}")
            e(f"s_lshl_b32 s{sT0}, s2, 2")
            e(f"s_add_u32 s{sT0}, s{sT0}, s{sWAVE}")
            e(f"s_mul_i32 s{sT1}, s{sT0}, {41*128}")
            e(f"buffer_load_dword a63, v{vT}, {sr(sPF2,4)}, s{sT1} offen")
            e(f"s_cmp_eq_u32 s{sATT}, 1")
    e("s_waitcnt lgkmcnt(0)")
    e("s_barrier")
    stamp(3)
    sums(8)
    prime = []
    for t_ in range(5):
        for p_ in range(6 if t_ < 4 else 3):
            o = []
            if p_ in (0, 4):
                o += [f"s_add_u32 m0, s{sW6K}, {t_*SLOT + (4096 if p_ == 4 else 0)}", "s_nop 0"]
            o += dma_ld(p_)
            if t_ == 2: o += [f"v_add_u32 v{vD+p_}, v{vD+p_}, v{vS}"]
            if t_ < 4 and p_ == 5: o += [f"s_add_u32 s{sSOFF}, s{sSOFF}, s{sINC + (0 if t_ == 2 else 1)}"]
            prime.append(o)
    for _ in range(3): emit_list(prime.pop(0))
    c("---- LN")
    q0 = s0 + 4
    for b_ in (s0, q0):
        e(f"v_add_f32 v{b_}, v{b_}, v{b_+1}")
        e(f"v_add_f32 v{b_+2}, v{b_+2}, v{b_+3}")
        e(f"v_add_f32 v{b_}, v{b_}, v{b_+2}")
        e(f"v_mov_b32 v{b_+1}, v{b_}")
        e("s_nop 1")
        e(f"v_permlane32_swap_b32 v{b_}, v{b_+1}")
        e("s_nop 1")
        e(f"v_add_f32 v{b_}, v{b_}, v{b_+1}")
        e(f"v_mul_f32 v{b_}, {1.0/576:.9e}, v{b_}")
    e(f"v_fma_f32 v{q0}, -v{s0}, v{s0}, v{q0}")
    emit_list(round_bf16(s0, s0+2))
    e(f"v_sub_f32 v{s0+2}, 0, v{s0}")
    negm = s0 + 2
    e(f"v_max_f32 v{q0}, 0, v{q0}")
    emit_list(round_bf16(q0, q0+1))
    e(f"v_add_f32 v{q0}, 0x3727c5ac, v{q0}")
    emit_list(round_bf16(q0, q0+1))
    e(f"v_sqrt_f32 v{q0}, v{q0}")
    e("s_nop 0")
    emit_list(round_bf16(q0, q0+1))
    e(f"v_rcp_f32 v{vRSTD}, v{q0}")
    t = 32
    for b in range(0, 152, 4):
        tb = t + (8 if (b // 4) % 2 else 0)
        if b < 144:
            for i in range(4):
                e(f"v_dot2_f32_bf16 v{tb+2*i}, v{X+b+i}, s{sSELLO}, v{negm}")
                e(f"v_dot2_f32_bf16 v{tb+2*i+1}, v{X+b+i}, s{sSELHI}, v{negm}")
        else: e("s_nop 2")
        if 0 < b <= 144:
            pb = t + (8 if (b // 4 - 1) % 2 else 0)
            for i in range(4):
                e(f"v_cvt_pk_bf16_f32 v{X+b-4+i}, v{pb+2*i}, v{pb+2*i+1}")
        if b > 4 and b - 8 < 4 * NXA:
            for i in range(4): e(f"v_accvgpr_write_b32 a{XA+b-8+i}, v{X+b-8+i}")
        if prime and (b // 4) % 3 != 2: emit_list(prime.pop(0))
    while prime: emit_list(prime.pop(0))
    stamp(4)
    c("stage 0 landed?")
    e("s_waitcnt vmcnt(21)")
    e("s_barrier")
    stamp(5)
    for i in range(D):
        emit_list(tr_reads(i % R, vA01, i * 2048, 512))
    e(f"s_cmp_lt_u32 s{sWAVE}, 2")
    e("s_cbranch_scc0 Lno3")
    emit_list(dma_ld(3))
    lab("Lno3")
    e(f"buffer_load_dword a63, v{vMASKA}, {sr(sDBG,4)}, 0 offen")
    e(f"s_lshl_b32 s{sT0}, s{sATT}, 2")
    e(f"s_add_u32 s{sT0}, s{sT0}, s{sWAVE}")
    for k_ in range(1, 8):
        e(f"s_cmp_eq_u32 s{sT0}, {k_}")
        e(f"s_cbranch_scc1 Lp1_{'a' if k_ >= 4 else 'f'}{k_ % 4}")
    for w in range(4):
        c(f"================ FFN wave {w}")
        phase1(False, w)
        stamp(6)
        e(f"s_mov_b32 s{sT2}, 0x40000000")
        for i in range(8): e(f"v_pk_max_i16 v{H+80+i}, v{PK[0]+i}, 0")
        for i in range(4):
            e(f"buffer_store_dwordx4 {vr(PK[0],4)}, v{vST}, {sr(sWS,4)}, s{sT2} offen")
        e(f"v_xor_b32 v{vA2}, 64, v{vBASE_G2}")
        e(f"v_xor_b32 v{vB01}, 64, v{vBASE_G2}")
        e(f"s_mov_b32 s{sG}, 0")
        e(f"s_mov_b32 s{sRD}, 0")
        e(f"s_mov_b32 s{sMB0}, 0")
        e(f"s_mov_b32 s{sMB1}, {4*SLOT}")
        e("s_nop 3")
        for i in range(8): e(f"v_cvt_pk_bf16_f32 v{PK[1]+i}, v{ACC[1]+2*i}, v{ACC[1]+2*i+1}")
        for i in range(8): e(f"v_pk_max_i16 v{H+88+i}, v{PK[1]+i}, 0")
        phase2(w)
        if w < 3: e("s_branch Lffn_end")
    lab("Lffn_end")
    st_ = lambda r, off: e(f"buffer_store_dwordx4 {vr(r,4)}, v{vST}, {sr(sWS,4)}, s{sT2} offen offset:{off} sc0 sc1")
    st_(PK[0], 0); st_(PK[0] + 4, 1024)
    e("s_nop 7")
    e("s_nop 3")
    for i in range(8):
        e(f"v_cvt_pk_bf16_f32 v{PK[1]+i}, v{ACC[1]+2*i}, v{ACC[1]+2*i+1}")
    st_(PK[1], 2048); st_(PK[1] + 4, 3072)
    stamp(7)
    reduce_tail()
    if PROF: e("s_waitcnt vmcnt(0)")
    prof_out()
    e("s_endpgm")
    emit_list(RARE)
    c("halo publish / flag (attention wave 3)")
    lab("Lpub")
    e(f"s_lshl_b32 s{sT0}, s{sRB}, 2")
    e(f"s_add_u32 s{sT0}, s{sT0}, s{sJOB}")
    e(f"s_sub_u32 s{sT0}, s{sT0}, 12")
    e(f"s_cmp_eq_u32 s{sG}, 5")
    e("s_cbranch_scc0 Lflag")
    e(f"s_mul_i32 s{sT0}, s{sT0}, 9216")
    e(f"s_add_u32 s{sT0}, s{sT0}, {HALO_OFF}")
    e(f"v_and_b32 v{vS+2}, 15, v{vM}")
    e(f"v_mul_u32_u24 v{vS+2}, 576, v{vS+2}")
    e(f"v_lshl_add_u32 v{vS+2}, v{vHH}, 5, v{vS+2}")
    e(f"v_cmp_lt_u32 vcc, 15, v{vM}")
    e(f"s_and_saveexec_b64 {sr(sEX,2)}, vcc")
    for u in range(18):
        e(f"buffer_store_dwordx4 {vr(H+4*u,4)}, v{vS+2}, {sr(sWS,4)}, s{sT0} offen offset:{64*(u//2)+16*(u%2)} sc0 sc1")
    e(f"s_mov_b64 exec, {sr(sEX,2)}")
    e("s_nop 3")
    e("s_branch Lpubr")
    lab("Lflag")
    e("s_waitcnt vmcnt(16)")
    e(f"s_lshl_b32 s{sT0}, s{sT0}, 2")
    signal(0x10000, sT0)
    e("s_branch Lpubr")
    for w in range(4):
        c(f"================ attention wave {w}")
        phase1(True, w)
        if w < 3: e("s_branch Latt")
    attention()
    lab("Lend1")
    e("s_endpgm")

def wo_stage(j):
    o = []
    for p in range(5):
        o.append(f"s_add_u32 m0, s{sCUR}, {(j % 6) * SLOT + p * 1024}")
        o.append(f"s_add_u32 s{sT1}, s{sT3}, {p * 8 * 1152 + j * 128}")
        o.append(f"buffer_load_dwordx4 v{vWO}, {sr(sSRD,4)}, s{sT1} offen lds")
    return o

def attention():
    lab("Latt")
    stamp(6)
    Q = 16
    QBASE, QSTR = 30720, 336
    e(f"s_mov_b32 s{sSRD}, s{kwo}")
    e(f"s_and_b32 s{sSRD+1}, s{kwo+1}, 0xffff")
    e(f"s_mov_b32 s{sSRD+2}, {0 if NOW else 576*1152}")
    e(f"s_mul_i32 s{sCUR}, s{sWAVE}, 5120")
    e(f"s_sub_u32 s{sT3}, s{sJOB}, 12")
    e(f"s_mul_i32 s{sT3}, s{sT3}, {144*1152}")
    wa = 192
    e(f"s_lshl_b32 s{sT0}, s{sWAVE}, 5")
    e("s_nop 7")
    e(f"v_add_u32 v{wa+2}, s{sT0}, v{vM}")
    e(f"v_mul_u32_u24 v{wa}, {KVSTR}, v{wa+2}")
    e(f"v_add_u32 v{wa}, {KVBASE + 16*KVSTR}, v{wa}")
    e(f"v_lshl_add_u32 v{wa+3}, v{vHH}, 5, v{wa}")
    e(f"v_mul_u32_u24 v{wa+4}, {QSTR}, v{wa+2}")
    e(f"v_add_u32 v{wa+4}, {QBASE}, v{wa+4}")
    e(f"v_lshl_add_u32 v{wa+5}, v{vHH}, 5, v{wa+4}")
    e(f"v_mul_u32_u24 v{wa+1}, 144, v{vHH}")
    e(f"v_add_u32 v{wa}, v{wa}, v{wa+1}")
    e(f"v_add_u32 v{wa+4}, v{wa+4}, v{wa+1}")
    e(f"v_lshlrev_b32 v{wa+1}, 1, v{wa+1}")
    for i in range(16): e(f"v_mul_f32 v{ACC[1]+i}, v{ACC[1]+i}, v{vRSTD}")
    for i in range(8): e(f"v_cvt_pk_bf16_f32 v{H+104+i}, v{ACC[1]+2*i}, v{ACC[1]+2*i+1}")
    e("s_waitcnt vmcnt(0) lgkmcnt(0)")
    e("s_barrier")
    c("Wo stage 0")
    emit_list(wo_stage(0))
    c("write q,k,v to LDS")
    for u in range(10):
        e(f"ds_write_b128 v{wa+5}, {vr(H+72+4*u,4)} offset:{64*(u//2)+16*(u%2)}")
    for u in range(18):
        e(f"ds_write_b128 v{wa+3}, {vr(H+4*u,4)} offset:{64*(u//2)+16*(u%2)}")
    for i in range(9):
        e(f"ds_read_b128 {vr(Q+4*i,4)}, v{wa+4} offset:{16*i}")
    kva = vT
    e("s_waitcnt lgkmcnt(9)")
    e(f"v_mov_b32 v{kva}, v{wa}")
    e(f"v_mov_b32 v{kva+1}, v{wa+1}")
    c("halo (wave 0)")
    e(f"s_cmp_eq_u32 s{sWAVE}, 0")
    e("s_cbranch_scc0 Lhalo_done")
    HB = 112
    e(f"v_and_b32 v{kva+2}, 15, v{vM}")
    e(f"v_lshrrev_b32 v{kva+3}, 4, v{vM}")
    e(f"v_mul_u32_u24 v{kva+3}, 144, v{kva+3}")
    e(f"v_add_u32 v{kva+3}, v{kva+3}, v{kva+1}")
    e(f"v_mul_u32_u24 v{kva+4}, 576, v{kva+2}")
    e(f"v_add_u32 v{kva+4}, v{kva+4}, v{kva+3}")
    e(f"v_mul_u32_u24 v{kva+5}, {KVSTR}, v{kva+2}")
    e(f"v_add_u32 v{kva+5}, v{kva+5}, v{kva+3}")
    e(f"v_add_u32 v{kva+5}, {KVBASE}, v{kva+5}")
    for i in range(36): e(f"v_mov_b32 v{HB+i}, 0")
    e(f"s_cmp_eq_u32 s{sRB}, 0")
    e("s_cbranch_scc1 Lhalo_wr")
    e(f"s_lshl_b32 s{sT0}, s{sRB}, 2")
    e(f"s_add_u32 s{sT0}, s{sT0}, s{sJOB}")
    e(f"s_sub_u32 s{sT0}, s{sT0}, 16")
    e(f"s_lshl_b32 s{sT1}, s{sT0}, 2")
    poll("h", sT1, 16, 1, 1, kva+6)
    e(f"s_mul_i32 s{sT0}, s{sT0}, 9216")
    e(f"s_add_u32 s{sT0}, s{sT0}, {HALO_OFF}")
    for i in range(9):
        e(f"buffer_load_dwordx4 {vr(HB+4*i,4)}, v{kva+4}, {sr(sWS,4)}, s{sT0} offen offset:{16*i} sc0 sc1")
    e("s_waitcnt vmcnt(0)")
    lab("Lhalo_wr")
    for i in range(9):
        e(f"ds_write_b128 v{kva+5}, {vr(HB+4*i,4)} offset:{16*i}")
    lab("Lhalo_done")
    e("s_waitcnt lgkmcnt(0)")
    e("s_barrier")
    stamp(7)
    for j in range(1, 3): emit_list(wo_stage(j))
    c("QK^T")
    LG = 52
    KB = [112, 148]
    e(f"v_subrev_u32 v{kva}, {14*KVSTR}, v{kva}")
    for i in range(32): e(f"v_mov_b32 v{LG+i}, 0")
    def rd(w, buf, voff):
        for i in range(9):
            e(f"ds_read_b128 {vr(KB[buf]+4*i,4)}, v{kva} offset:{(14-2*w)*KVSTR + voff + 16*i}")
    rd(0, 0, 0)
    for w in range(8):
        if w < 7: rd(w + 1, (w + 1) % 2, 0)
        else: rd(0, 0, 288)
        e("s_waitcnt lgkmcnt(9)")
        b = KB[w % 2]
        for i in range(9):
            for h in range(4):
                e(f"v_dot2c_f32_bf16 v{LG+8*h+w}, v{Q+9*h+i}, v{b+9*h+i}")
    c("mask + softmax")
    e(f"s_lshl_b32 s{sT0}, s{sRB}, 7")
    e(f"s_lshl_b32 s{sT1}, s{sWAVE}, 5")
    e(f"s_add_u32 s{sT0}, s{sT0}, s{sT1}")
    e(f"v_add_u32 v{kva+2}, s{sT0}, v{vM}")
    e(f"v_mov_b32 v{kva+3}, 0xce6e6b28")
    sc = (18 ** -0.5)
    for i in range(32):
        emit_list(round_bf16(LG+i, kva+4+(i % 4)))
    import struct
    for i in range(32):
        e(f"v_mul_f32 v{LG+i}, {sc:.9e}, v{LG+i}")
    for i in range(32):
        emit_list(round_bf16(LG+i, kva+4+(i % 4)))
    for w in range(1, 8):
        e(f"v_cmp_le_u32 vcc, {2*w}, v{kva+2}")
        e("s_nop 1")
        for h in range(4):
            e(f"v_cndmask_b32 v{LG+8*h+w}, v{kva+3}, v{LG+8*h+w}, vcc")
    MX = kva + 4
    for h in range(4):
        b = LG + 8 * h
        e(f"v_max3_f32 v{MX+h}, v{b}, v{b+1}, v{b+2}")
        e(f"v_max3_f32 v{MX+h}, v{MX+h}, v{b+3}, v{b+4}")
        e(f"v_max3_f32 v{MX+h}, v{MX+h}, v{b+5}, v{b+6}")
        e(f"v_max_f32 v{MX+h}, v{MX+h}, v{b+7}")
    for h in range(4):
        for w in range(8):
            e(f"v_sub_f32 v{LG+8*h+w}, v{LG+8*h+w}, v{MX+h}")
    for i in range(32): e(f"v_mul_f32 v{LG+i}, 0x3fb8aa3b, v{LG+i}")
    for i in range(32): e(f"v_exp_f32 v{LG+i}, v{LG+i}")
    e("s_nop 0")
    for h in range(4):
        b = LG + 8 * h
        e(f"v_add_f32 v{MX+h}, v{b}, v{b+1}")
    for w in range(2, 8):
        for h in range(4):
            e(f"v_add_f32 v{MX+h}, v{MX+h}, v{LG+8*h+w}")
    for h in range(4): e(f"v_rcp_f32 v{MX+h}, v{MX+h}")
    e("s_nop 0")
    for h in range(4):
        for w in range(8):
            e(f"v_mul_f32 v{LG+8*h+w}, v{LG+8*h+w}, v{MX+h}")
    PLO, PHI = LG, 16
    for i in range(32):
        e(f"v_cvt_pk_bf16_f32 v{PLO+i}, v{LG+i}, 0")
    for i in range(32):
        e(f"v_lshlrev_b32 v{PHI+i}, 16, v{PLO+i}")
    O = 184
    for i in range(72): e(f"v_mov_b32 v{O+i}, 0")
    c("PV")
    for w in range(8):
        if w < 7:
            rd(w + 1, (w + 1) % 2, 288)
            e("s_waitcnt lgkmcnt(9)")
        else:
            e("s_waitcnt lgkmcnt(0)")
        b = KB[w % 2]
        for i in range(36):
            h = i // 9
            e(f"v_dot2c_f32_bf16 v{O+2*i}, v{b+i}, v{PLO+8*h+w}")
            e(f"v_dot2c_f32_bf16 v{O+2*i+1}, v{b+i}, v{PHI+8*h+w}")
    e("s_barrier")
    stamp(8)
    c("kv area free: Wo stages 3..5")
    for j in range(3, 6): emit_list(wo_stage(j))
    OP = 112
    for i in range(36):
        e(f"v_cvt_pk_bf16_f32 v{OP+i}, v{O+2*i}, v{O+2*i+1}")
    c("gemm2 (attention): 9 stages x 18 slots, unrolled")
    e("s_waitcnt vmcnt(25)")
    e("s_barrier")
    R2, D2 = 9, 5
    AB = 148
    for q in range(6):
        e(f"v_add_u32 v{AB+2*q}, {q*SLOT}, v{vBASE_AG2}")
        e(f"v_xor_b32 v{AB+2*q+1}, 64, v{AB+2*q}")
    n = 9 * 18
    def rds(i):
        j, w = divmod(i, 18)
        t, ks = divmod(w, 9)
        return tr_reads(i % R2, AB + 2 * (j % 6) + t, ks * 1024, 512)
    for i in range(D2): emit_list(rds(i))
    vmq = [("wo", j) for j in range(6) for _ in range(5)]
    fill = {}
    for i in range(n):
        j, w = divmod(i, 18)
        t, ks = divmod(w, 9)
        if i + D2 < n:
            emit_list(rds(i + D2))
            e(f"s_waitcnt lgkmcnt({2*D2})")
        else:
            e(f"s_waitcnt lgkmcnt({2*(n-1-i)})")
        acc = vr(ACC[t], 16)
        e(f"v_mfma_f32_32x32x16_bf16 {acc}, {ar(FR+4*(i%R2),4)}, {vr(OP+4*ks,4)}, {'0' if ks == 0 else acc}")
        if w == 8 and j < 8:
            idx = max(k for k, x in enumerate(vmq) if x == ("wo", j + 1))
            e(f"s_waitcnt vmcnt({len(vmq) - 1 - idx})")
            e("s_barrier")
            if j >= 1 and j + 5 < 9:
                emit_list(wo_stage(j + 5))
                vmq += [("wo", j + 5)] * 5
        if 12 <= w <= 15:
            for i2 in (2 * (w - 12), 2 * (w - 12) + 1):
                e(f"v_cvt_pk_bf16_f32 v{PK[0]+i2}, v{ACC[0]+2*i2}, v{ACC[0]+2*i2+1}")
        if w in (16, 17):
            hf = w - 16
            e(f"s_add_u32 s{sT0}, s{sSTOFF}, {j*4096}")
            e(f"buffer_store_dwordx4 {vr(PK[0]+4*hf,4)}, v{vST}, {sr(sWS,4)}, s{sT0} offen offset:{1024*hf} sc0 sc1")
            vmq.append(("st", 0))
        if j > 0 and 3 <= w <= 6:
            for i2 in (2 * (w - 3), 2 * (w - 3) + 1):
                e(f"v_cvt_pk_bf16_f32 v{PK[1]+i2}, v{ACC[1]+2*i2}, v{ACC[1]+2*i2+1}")
        if j > 0 and w == 7:
            e(f"s_add_u32 s{sT0}, s{sSTOFF}, {(j-1)*4096}")
            for hf in range(2):
                e(f"buffer_store_dwordx4 {vr(PK[1]+4*hf,4)}, v{vST}, {sr(sWS,4)}, s{sT0} offen offset:{2048+1024*hf} sc0 sc1")
                vmq.append(("st", 0))
    e("s_nop 7")
    e("s_nop 3")
    for i2 in range(8):
        e(f"v_cvt_pk_bf16_f32 v{PK[1]+i2}, v{ACC[1]+2*i2}, v{ACC[1]+2*i2+1}")
    e(f"s_add_u32 s{sT0}, s{sSTOFF}, {8*4096}")
    for hf in range(2):
        e(f"buffer_store_dwordx4 {vr(PK[1]+4*hf,4)}, v{vST}, {sr(sWS,4)}, s{sT0} offen offset:{2048+1024*hf} sc0 sc1")
    e(f"s_lshl_b32 s{sT0}, s{sRB}, 2")
    e(f"s_add_u32 s{sT0}, s{sT0}, s{sWAVE}")
    e(f"s_lshl_b32 s{sT0}, s{sT0}, 2")
    e("s_waitcnt vmcnt(0)")
    signal(0x100, sT0)
    stamp(9)
    prof_out()
    e("s_endpgm")

def k2():
    kn = "k2_kernel"
    L.append(f".globl {kn}\n.p2align 8\n.type {kn},@function")
    lab(kn)
    e("s_cmp_ge_u32 s2, 576")
    e("s_cbranch_scc1 Lend2")
    e("s_load_dwordx2 s[4:5], s[0:1], 0")
    e("s_load_dwordx2 s[6:7], s[0:1], 48")
    e("s_load_dwordx2 s[8:9], s[0:1], 64")
    if PROF: e("s_memrealtime s[32:33]")
    e("v_lshrrev_b32 v1, 6, v0")
    e("v_and_b32 v2, 63, v0")
    e("v_readfirstlane_b32 s3, v1")
    c("rb = wg/36 ; wv = (wg%36)*4+wave")
    e("s_mul_i32 s10, s2, 1821")
    e("s_lshr_b32 s10, s10, 16")
    e("s_mul_i32 s11, s10, 36")
    e("s_sub_u32 s11, s2, s11")
    e("s_lshl_b32 s11, s11, 2")
    e("s_add_u32 s11, s11, s3")
    e("s_mul_i32 s24, s11, 1821")
    e("s_lshr_b32 s24, s24, 16")
    e("s_mul_i32 s25, s24, 36")
    e("s_sub_u32 s25, s11, s25")
    e("s_and_b32 s26, s25, 1")
    e("s_lshr_b32 s25, s25, 1")
    c("partial offset = rb*16*PCHUNK + wv*1024 + lane*16")
    e(f"s_mul_i32 s27, s10, {16*PCHUNK}")
    e("s_lshl_b32 s28, s11, 10")
    e("s_add_u32 s27, s27, s28")
    e("v_lshlrev_b32 v3, 4, v2")
    c("x/out offset = (128rb+32r+lane%32)*1152 + tile*64 + (lane/32)*32 + half*16")
    e("s_lshl_b32 s28, s10, 7")
    e("s_lshl_b32 s29, s24, 5")
    e("s_add_u32 s28, s28, s29")
    e("s_mul_i32 s28, s28, 1152")
    e("s_lshl_b32 s29, s25, 6")
    e("s_add_u32 s28, s28, s29")
    e("s_lshl_b32 s29, s26, 4")
    e("s_add_u32 s28, s28, s29")
    e("v_and_b32 v4, 31, v2")
    e("v_mul_u32_u24 v4, 1152, v4")
    e("v_lshrrev_b32 v5, 5, v2")
    e("v_lshl_add_u32 v4, v5, 5, v4")
    e("s_mov_b32 s30, 0x00003f80")
    e("s_mov_b32 s31, 0x3f800000")
    e("s_waitcnt lgkmcnt(0)")
    for (s, k, sz) in ((12, 4, 2048*1152), (16, 6, 2048*1152), (20, 8, WS_BYTES)):
        e(f"s_mov_b32 s{s}, s{k}")
        e(f"s_and_b32 s{s+1}, s{k+1}, 0xffff")
        e(f"s_mov_b32 s{s+2}, {sz}")
        e(f"s_mov_b32 s{s+3}, 0x00020000")
    P = 32
    for j in range(16):
        e(f"buffer_load_dwordx4 {vr(P+4*j,4)}, v3, s[20:23], s27 offen")
        if j < 15: e(f"s_add_u32 s27, s27, {PCHUNK}")
    e("buffer_load_dwordx4 v[28:31], v4, s[12:15], s28 offen")
    e("s_lshl_b32 s27, s10, 9")
    e("s_lshl_b32 s29, s24, 7")
    e("s_add_u32 s27, s27, s29")
    e(f"s_add_u32 s27, s27, {RSTD_OFF}")
    e("v_and_b32 v5, 31, v2")
    e("v_lshlrev_b32 v5, 2, v5")
    e("buffer_load_dword v6, v5, s[20:23], s27 offen")
    F, S = 8, 16
    for i in range(16): e(f"v_mov_b32 v{F+i}, 0")
    for j in range(16):
        e(f"s_waitcnt vmcnt({17-j})")
        a = F if j < 12 else S
        for i in range(4):
            e(f"v_dot2c_f32_bf16 v{a+2*i}, s30, v{P+4*j+i}")
            e(f"v_dot2c_f32_bf16 v{a+2*i+1}, s31, v{P+4*j+i}")
    e("s_nop 2")
    T = 32
    e("s_waitcnt vmcnt(0)")
    for i in range(8): e(f"v_mul_f32 v{F+i}, v{F+i}, v6")
    c("f,s -> bf16")
    for i in range(8):
        e(f"v_cvt_pk_bf16_f32 v{T+i}, v{F+2*i}, v{F+2*i+1}")
    for i in range(8):
        e(f"v_lshlrev_b32 v{F+2*i}, 16, v{T+i}")
        e(f"v_and_b32 v{F+2*i+1}, 0xffff0000, v{T+i}")
    c("g = silu(f) = f/(1+exp(-f))")
    for i in range(8): e(f"v_mul_f32 v{T+i}, 0xbfb8aa3b, v{F+i}")
    for i in range(8): e(f"v_exp_f32 v{T+i}, v{T+i}")
    for i in range(8): e(f"v_add_f32 v{T+i}, 1.0, v{T+i}")
    for i in range(8): e(f"v_rcp_f32 v{T+i}, v{T+i}")
    for i in range(8): e(f"v_mul_f32 v{F+i}, v{F+i}, v{T+i}")
    for i in range(4): e(f"v_cvt_pk_bf16_f32 v{T+i}, v{F+2*i}, v{F+2*i+1}")
    for i in range(4):
        e(f"v_lshlrev_b32 v{F+2*i}, 16, v{T+i}")
        e(f"v_and_b32 v{F+2*i+1}, 0xffff0000, v{T+i}")
    for i in range(8): e(f"v_mul_f32 v{F+i}, v{F+i}, v{S+i}")
    for i in range(4): e(f"v_cvt_pk_bf16_f32 v{T+i}, v{F+2*i}, v{F+2*i+1}")
    e("s_waitcnt vmcnt(0)")
    for i in range(4):
        e(f"v_lshlrev_b32 v{F+2*i}, 16, v{T+i}")
        e(f"v_and_b32 v{F+2*i+1}, 0xffff0000, v{T+i}")
        e(f"v_lshlrev_b32 v{S+2*i}, 16, v{28+i}")
        e(f"v_and_b32 v{S+2*i+1}, 0xffff0000, v{28+i}")
    for i in range(8): e(f"v_add_f32 v{F+i}, v{F+i}, v{S+i}")
    for i in range(4): e(f"v_cvt_pk_bf16_f32 v{T+i}, v{F+2*i}, v{F+2*i+1}")
    e(f"buffer_store_dwordx4 {vr(T,4)}, v4, s[16:19], s28 offen")
    if PROF:
        e("s_waitcnt vmcnt(0)")
        e("s_memrealtime s[34:35]")
        e("s_waitcnt lgkmcnt(0)")
        e("s_lshl_b32 s36, s2, 2")
        e("s_add_u32 s36, s36, s3")
        e("s_lshl_b32 s36, s36, 4")
        e(f"s_add_u32 s36, s36, {65<<20}")
        e("v_mov_b32 v1, 0")
        e("v_mov_b32 v8, s32")
        e("v_mov_b32 v9, 0")
        e("v_mov_b32 v10, s34")
        e("v_mov_b32 v11, 0")
        e("v_cmp_eq_u32 vcc, 0, v2")
        e("s_and_saveexec_b64 s[38:39], vcc")
        e("buffer_store_dwordx4 v[8:11], v1, s[20:23], s36 offen")
        e("s_waitcnt vmcnt(0)")
    lab("Lend2")
    e("s_endpgm")

def desc(kn, vg, acc, sg):
    return f""".amdhsa_kernel {kn}
  .amdhsa_next_free_vgpr {vg}
  .amdhsa_next_free_sgpr {sg}
  .amdhsa_accum_offset {acc}
  .amdhsa_group_segment_fixed_size 0
  .amdhsa_kernarg_size 72
  .amdhsa_user_sgpr_count 2
  .amdhsa_user_sgpr_kernarg_segment_ptr 1
  .amdhsa_system_sgpr_workgroup_id_x 1
.end_amdhsa_kernel
"""

def main(out):
    hdr = open(f"cdna_kernels/{NAME}.s.ref").read().split("; Override")[0]
    L.append(hdr.rstrip("\n"))
    L.append("; @launch grid=(256,1,1) block=(256,1,1) lds=163840")
    L.append('.amdgcn_target "amdgcn-amd-amdhsa--gfx950"')
    L.append(".text")
    k1()
    L.append('.section .rodata,"a"')
    L.append(".p2align 6")
    L.append(desc(NAME + "_kernel", 512, 256, 102))
    open(out, "w").write("\n".join(L) + "\n")

if __name__ == "__main__":
    main(sys.argv[1] if len(sys.argv) > 1 else f"cdna_kernels/{NAME}.s")
```

```python
import sys
NAME = "recurrent_scan__sliding_local_dilated__dense_activation_relu__prompt"
L = []
def e(s): L.append("    " + s)
def lab(s): L.append(s + ":")
def c(s): L.append("    ; " + s)

SLOT = 24576
NSLOT = 6
KVBASE = 73728
KVSTR = 592
PCHUNK = 147456
HALO_OFF = 256 * PCHUNK
WS_BYTES = HALO_OFF + 64 * 9216
D = 6
R = 8

RSTD_OFF = WS_BYTES
WS_BYTES += 8192
WCOPY = 4
vTID, vLANE, vM, vHH = 0, 1, 2, 3
vA01, vB01, vA2, vB2, vMASKA, vWO = 4, 5, 6, 7, 8, 9
vRSTD, vST, vCI, vCUR, vBASE_G2, vBASE_AG2 = 10, 11, 12, 13, 14, 15
ACC = [16, 32]
PK = [48, 56]
vD, vD2 = 64, 70
vS = 76
H = 80
vT = 96
U = 80
X = 112
NXA = 20
XA = 64
FR = 0
sSRD, sX, sWS, sDBG = 4, 8, 12, 16
sWAVE, sRB, sJOB, sATT = 20, 21, 22, 23
sSOFF, sINC = 24, 25
sMB0, sMB1, sRD, sG, sIDX = 28, 29, 30, 31, 32
sONES, sSELLO, sSELHI = 41, 42, 43
sT0, sT1, sT2, sT3 = 54, 55, 56, 57
sSTOFF, sW6K, sCUR = 58, 59, 60
sK = 64
sEX = 84
kx, kqkv, kwo, kw1, kw2, kdbg, kws = sK, sK+2, sK+4, sK+8, sK+10, sK+14, sK+16
TOG = 0x12000
def xop(s_): return f"a[{XA+4*s_}:{XA+4*s_+3}]" if s_ < NXA else f"v[{X+4*s_}:{X+4*s_+3}]"
import os
PROF = os.environ.get("PROF", "0") == "1"
if PROF: WS_BYTES = 128 << 20
def stamp(i, real=False):
    if not PROF: return
    e(("s_memrealtime" if real else "s_memtime") + " s[86:87]")
    e("s_waitcnt lgkmcnt(0)")
    e(f"s_mov_b32 s{88+i}, s86")
def prof_out():
    if not PROF: return
    stamp(1, True)
    e(f"s_lshl_b32 s86, s2, 2")
    e(f"s_add_u32 s86, s86, s{sWAVE}")
    e(f"s_lshl_b32 s86, s86, 7")
    e(f"s_add_u32 s86, s86, {64<<20}")
    e("v_mov_b32 v1, 0")
    e("v_mov_b32 v3, 0")
    e("v_cmp_eq_u32 vcc, 0, v0")
    e("v_and_b32 v0, 63, v0")
    e("v_cmp_eq_u32 vcc, 0, v0")
    e(f"s_and_saveexec_b64 {sr(sEX,2)}, vcc")
    for i in range(12):
        e(f"v_mov_b32 v2, s{88+i}")
        e(f"buffer_store_dwordx2 v[2:3], v1, {sr(sWS,4)}, s86 offen offset:{8*i}")
        e("s_nop 1")
    e("s_waitcnt vmcnt(0)")
NOW = os.environ.get("NOW", "0") == "1"
NOST = os.environ.get("NOST", "0") == "1"
NODMA = os.environ.get("NODMA", "0") == "1"
NORD = os.environ.get("NORD", "0") == "1"
LIN = os.environ.get("LIN", "0") == "1"
NOPF = os.environ.get("NOPF", "0") == "1"
sPF = 44
sPF2, sPFO, sPFO2 = 48, 52, 53
vPF = 79
PFW1 = int(os.environ.get("PFW1", "1"))
PFN = int(os.environ.get("PFN", "14"))
def pf_srd(k, sz, r=sPF):
    e(f"s_mov_b32 s{r}, s{k}")
    e(f"s_and_b32 s{r+1}, s{k+1}, 0xffff")
    e(f"s_mov_b32 s{r+2}, {0 if (NOW or NOPF) else sz}")
    e(f"s_mov_b32 s{r+3}, 0x00020000")
uid = [0]
def newlab(p):
    uid[0] += 1
    return f"L{p}_{uid[0]}"

def vr(b, n): return f"v[{b}:{b+n-1}]"
def ar(b, n): return f"a[{b}:{b+n-1}]"
def sr(b, n): return f"s[{b}:{b+n-1}]"

IMM = [0, 1024, 2048, 3072, 0, 1024]
def dma_ld(p):
    if NODMA: return []
    return [f"buffer_load_dwordx4 v{vD+p}, {sr(sSRD,4)}, s{sSOFF} offen offset:{IMM[p]} lds"]
def att_delta():
    return [
        f"v_add_u32 v{vCI}, 4, v{vCI}",
        f"v_subrev_u32 v{vS}, 27, v{vCI}",
        f"v_min_u32 v{vCI}, v{vCI}, v{vS}",
        f"v_mul_u32_u24 v{vS}, 57, v{vCI}",
        f"v_lshrrev_b32 v{vS}, 9, v{vS}",
        f"v_mul_u32_u24 v{vS}, 864, v{vS}",
        f"v_lshl_add_u32 v{vS+1}, v{vCI}, 5, v{vS}",
        f"v_sub_u32 v{vS}, v{vS+1}, v{vCUR}",
        f"v_mov_b32 v{vCUR}, v{vS+1}",
    ]

def emit_list(lst):
    for s in lst:
        if s.endswith(":"): L.append(s)
        else: e(s)

def tr_reads(fr, addr, off, second):
    if NORD: return []
    return [f"ds_read_b64_tr_b16 {ar(FR+4*fr,2)}, v{addr} offset:{off}",
            f"ds_read_b64_tr_b16 {ar(FR+4*fr+2,2)}, v{addr} offset:{off+second}"]

def round_bf16(v, tmp):
    return [f"v_cvt_pk_bf16_f32 v{tmp}, v{v}, v{v}", f"v_lshlrev_b32 v{v}, 16, v{tmp}"]

def gemm_body(nst, bop, fill, raddr):
    n = 24 * nst
    for i in range(n):
        st, w = divmod(i, 24)
        tile, ks = divmod(w, 12)
        j = (i + D) % n
        st2, w2 = divmod(j, 24)
        t2, ks2 = divmod(w2, 12)
        a, off = raddr(st2, t2)
        emit_list(tr_reads((i + D) % R, a, off + ks2 * 2048, 512))
        if i % 2 == 0: e(f"s_waitcnt lgkmcnt({2*D-2})")
        acc = vr(ACC[tile], 16)
        cc = "0" if (st == 0 and ks == 0) else acc
        e(f"v_mfma_f32_32x32x16_bf16 {acc}, {ar(FR+4*(i%R),4)}, {bop(12*st+ks)}, {cc}")
        emit_list(fill.get(i, []))

def add(fill, slot, ins):
    fill.setdefault(slot, []).extend(ins)

class Sched:
    def __init__(self, n):
        self.n = n; self.fill = {}; self.load = [0] * n
    def cap(self, i): return 3 if i % 2 == 0 else 2
    def put(self, slot, ins, cost=None):
        slot %= self.n
        add(self.fill, slot, ins)
        self.load[slot] += len(ins) if cost is None else cost
    def seq(self, lo, hi, groups):
        over = 0
        while True:
            ld = list(self.load); pos = []; i = lo; ok = True
            for g in groups:
                while i <= hi and ld[i % self.n] + len(g) > self.cap(i) + over and ld[i % self.n] > 0: i += 1
                if i > hi: ok = False; break
                pos.append(i); ld[i % self.n] += len(g)
            if ok: break
            over += 1
        for g, i in zip(groups, pos): self.put(i, g)
        return pos[-1]
    def vmwait(self, bar_slot, p5_slot_back):
        cnt = 0
        for a in range(p5_slot_back + 1, bar_slot + 1):
            cnt += sum(1 for x in self.fill.get(a % self.n, []) if x.startswith("buffer_"))
        return cnt

BAR = 9
def bars(S, nst, w):
    for st in range(nst):
        b = 24 * st
        n = S.vmwait(b + BAR, b - 72 + BAR + 1 + w + 20 - 24)
        if NODMA: n = 63
        S.put(b + BAR, [f"s_waitcnt vmcnt({n})", "s_barrier"])

RARE = []
def phase1(att, w):
    tag = f"{'a' if att else 'f'}{w}"
    S = Sched(72)
    for st in range(3):
        b = 24 * st
        for p in range(6):
            sl = b + BAR + 1 + w + 4 * p
            if p in (0, 4):
                r, k = [(sMB1, 2 * SLOT), (sMB0, 0), (sMB0, SLOT)][st]
                if sl - 1 >= 72: r = sMB1 if r == sMB0 else sMB0
                S.put(sl - 1, [f"s_add_u32 m0, s{r}, {k + w*6144 + (4096 if p == 4 else 0)}"])
            S.put(sl, dma_ld(p), cost=3)
        S.put(b + BAR + 1 + w + 21, [f"s_add_u32 s{sSOFF}, s{sSOFF}, s{sINC+st}"])
    d2 = [x for x in range(14, 30) if (x - (BAR + 1 + w)) % 4 == 2]
    S.put(d2[0], [f"buffer_load_dword a63, v{vPF}, {sr(sPF,4)}, s{sPFO} offen"], cost=3)
    S.seq(d2[0] + 1, 60, [[f"s_add_u32 s{sPFO}, s{sPFO}, {PFN*128}"],
                          [f"s_cmp_ge_u32 s{sG}, {42 // PFN - 1}", f"s_cselect_b32 s{sPF+2}, 0, s{sPF+2}"]])
    bars(S, 3, w)
    S.seq(36, 60, [[f"v_xor_b32 v{vA01}, v{vMASKA}, v{vA01}"]])
    S.seq(42, 70, [[f"v_xor_b32 v{vB01}, {TOG}, v{vB01}"]])
    S.seq(54, 71, [[f"v_xor_b32 v{vA2}, {TOG}, v{vA2}"]])
    S.seq(66, 71, [[f"v_xor_b32 v{vB2}, {TOG}, v{vB2}"]])
    S.put(71, [f"s_xor_b32 s{sMB0}, s{sMB0}, {TOG}", f"s_xor_b32 s{sMB1}, s{sMB1}, {TOG}",
               f"s_add_u32 s{sG}, s{sG}, 1", f"s_cmp_lt_u32 s{sG}, {7 if att else 6}"])
    sw = 32 + w
    if att:
        S.put(sw, [f"s_cmp_ge_u32 s{sG}, 5", f"s_cselect_b32 s{sSRD+2}, 0, s{sSRD+2}"])
        dl = att_delta()
        S.seq(12, 28, [[x] for x in dl])
        for p in range(6):
            lo = BAR + 1 + w + 4 * p + 1
            S.seq(max(lo, 29), 24 + BAR + w + 4 * p, [[f"v_add_u32 v{vD+p}, v{vD+p}, v{vS}"]])
    else:
        S.put(sw, [f"s_cmp_ge_u32 s{sG}, 4", f"s_cbranch_scc1 Lsw_{tag}", f"Lswr_{tag}:"], cost=2)
        r = [f"Lsw_{tag}:", f"s_cmp_eq_u32 s{sG}, 4", f"s_cbranch_scc0 Lsw5_{tag}",
             f"s_mov_b32 s{sSRD}, s{kw2}", f"s_and_b32 s{sSRD+1}, s{kw2+1}, 0xffff",
             f"s_mov_b32 s{sSRD+2}, {0 if NOW else 4608*1152}", f"s_mul_i32 s{sSOFF}, s{sJOB}, {384*1152}",
             f"s_mov_b32 s{sINC}, {192*1152}", f"s_mov_b32 s{sINC+1}, {192*1152}", f"s_mov_b32 s{sINC+2}, {(128-192*1152) & 0xffffffff}"]
        r += [f"v_mov_b32 v{vD+p}, v{vD2+p}" for p in range(6)]
        r += [f"s_branch Lswr_{tag}", f"Lsw5_{tag}:",
              f"s_mov_b32 s{sINC+2}, {192*1152}", f"s_mov_b32 s{sINC+1}, {(128-192*1152) & 0xffffffff}",
              f"v_xor_b32 v{vMASKA}, v{vA01}, v{vBASE_G2}", f"s_branch Lswr_{tag}"]
        RARE.extend(r)
    def idxblk(tile):
        o = [f"s_set_gpr_idx_on s{sIDX}, 0x8", "s_nop 0"]
        for i in range(8):
            if att: o.append(f"v_cvt_pk_bf16_f32 v{H+8*tile+i}, v{ACC[tile]+2*i}, v{ACC[tile]+2*i+1}")
            else: o.append(f"v_pk_max_i16 v{H+8*tile+i}, v{PK[tile]+i}, 0")
        o.append("s_set_gpr_idx_off")
        return o
    def pre(slot, ins):
        S.fill[slot % 72] = ins + S.fill.get(slot % 72, []); S.load[slot % 72] += len(ins)
    if att:
        S.seq(61, 68, [[f"v_mul_f32 v{ACC[0]+i}, v{ACC[0]+i}, v{vRSTD}"] for i in range(16)])
        sl = [x for x in (71, 70, 69) if (x - (BAR + 1 + w)) % 4 != 0][0]
        k = SLOT + (4096 if sl >= 48 + BAR + w + 16 else 0)
        pre(sl, idxblk(0) + [f"s_add_u32 m0, s{sMB0}, {k + w*6144}"])
        S.seq(1, 8, [[f"v_mul_f32 v{ACC[1]+i}, v{ACC[1]+i}, v{vRSTD}"] for i in range(16)])
        sl = [x for x in (11, 10) if (x - (BAR + 1 + w)) % 4 != 0][0]
        fix = [f"s_add_u32 m0, s{sMB1}, {2*SLOT + w*6144}"] if sl >= BAR + w else []
        S.put(sl, idxblk(1) + fix + [f"s_add_u32 s{sIDX}, s{sIDX}, s{sIDX+1}", f"s_mov_b32 s{sIDX+1}, 16"])
        if w == 3:
            S.seq(40, 44, [[f"s_cmp_ge_u32 s{sG}, 5", f"s_cbranch_scc1 Lpub", "Lpubr:"]])
    else:
        S.seq(61, 71, [[f"v_cvt_pk_bf16_f32 v{PK[0]+i}, v{ACC[0]+2*i}, v{ACC[0]+2*i+1}"] for i in range(8)])
        S.seq(1, 11, [[f"v_cvt_pk_bf16_f32 v{PK[1]+i}, v{ACC[1]+2*i}, v{ACC[1]+2*i+1}"] for i in range(8)])
        pre(BAR + w + 16, idxblk(0))
        pre(24 + BAR + w + 16, idxblk(1) + [f"s_add_u32 s{sIDX}, s{sIDX}, s{sIDX+1}", f"s_mov_b32 s{sIDX+1}, 16"])
    e(".p2align 6")
    lab(f"Lp1_{tag}")
    gemm_body(3, xop, S.fill, lambda st, t: ([vA01, vB01][t], st * SLOT) if st < 2 else ([vA2, vB2][t], 0))
    e(f"s_cbranch_scc1 Lp1_{tag}")

def phase2(w):
    S = Sched(48)
    vA, vB, vB0 = vA01, vB01, vA2
    for st in range(2):
        b = 24 * st
        for p in range(6):
            sl = b + BAR + 1 + w + 4 * p
            if p in (0, 4):
                r, k = [(sMB1, SLOT), (sMB0, 0)][st]
                if sl - 1 >= 48: r = sMB1
                S.put(sl - 1, [f"s_add_u32 m0, s{r}, {k + w*6144 + (4096 if p == 4 else 0)}"])
            S.put(sl, dma_ld(p), cost=3)
        inc = [128 - 192 * 1152, 192 * 1152][st]
        S.put(b + BAR + 1 + w + 21, [f"s_add_u32 s{sSOFF}, s{sSOFF}, {inc & 0xffffffff}"])
    S.put(32 + w, [f"s_cmp_ge_u32 s{sG}, 6", f"s_cselect_b32 s{sSRD+2}, 0, s{sSRD+2}"])
    st_ = lambda r, so, off: [f"buffer_store_dwordx4 {vr(r,4)}, v{vST}, {sr(sWS,4)}, s{so} offen offset:{off} sc0 sc1"]
    d0 = (BAR + 1 + w) % 4
    ssl = lambda lo: [x for x in range(lo, lo + 8) if (x - d0) % 4 == 2]
    a0, a1 = ssl(2); b0, b1 = ssl(14)
    S.put(a0, st_(PK[0], sT2, 0), cost=3); S.put(a1, st_(PK[0] + 4, sT2, 1024), cost=3)
    S.put(b0, st_(PK[1], sT2, 2048), cost=3); S.put(b1, st_(PK[1] + 4, sT2, 3072), cost=3)
    bars(S, 2, w)
    S.seq(37, 47, [[f"v_cvt_pk_bf16_f32 v{PK[0]+i}, v{ACC[0]+2*i}, v{ACC[0]+2*i+1}"] for i in range(8)])
    S.seq(1, 11, [[f"v_cvt_pk_bf16_f32 v{PK[1]+i}, v{ACC[1]+2*i}, v{ACC[1]+2*i+1}"] for i in range(8)])
    S.seq(24, 34, [[f"s_add_u32 s{sRD}, s{sRD}, {2*SLOT}", f"s_cmp_eq_u32 s{sRD}, {6*SLOT}", f"s_cselect_b32 s{sRD}, 0, s{sRD}"]])
    S.seq(35, 40, [[f"v_add_u32 v{vA}, s{sRD}, v{vBASE_G2}"]])
    S.seq(42, 46, [[f"v_add_u32 v{vB}, s{sRD}, v{vB0}"]])
    S.seq(24, 46, [[f"s_mov_b32 s{sT2}, s{sSTOFF}"], [f"s_add_u32 s{sSTOFF}, s{sSTOFF}, 4096"]])
    S.put(47, [f"s_mov_b32 s{sMB1}, s{sMB0}", f"s_mov_b32 s{sMB0}, s{sRD}",
               f"s_add_u32 s{sG}, s{sG}, 1", f"s_cmp_lt_u32 s{sG}, 9"])
    e(".p2align 6")
    lab(f"Lp2_{w}")
    gemm_body(2, lambda s_: vr(H + 4 * s_, 4), S.fill, lambda st, t: ([vA, vB][t], st * SLOT))
    e(f"s_cbranch_scc1 Lp2_{w}")

def k1():
    kn = "k1_kernel"
    L.append(f".globl {kn}\n.p2align 8\n.type {kn},@function")
    lab(kn)
    e("s_cmp_ge_u32 s2, 256")
    e("s_cbranch_scc1 Lend1")
    e(f"s_load_dwordx16 {sr(sK,16)}, s[0:1], 0")
    e(f"s_load_dwordx2 {sr(sK+16,2)}, s[0:1], 64")
    if PROF:
        for i in range(12): e(f"s_mov_b32 s{88+i}, 0")
    stamp(0, True)
    stamp(2)
    c("lane decode")
    e(f"v_and_b32 v{vLANE}, 63, v0")
    e(f"v_lshrrev_b32 v{vT}, 6, v0")
    e(f"v_and_b32 v{vM}, 31, v0")
    e(f"v_readfirstlane_b32 s{sWAVE}, v{vT}")
    e(f"v_bfe_u32 v{vHH}, v0, 5, 1")
    c("wg decode: xcd=wg%8, q=wg/8; jg=xcd%4; i=q%4; rb=(xcd/4)*8+q/4")
    e(f"s_and_b32 s{sT0}, s2, 3")
    e(f"s_bfe_u32 s{sT1}, s2, 0x20003")
    e(f"s_bfe_u32 s{sT2}, s2, 0x10002")
    e(f"s_lshr_b32 s{sT3}, s2, 5")
    e(f"s_lshl_b32 s{sRB}, s{sT2}, 3")
    e(f"s_add_u32 s{sRB}, s{sRB}, s{sT3}")
    e(f"s_mul_i32 s{sJOB}, s{sT0}, 3")
    e(f"s_add_u32 s{sJOB}, s{sJOB}, s{sT1}")
    e(f"s_add_u32 s{sT2}, s{sT0}, 12")
    e(f"s_cmp_eq_u32 s{sT1}, 3")
    e(f"s_cselect_b32 s{sJOB}, s{sT2}, s{sJOB}")
    e(f"s_cselect_b32 s{sATT}, 1, 0")
    e(f"s_mul_i32 s{sW6K}, s{sWAVE}, 6144")
    e(f"s_mov_b32 s{sONES}, 0x3f803f80")
    e(f"s_mov_b32 s{sSELLO}, 0x00003f80")
    e(f"s_mov_b32 s{sSELHI}, 0x3f800000")
    c("x dma voffsets: i=lane/8, j'=lane%8; key=(i>>1)|(par<<2); off=i*1152+((j'^key)*16)")
    e(f"v_lshrrev_b32 v{vT}, 3, v{vLANE}")
    e(f"v_and_b32 v{vT+1}, 7, v{vLANE}")
    e(f"v_lshrrev_b32 v{vT+2}, 1, v{vT}")
    e(f"v_xor_b32 v{vT+2}, v{vT+1}, v{vT+2}")
    e(f"v_mul_u32_u24 v{vT+3}, 1152, v{vT}")
    e(f"v_lshl_add_u32 v{vT+4}, v{vT+2}, 4, v{vT+3}")
    e(f"v_xor_b32 v{vT+5}, 64, v{vT+4}")
    e("s_waitcnt lgkmcnt(0)")
    c("SRDs")
    for (s, k, sz) in ((sX, kx, 2048*1152), (sWS, kws, WS_BYTES), (sDBG, kdbg, 256)):
        e(f"s_mov_b32 s{s}, s{k}")
        e(f"s_and_b32 s{s+1}, s{k+1}, 0xffff")
        e(f"s_mov_b32 s{s+2}, {sz}")
        e(f"s_mov_b32 s{s+3}, 0x00020000")
    c("x rows base")
    e(f"s_lshl_b32 s{sT0}, s{sRB}, 7")
    e(f"s_lshl_b32 s{sT1}, s{sWAVE}, 5")
    e(f"s_add_u32 s{sT0}, s{sT0}, s{sT1}")
    e(f"s_mul_i32 s{sT0}, s{sT0}, 1152")
    e(f"s_add_u32 s{sT1}, s{sT0}, {8*1152}")
    e(f"s_add_u32 s{sT2}, s{sT0}, {16*1152}")
    e(f"s_add_u32 s{sT3}, s{sT0}, {24*1152}")
    e(f"s_mul_i32 s{sCUR}, s{sWAVE}, 36864")
    for cg in range(9):
        for br in range(4):
            e(f"s_add_u32 m0, s{sCUR}, {(br*9+cg)*1024 - cg*128}")
            e("s_nop 0")
            e(f"buffer_load_dwordx4 v{vT+4+(br&1)}, {sr(sX,4)}, s{sT0+br} offen offset:{cg*128} lds")
    c("cache warm-up, chip-wide split: unit u = wg*4+wave, one dword per 128-B line")
    e(f"s_lshl_b32 s{sT0}, s2, 2")
    e(f"s_add_u32 s{sT0}, s{sT0}, s{sWAVE}")
    for (k_, sz_, n_) in ((kqkv, 576*3456, 16), (kw1, 576*9216, 41), (kwo, 576*1152, 6)):
        pf_srd(k_, sz_ if (n_ != 41 or PFW1 == 1) else 0)
        e(f"v_min_u32 v{vT}, {n_-1}, v{vLANE}")
        e(f"v_lshlrev_b32 v{vT}, 7, v{vT}")
        e(f"s_mul_i32 s{sT1}, s{sT0}, {n_*128}")
        e(f"buffer_load_dword a63, v{vT}, {sr(sPF,4)}, s{sT1} offen")
    pf_srd(kw2, 4608*1152)
    e(f"v_min_u32 v{vPF}, {PFN-1}, v{vLANE}")
    e(f"v_lshlrev_b32 v{vPF}, 7, v{vPF}")
    e(f"s_mul_i32 s{sPFO}, s{sT0}, {42*128}")
    c("x frag read addresses: base + (m/8)*9216 + (m%8)*128 + (((2q+hh)^key)*16), key=(m>>1)&7")
    e(f"v_lshrrev_b32 v{vT}, 3, v{vM}")
    e(f"v_mul_u32_u24 v{vT}, 9216, v{vT}")
    e(f"v_and_b32 v{vT+1}, 7, v{vM}")
    e(f"v_lshl_add_u32 v{vT}, v{vT+1}, 7, v{vT}")
    e(f"v_add_u32 v{vT}, s{sCUR}, v{vT}")
    e(f"v_bfe_u32 v{vT+1}, v{vM}, 1, 3")
    e(f"v_xor_b32 v{vT+1}, v{vT+1}, v{vHH}")
    for q in range(4):
        e(f"v_xor_b32 v{vT+2}, {2*q}, v{vT+1}")
        e(f"v_lshl_add_u32 v{vT+6+q}, v{vT+2}, 4, v{vT}")
    c("tr-read lane bases. g=lane/16: ch=g&1, hh=g>>1; r=(lane%16)/4, cc=lane%4")
    tr, tc, tch, trow, tsw = U+10, U+11, U+12, U+13, U+14
    e(f"v_bfe_u32 v{tr}, v{vLANE}, 2, 2")
    e(f"v_and_b32 v{tc}, 3, v{vLANE}")
    e(f"v_bfe_u32 v{tch}, v{vLANE}, 4, 1")
    e(f"v_lshl_add_u32 v{trow}, v{vHH}, 3, v{tr}")
    e(f"v_lshlrev_b32 v{trow}, 7, v{trow}")
    e(f"v_lshrrev_b32 v{tsw}, 1, v{tr}")
    vCOLP = U + 9
    c(" FFN gemm1: sw*64 + ch*32 + c*8")
    e(f"v_lshl_add_u32 v{vA01}, v{tsw}, 6, v{trow}")
    e(f"v_lshl_add_u32 v{vA01}, v{tch}, 5, v{vA01}")
    e(f"v_lshl_add_u32 v{vA01}, v{tc}, 3, v{vA01}")
    c(" gemm2 mapping: sw*64 + (c%2)*32 + ch*16 + (c/2)*8")
    e(f"v_and_b32 v{U+15}, 1, v{tc}")
    e(f"v_lshlrev_b32 v{vCOLP}, 6, v{tsw}")
    e(f"v_lshl_add_u32 v{vCOLP}, v{U+15}, 5, v{vCOLP}")
    e(f"v_lshl_add_u32 v{vCOLP}, v{tch}, 4, v{vCOLP}")
    e(f"v_lshrrev_b32 v{vT+2}, 1, v{tc}")
    e(f"v_lshl_add_u32 v{vCOLP}, v{vT+2}, 3, v{vCOLP}")
    e(f"v_add_u32 v{vBASE_G2}, v{vCOLP}, v{trow}")
    e(f"v_mul_u32_u24 v{vBASE_AG2}, 72, v{vHH}")
    e(f"v_add_u32 v{vBASE_AG2}, v{vBASE_AG2}, v{tr}")
    e(f"v_lshl_add_u32 v{vBASE_AG2}, v{vBASE_AG2}, 7, v{vCOLP}")
    c("dma lane decode")
    di, dj, dsw = U+10, U+11, U+12
    e(f"v_lshrrev_b32 v{di}, 3, v{vLANE}")
    e(f"v_and_b32 v{dj}, 7, v{vLANE}")
    e(f"v_bfe_u32 v{dsw}, v{di}, 1, 1")
    e(f"v_lshlrev_b32 v{U+13}, 2, v{dsw}")
    e(f"v_xor_b32 v{dj}, v{dj}, v{U+13}")
    e(f"v_lshlrev_b32 v{U+13}, 4, v{dj}")
    e(f"s_mul_i32 s{sT0}, s{sWAVE}, 48")
    e(f"v_add_u32 v{U+14}, s{sT0}, v{di}")
    e(f"v_mov_b32 v{vWO}, 0")
    for p_ in range(6): e(f"v_mov_b32 v{vD2+p_}, 0")
    e(f"s_cmp_eq_u32 s{sATT}, 1")
    e("s_cbranch_scc1 Lsetup_att")
    c("---- FFN setup")
    e(f"v_mul_u32_u24 v{U+14}, 9216, v{U+14}")
    e(f"v_add_u32 v{vD}, v{U+14}, v{U+13}")
    for p_ in range(1, 6): e(f"v_add_u32 v{vD+p_}, {p_*8*9216 - IMM[p_]}, v{vD}")
    c(" W2: row = 48w + 8*(i/4) + i%4")
    e(f"v_lshrrev_b32 v{U+14}, 2, v{di}")
    e(f"v_and_b32 v{U+15}, 3, v{di}")
    e(f"v_lshl_add_u32 v{U+14}, v{U+14}, 3, v{U+15}")
    e(f"v_add_u32 v{U+14}, s{sT0}, v{U+14}")
    e(f"v_mul_u32_u24 v{U+14}, 1152, v{U+14}")
    e(f"v_add_u32 v{vD2}, v{U+14}, v{U+13}")
    for p_ in range(1, 6): e(f"v_add_u32 v{vD2+p_}, {((p_//2)*16 + (p_%2)*4)*1152 - IMM[p_]}, v{vD2}")
    e(f"s_mov_b32 s{sSRD}, s{kw1}")
    e(f"s_and_b32 s{sSRD+1}, s{kw1+1}, 0xffff")
    e(f"s_mov_b32 s{sSRD+2}, {576*9216}")
    e(f"s_mul_i32 s{sSOFF}, s{sJOB}, 768")
    e(f"s_mov_b32 s{sINC}, {(128 - 2*192*9216) & 0xffffffff}")
    e(f"s_mov_b32 s{sINC+1}, {192*9216}")
    e(f"s_mov_b32 s{sINC+2}, {192*9216}")
    e(f"v_mov_b32 v{vS}, 0")
    e("s_branch Lsetup_done")
    lab("Lsetup_att")
    c("---- attention setup: ci = 9 + j/2 ; base = row*3456 + 16*(j%2) + 32*ci + 864")
    e(f"v_mov_b32 v{vA01}, v{vBASE_G2}")
    e(f"v_lshrrev_b32 v{U+15}, 1, v{dj}")
    e(f"v_add_u32 v{vCI}, 9, v{U+15}")
    e(f"v_lshlrev_b32 v{vCUR}, 5, v{vCI}")
    e(f"v_add_u32 v{vCUR}, 864, v{vCUR}")
    e(f"v_mul_u32_u24 v{U+14}, 3456, v{U+14}")
    e(f"v_add3_u32 v{vD}, v{U+14}, v{U+13}, 0")
    e(f"v_add_u32 v{vD}, 1152, v{vD}")
    for p_ in range(1, 6): e(f"v_add_u32 v{vD+p_}, {p_*8*3456 - IMM[p_]}, v{vD}")
    c(" Wo dma voffset: row=40w+i natural")
    e(f"s_mul_i32 s{sT1}, s{sWAVE}, 40")
    e(f"v_add_u32 v{U+14}, s{sT1}, v{di}")
    e(f"v_mul_u32_u24 v{U+14}, 1152, v{U+14}")
    e(f"v_add_u32 v{vWO}, v{U+14}, v{U+13}")
    e(f"s_mov_b32 s{sSRD}, s{kqkv}")
    e(f"s_and_b32 s{sSRD+1}, s{kqkv+1}, 0xffff")
    e(f"s_mov_b32 s{sSRD+2}, {576*3456}")
    e(f"s_sub_u32 s{sT1}, s{sJOB}, 12")
    e(f"s_mul_i32 s{sSOFF}, s{sT1}, 288")
    e(f"s_mov_b32 s{sINC}, {(- 2*192*3456) & 0xffffffff}")
    e(f"s_mov_b32 s{sINC+1}, {192*3456}")
    e(f"s_mov_b32 s{sINC+2}, {192*3456}")
    emit_list(att_delta())
    lab("Lsetup_done")
    e(f"s_mov_b32 s{sSRD+3}, 0x00020000")
    if NOW: e(f"s_mov_b32 s{sSRD+2}, 0")
    e(f"s_mov_b32 s{sMB0}, 0")
    e(f"s_mov_b32 s{sMB1}, {TOG}")
    e(f"s_mov_b32 s{sG}, 0")
    e(f"s_mov_b32 s{sIDX}, 0")
    e(f"s_mov_b32 s{sIDX+1}, 0")
    e(f"v_xor_b32 v{vB01}, 64, v{vA01}")
    e(f"v_add_u32 v{vA2}, {2*SLOT}, v{vA01}")
    e(f"v_add_u32 v{vB2}, {2*SLOT}, v{vB01}")
    e(f"v_mov_b32 v{vMASKA}, {TOG}")
    c("partial store: voffset = lane*16 ; soffset base = ((rb*16+job)*4+wave)*36864")
    e(f"v_lshlrev_b32 v{vST}, 4, v{vLANE}")
    e(f"s_lshl_b32 s{sT0}, s{sRB}, 4")
    e(f"s_add_u32 s{sT0}, s{sT0}, s{sJOB}")
    e(f"s_lshl_b32 s{sT0}, s{sT0}, 2")
    e(f"s_add_u32 s{sT0}, s{sT0}, s{sWAVE}")
    e(f"s_mul_i32 s{sSTOFF}, s{sT0}, 36864")
    if NOST: e(f"s_mov_b32 s{sSTOFF}, 0x40000000")
    c("---- read x frags, row sums (sum of squares only where rstd is needed)")
    s0 = 16
    for i in range(8): e(f"v_mov_b32 v{s0+i}, 0")
    def sums(cg):
        for i in range(16):
            e(f"v_dot2c_f32_bf16 v{s0+i%4}, s{sONES}, v{X+16*cg+i}")
        lb = newlab("nosq")
        e(f"s_cbranch_scc0 {lb}")
        for i in range(16):
            e(f"v_dot2c_f32_bf16 v{s0+4+i%4}, v{X+16*cg+i}, v{X+16*cg+i}")
        lab(lb)
    e(f"s_cmp_eq_u32 s{sATT}, 1")
    for cg in range(9):
        e(f"s_waitcnt vmcnt({39 - 4*(cg+1)})")
        for q in range(4):
            s_ = 4 * cg + q
            e(f"ds_read_b128 {vr(X+4*s_,4)}, v{vT+6+q} offset:{cg*1024}")
        if cg > 0:
            e("s_waitcnt lgkmcnt(4)")
            sums(cg - 1)
        if PFW1 >= 2 and cg == 8:
            pf_srd(kw1, 576*9216, sPF2)
            e(f"v_min_u32 v{vT}, 40, v{vLANE}")
            e(f"v_lshlrev_b32 v{vT}, 7, v{vT}")
            e(f"s_lshl_b32 s{sT0}, s2, 2")
            e(f"s_add_u32 s{sT0}, s{sT0}, s{sWAVE}")
            e(f"s_mul_i32 s{sT1}, s{sT0}, {41*128}")
            e(f"buffer_load_dword a63, v{vT}, {sr(sPF2,4)}, s{sT1} offen")
            e(f"s_cmp_eq_u32 s{sATT}, 1")
    e("s_waitcnt lgkmcnt(0)")
    e("s_barrier")
    stamp(3)
    sums(8)
    prime = []
    for t_ in range(5):
        for p_ in range(6 if t_ < 4 else 3):
            o = []
            if p_ in (0, 4):
                o += [f"s_add_u32 m0, s{sW6K}, {t_*SLOT + (4096 if p_ == 4 else 0)}", "s_nop 0"]
            o += dma_ld(p_)
            if t_ == 2: o += [f"v_add_u32 v{vD+p_}, v{vD+p_}, v{vS}"]
            if t_ < 4 and p_ == 5: o += [f"s_add_u32 s{sSOFF}, s{sSOFF}, s{sINC + (0 if t_ == 2 else 1)}"]
            prime.append(o)
    for _ in range(3): emit_list(prime.pop(0))
    c("---- LN")
    q0 = s0 + 4
    for b_ in (s0, q0):
        e(f"v_add_f32 v{b_}, v{b_}, v{b_+1}")
        e(f"v_add_f32 v{b_+2}, v{b_+2}, v{b_+3}")
        e(f"v_add_f32 v{b_}, v{b_}, v{b_+2}")
        e(f"v_mov_b32 v{b_+1}, v{b_}")
        e("s_nop 1")
        e(f"v_permlane32_swap_b32 v{b_}, v{b_+1}")
        e("s_nop 1")
        e(f"v_add_f32 v{b_}, v{b_}, v{b_+1}")
        e(f"v_mul_f32 v{b_}, {1.0/576:.9e}, v{b_}")
    e(f"v_fma_f32 v{q0}, -v{s0}, v{s0}, v{q0}")
    emit_list(round_bf16(s0, s0+2))
    e(f"v_sub_f32 v{s0+2}, 0, v{s0}")
    negm = s0 + 2
    e(f"v_max_f32 v{q0}, 0, v{q0}")
    emit_list(round_bf16(q0, q0+1))
    e(f"v_add_f32 v{q0}, 0x3727c5ac, v{q0}")
    emit_list(round_bf16(q0, q0+1))
    e(f"v_sqrt_f32 v{q0}, v{q0}")
    e("s_nop 0")
    emit_list(round_bf16(q0, q0+1))
    e(f"v_rcp_f32 v{vRSTD}, v{q0}")
    t = 32
    for b in range(0, 152, 4):
        tb = t + (8 if (b // 4) % 2 else 0)
        if b < 144:
            for i in range(4):
                e(f"v_dot2_f32_bf16 v{tb+2*i}, v{X+b+i}, s{sSELLO}, v{negm}")
                e(f"v_dot2_f32_bf16 v{tb+2*i+1}, v{X+b+i}, s{sSELHI}, v{negm}")
        else: e("s_nop 2")
        if 0 < b <= 144:
            pb = t + (8 if (b // 4 - 1) % 2 else 0)
            for i in range(4):
                e(f"v_cvt_pk_bf16_f32 v{X+b-4+i}, v{pb+2*i}, v{pb+2*i+1}")
        if b > 4 and b - 8 < 4 * NXA:
            for i in range(4): e(f"v_accvgpr_write_b32 a{XA+b-8+i}, v{X+b-8+i}")
        if prime and (b // 4) % 3 != 2: emit_list(prime.pop(0))
    while prime: emit_list(prime.pop(0))
    stamp(4)
    c("job 0 publishes rstd")
    e(f"s_cmp_eq_u32 s{sJOB}, 12")
    e("s_cbranch_scc0 Lnorstd")
    e(f"s_lshl_b32 s{sT0}, s{sRB}, 9")
    e(f"s_lshl_b32 s{sT1}, s{sWAVE}, 7")
    e(f"s_add_u32 s{sT0}, s{sT0}, s{sT1}")
    e(f"s_add_u32 s{sT0}, s{sT0}, {RSTD_OFF}")
    e(f"v_lshlrev_b32 v{vS}, 2, v{vM}")
    e(f"buffer_store_dword v{vRSTD}, v{vS}, {sr(sWS,4)}, s{sT0} offen sc0 sc1")
    lab("Lnorstd")
    c("stage 0 landed?")
    e("s_waitcnt vmcnt(21)")
    e("s_barrier")
    stamp(5)
    for i in range(D):
        emit_list(tr_reads(i % R, vA01, i * 2048, 512))
    e(f"s_cmp_lt_u32 s{sWAVE}, 2")
    e("s_cbranch_scc0 Lno3")
    emit_list(dma_ld(3))
    lab("Lno3")
    e(f"buffer_load_dword a63, v{vMASKA}, {sr(sDBG,4)}, 0 offen")
    e(f"s_lshl_b32 s{sT0}, s{sATT}, 2")
    e(f"s_add_u32 s{sT0}, s{sT0}, s{sWAVE}")
    for k_ in range(1, 8):
        e(f"s_cmp_eq_u32 s{sT0}, {k_}")
        e(f"s_cbranch_scc1 Lp1_{'a' if k_ >= 4 else 'f'}{k_ % 4}")
    for w in range(4):
        c(f"================ FFN wave {w}")
        phase1(False, w)
        stamp(6)
        e(f"s_mov_b32 s{sT2}, 0x40000000")
        for i in range(8): e(f"v_pk_max_i16 v{H+80+i}, v{PK[0]+i}, 0")
        for i in range(4):
            e(f"buffer_store_dwordx4 {vr(PK[0],4)}, v{vST}, {sr(sWS,4)}, s{sT2} offen")
        e(f"v_xor_b32 v{vA2}, 64, v{vBASE_G2}")
        e(f"v_xor_b32 v{vB01}, 64, v{vBASE_G2}")
        e(f"s_mov_b32 s{sG}, 0")
        e(f"s_mov_b32 s{sRD}, 0")
        e(f"s_mov_b32 s{sMB0}, 0")
        e(f"s_mov_b32 s{sMB1}, {4*SLOT}")
        e("s_nop 3")
        for i in range(8): e(f"v_cvt_pk_bf16_f32 v{PK[1]+i}, v{ACC[1]+2*i}, v{ACC[1]+2*i+1}")
        for i in range(8): e(f"v_pk_max_i16 v{H+88+i}, v{PK[1]+i}, 0")
        phase2(w)
        if w < 3: e("s_branch Lffn_end")
    lab("Lffn_end")
    st_ = lambda r, off: e(f"buffer_store_dwordx4 {vr(r,4)}, v{vST}, {sr(sWS,4)}, s{sT2} offen offset:{off} sc0 sc1")
    st_(PK[0], 0); st_(PK[0] + 4, 1024)
    e("s_nop 7")
    e("s_nop 3")
    for i in range(8):
        e(f"v_cvt_pk_bf16_f32 v{PK[1]+i}, v{ACC[1]+2*i}, v{ACC[1]+2*i+1}")
    st_(PK[1], 2048); st_(PK[1] + 4, 3072)
    stamp(7)
    if PROF: e("s_waitcnt vmcnt(0)")
    stamp(8)
    prof_out()
    e("s_endpgm")
    emit_list(RARE)
    c("halo publish / flag (attention wave 3)")
    lab("Lpub")
    e(f"s_lshl_b32 s{sT0}, s{sRB}, 2")
    e(f"s_add_u32 s{sT0}, s{sT0}, s{sJOB}")
    e(f"s_sub_u32 s{sT0}, s{sT0}, 12")
    e(f"s_cmp_eq_u32 s{sG}, 5")
    e("s_cbranch_scc0 Lflag")
    e(f"s_mul_i32 s{sT0}, s{sT0}, 9216")
    e(f"s_add_u32 s{sT0}, s{sT0}, {HALO_OFF}")
    e(f"v_and_b32 v{vS+2}, 15, v{vM}")
    e(f"v_mul_u32_u24 v{vS+2}, 576, v{vS+2}")
    e(f"v_lshl_add_u32 v{vS+2}, v{vHH}, 5, v{vS+2}")
    e(f"v_cmp_lt_u32 vcc, 15, v{vM}")
    e(f"s_and_saveexec_b64 {sr(sEX,2)}, vcc")
    for u in range(18):
        e(f"buffer_store_dwordx4 {vr(H+4*u,4)}, v{vS+2}, {sr(sWS,4)}, s{sT0} offen offset:{64*(u//2)+16*(u%2)} sc0 sc1")
    e(f"s_mov_b64 exec, {sr(sEX,2)}")
    e("s_nop 3")
    e("s_branch Lpubr")
    lab("Lflag")
    e("s_waitcnt vmcnt(16)")
    e(f"s_lshl_b32 s{sT0}, s{sT0}, 2")
    e(f"v_mov_b32 v{vS+2}, 0")
    e(f"v_mov_b32 v{vS+1}, 1")
    e(f"v_cmp_eq_u32 vcc, 0, v{vLANE}")
    e(f"s_and_saveexec_b64 {sr(sEX,2)}, vcc")
    e(f"buffer_store_dword v{vS+1}, v{vS+2}, {sr(sDBG,4)}, s{sT0} offen sc0 sc1")
    e(f"s_mov_b64 exec, {sr(sEX,2)}")
    e("s_nop 3")
    e("s_branch Lpubr")
    for w in range(4):
        c(f"================ attention wave {w}")
        phase1(True, w)
        if w < 3: e("s_branch Latt")
    attention()
    lab("Lend1")
    e("s_endpgm")

def wo_stage(j):
    o = []
    for p in range(5):
        o.append(f"s_add_u32 m0, s{sCUR}, {(j % 6) * SLOT + p * 1024}")
        o.append(f"s_add_u32 s{sT1}, s{sT3}, {p * 8 * 1152 + j * 128}")
        o.append(f"buffer_load_dwordx4 v{vWO}, {sr(sSRD,4)}, s{sT1} offen lds")
    return o

def attention():
    lab("Latt")
    stamp(6)
    Q = 16
    QBASE, QSTR = 30720, 336
    e(f"s_mov_b32 s{sSRD}, s{kwo}")
    e(f"s_and_b32 s{sSRD+1}, s{kwo+1}, 0xffff")
    e(f"s_mov_b32 s{sSRD+2}, {0 if NOW else 576*1152}")
    e(f"s_mul_i32 s{sCUR}, s{sWAVE}, 5120")
    e(f"s_sub_u32 s{sT3}, s{sJOB}, 12")
    e(f"s_mul_i32 s{sT3}, s{sT3}, {144*1152}")
    wa = 192
    e(f"s_lshl_b32 s{sT0}, s{sWAVE}, 5")
    e("s_nop 7")
    e(f"v_add_u32 v{wa+2}, s{sT0}, v{vM}")
    e(f"v_mul_u32_u24 v{wa}, {KVSTR}, v{wa+2}")
    e(f"v_add_u32 v{wa}, {KVBASE + 16*KVSTR}, v{wa}")
    e(f"v_lshl_add_u32 v{wa+3}, v{vHH}, 5, v{wa}")
    e(f"v_mul_u32_u24 v{wa+4}, {QSTR}, v{wa+2}")
    e(f"v_add_u32 v{wa+4}, {QBASE}, v{wa+4}")
    e(f"v_lshl_add_u32 v{wa+5}, v{vHH}, 5, v{wa+4}")
    e(f"v_mul_u32_u24 v{wa+1}, 144, v{vHH}")
    e(f"v_add_u32 v{wa}, v{wa}, v{wa+1}")
    e(f"v_add_u32 v{wa+4}, v{wa+4}, v{wa+1}")
    e(f"v_lshlrev_b32 v{wa+1}, 1, v{wa+1}")
    for i in range(16): e(f"v_mul_f32 v{ACC[1]+i}, v{ACC[1]+i}, v{vRSTD}")
    for i in range(8): e(f"v_cvt_pk_bf16_f32 v{H+104+i}, v{ACC[1]+2*i}, v{ACC[1]+2*i+1}")
    e("s_waitcnt vmcnt(0) lgkmcnt(0)")
    e("s_barrier")
    c("Wo stage 0")
    emit_list(wo_stage(0))
    c("write q,k,v to LDS")
    for u in range(10):
        e(f"ds_write_b128 v{wa+5}, {vr(H+72+4*u,4)} offset:{64*(u//2)+16*(u%2)}")
    for u in range(18):
        e(f"ds_write_b128 v{wa+3}, {vr(H+4*u,4)} offset:{64*(u//2)+16*(u%2)}")
    for i in range(9):
        e(f"ds_read_b128 {vr(Q+4*i,4)}, v{wa+4} offset:{16*i}")
    kva = vT
    e("s_waitcnt lgkmcnt(9)")
    e(f"v_mov_b32 v{kva}, v{wa}")
    e(f"v_mov_b32 v{kva+1}, v{wa+1}")
    c("halo (wave 0)")
    e(f"s_cmp_eq_u32 s{sWAVE}, 0")
    e("s_cbranch_scc0 Lhalo_done")
    HB = 112
    e(f"v_and_b32 v{kva+2}, 15, v{vM}")
    e(f"v_lshrrev_b32 v{kva+3}, 4, v{vM}")
    e(f"v_mul_u32_u24 v{kva+3}, 144, v{kva+3}")
    e(f"v_add_u32 v{kva+3}, v{kva+3}, v{kva+1}")
    e(f"v_mul_u32_u24 v{kva+4}, 576, v{kva+2}")
    e(f"v_add_u32 v{kva+4}, v{kva+4}, v{kva+3}")
    e(f"v_mul_u32_u24 v{kva+5}, {KVSTR}, v{kva+2}")
    e(f"v_add_u32 v{kva+5}, v{kva+5}, v{kva+3}")
    e(f"v_add_u32 v{kva+5}, {KVBASE}, v{kva+5}")
    for i in range(36): e(f"v_mov_b32 v{HB+i}, 0")
    e(f"s_cmp_eq_u32 s{sRB}, 0")
    e("s_cbranch_scc1 Lhalo_wr")
    e(f"s_lshl_b32 s{sT0}, s{sRB}, 2")
    e(f"s_add_u32 s{sT0}, s{sT0}, s{sJOB}")
    e(f"s_sub_u32 s{sT0}, s{sT0}, 16")
    e(f"s_lshl_b32 s{sT1}, s{sT0}, 2")
    e(f"v_mov_b32 v{kva+6}, 0")
    lab("Lpoll")
    e(f"buffer_load_dword v{kva+7}, v{kva+6}, {sr(sDBG,4)}, s{sT1} offen sc0 sc1")
    e("s_waitcnt vmcnt(0)")
    e(f"v_readfirstlane_b32 s{sT2}, v{kva+7}")
    e("s_nop 3")
    e(f"s_cmp_eq_u32 s{sT2}, 0")
    e("s_cbranch_scc0 Lpoll_ok")
    e("s_sleep 2")
    e("s_branch Lpoll")
    lab("Lpoll_ok")
    e(f"s_mul_i32 s{sT0}, s{sT0}, 9216")
    e(f"s_add_u32 s{sT0}, s{sT0}, {HALO_OFF}")
    for i in range(9):
        e(f"buffer_load_dwordx4 {vr(HB+4*i,4)}, v{kva+4}, {sr(sWS,4)}, s{sT0} offen offset:{16*i} sc0 sc1")
    e("s_waitcnt vmcnt(0)")
    lab("Lhalo_wr")
    for i in range(9):
        e(f"ds_write_b128 v{kva+5}, {vr(HB+4*i,4)} offset:{16*i}")
    lab("Lhalo_done")
    e("s_waitcnt lgkmcnt(0)")
    e("s_barrier")
    stamp(7)
    for j in range(1, 3): emit_list(wo_stage(j))
    c("QK^T")
    LG = 52
    KB = [112, 148]
    e(f"v_subrev_u32 v{kva}, {14*KVSTR}, v{kva}")
    for i in range(32): e(f"v_mov_b32 v{LG+i}, 0")
    def rd(w, buf, voff):
        for i in range(9):
            e(f"ds_read_b128 {vr(KB[buf]+4*i,4)}, v{kva} offset:{(14-2*w)*KVSTR + voff + 16*i}")
    rd(0, 0, 0)
    for w in range(8):
        if w < 7: rd(w + 1, (w + 1) % 2, 0)
        else: rd(0, 0, 288)
        e("s_waitcnt lgkmcnt(9)")
        b = KB[w % 2]
        for i in range(9):
            for h in range(4):
                e(f"v_dot2c_f32_bf16 v{LG+8*h+w}, v{Q+9*h+i}, v{b+9*h+i}")
    c("mask + softmax")
    e(f"s_lshl_b32 s{sT0}, s{sRB}, 7")
    e(f"s_lshl_b32 s{sT1}, s{sWAVE}, 5")
    e(f"s_add_u32 s{sT0}, s{sT0}, s{sT1}")
    e(f"v_add_u32 v{kva+2}, s{sT0}, v{vM}")
    e(f"v_mov_b32 v{kva+3}, 0xce6e6b28")
    sc = (18 ** -0.5)
    for i in range(32):
        emit_list(round_bf16(LG+i, kva+4+(i % 4)))
    import struct
    for i in range(32):
        e(f"v_mul_f32 v{LG+i}, {sc:.9e}, v{LG+i}")
    for i in range(32):
        emit_list(round_bf16(LG+i, kva+4+(i % 4)))
    for w in range(1, 8):
        e(f"v_cmp_le_u32 vcc, {2*w}, v{kva+2}")
        e("s_nop 1")
        for h in range(4):
            e(f"v_cndmask_b32 v{LG+8*h+w}, v{kva+3}, v{LG+8*h+w}, vcc")
    MX = kva + 4
    for h in range(4):
        b = LG + 8 * h
        e(f"v_max3_f32 v{MX+h}, v{b}, v{b+1}, v{b+2}")
        e(f"v_max3_f32 v{MX+h}, v{MX+h}, v{b+3}, v{b+4}")
        e(f"v_max3_f32 v{MX+h}, v{MX+h}, v{b+5}, v{b+6}")
        e(f"v_max_f32 v{MX+h}, v{MX+h}, v{b+7}")
    for h in range(4):
        for w in range(8):
            e(f"v_sub_f32 v{LG+8*h+w}, v{LG+8*h+w}, v{MX+h}")
    for i in range(32): e(f"v_mul_f32 v{LG+i}, 0x3fb8aa3b, v{LG+i}")
    for i in range(32): e(f"v_exp_f32 v{LG+i}, v{LG+i}")
    e("s_nop 0")
    for h in range(4):
        b = LG + 8 * h
        e(f"v_add_f32 v{MX+h}, v{b}, v{b+1}")
    for w in range(2, 8):
        for h in range(4):
            e(f"v_add_f32 v{MX+h}, v{MX+h}, v{LG+8*h+w}")
    for h in range(4): e(f"v_rcp_f32 v{MX+h}, v{MX+h}")
    e("s_nop 0")
    for h in range(4):
        for w in range(8):
            e(f"v_mul_f32 v{LG+8*h+w}, v{LG+8*h+w}, v{MX+h}")
    PLO, PHI = LG, 16
    for i in range(32):
        e(f"v_cvt_pk_bf16_f32 v{PLO+i}, v{LG+i}, 0")
    for i in range(32):
        e(f"v_lshlrev_b32 v{PHI+i}, 16, v{PLO+i}")
    O = 184
    for i in range(72): e(f"v_mov_b32 v{O+i}, 0")
    c("PV")
    for w in range(8):
        if w < 7:
            rd(w + 1, (w + 1) % 2, 288)
            e("s_waitcnt lgkmcnt(9)")
        else:
            e("s_waitcnt lgkmcnt(0)")
        b = KB[w % 2]
        for i in range(36):
            h = i // 9
            e(f"v_dot2c_f32_bf16 v{O+2*i}, v{b+i}, v{PLO+8*h+w}")
            e(f"v_dot2c_f32_bf16 v{O+2*i+1}, v{b+i}, v{PHI+8*h+w}")
    e("s_barrier")
    stamp(8)
    c("kv area free: Wo stages 3..5")
    for j in range(3, 6): emit_list(wo_stage(j))
    OP = 112
    for i in range(36):
        e(f"v_cvt_pk_bf16_f32 v{OP+i}, v{O+2*i}, v{O+2*i+1}")
    c("gemm2 (attention): 9 stages x 18 slots, unrolled")
    e("s_waitcnt vmcnt(25)")
    e("s_barrier")
    R2, D2 = 9, 5
    AB = 148
    for q in range(6):
        e(f"v_add_u32 v{AB+2*q}, {q*SLOT}, v{vBASE_AG2}")
        e(f"v_xor_b32 v{AB+2*q+1}, 64, v{AB+2*q}")
    n = 9 * 18
    def rds(i):
        j, w = divmod(i, 18)
        t, ks = divmod(w, 9)
        return tr_reads(i % R2, AB + 2 * (j % 6) + t, ks * 1024, 512)
    for i in range(D2): emit_list(rds(i))
    vmq = [("wo", j) for j in range(6) for _ in range(5)]
    fill = {}
    for i in range(n):
        j, w = divmod(i, 18)
        t, ks = divmod(w, 9)
        if i + D2 < n:
            emit_list(rds(i + D2))
            e(f"s_waitcnt lgkmcnt({2*D2})")
        else:
            e(f"s_waitcnt lgkmcnt({2*(n-1-i)})")
        acc = vr(ACC[t], 16)
        e(f"v_mfma_f32_32x32x16_bf16 {acc}, {ar(FR+4*(i%R2),4)}, {vr(OP+4*ks,4)}, {'0' if ks == 0 else acc}")
        if w == 8 and j < 8:
            idx = max(k for k, x in enumerate(vmq) if x == ("wo", j + 1))
            e(f"s_waitcnt vmcnt({len(vmq) - 1 - idx})")
            e("s_barrier")
            if j >= 1 and j + 5 < 9:
                emit_list(wo_stage(j + 5))
                vmq += [("wo", j + 5)] * 5
        if 12 <= w <= 15:
            for i2 in (2 * (w - 12), 2 * (w - 12) + 1):
                e(f"v_cvt_pk_bf16_f32 v{PK[0]+i2}, v{ACC[0]+2*i2}, v{ACC[0]+2*i2+1}")
        if w in (16, 17):
            hf = w - 16
            e(f"s_add_u32 s{sT0}, s{sSTOFF}, {j*4096}")
            e(f"buffer_store_dwordx4 {vr(PK[0]+4*hf,4)}, v{vST}, {sr(sWS,4)}, s{sT0} offen offset:{1024*hf} sc0 sc1")
            vmq.append(("st", 0))
        if j > 0 and 3 <= w <= 6:
            for i2 in (2 * (w - 3), 2 * (w - 3) + 1):
                e(f"v_cvt_pk_bf16_f32 v{PK[1]+i2}, v{ACC[1]+2*i2}, v{ACC[1]+2*i2+1}")
        if j > 0 and w == 7:
            e(f"s_add_u32 s{sT0}, s{sSTOFF}, {(j-1)*4096}")
            for hf in range(2):
                e(f"buffer_store_dwordx4 {vr(PK[1]+4*hf,4)}, v{vST}, {sr(sWS,4)}, s{sT0} offen offset:{2048+1024*hf} sc0 sc1")
                vmq.append(("st", 0))
    e("s_nop 7")
    e("s_nop 3")
    for i2 in range(8):
        e(f"v_cvt_pk_bf16_f32 v{PK[1]+i2}, v{ACC[1]+2*i2}, v{ACC[1]+2*i2+1}")
    e(f"s_add_u32 s{sT0}, s{sSTOFF}, {8*4096}")
    for hf in range(2):
        e(f"buffer_store_dwordx4 {vr(PK[1]+4*hf,4)}, v{vST}, {sr(sWS,4)}, s{sT0} offen offset:{2048+1024*hf} sc0 sc1")
    stamp(9)
    prof_out()
    e("s_endpgm")

def k2():
    kn = "k2_kernel"
    L.append(f".globl {kn}\n.p2align 8\n.type {kn},@function")
    lab(kn)
    e("s_cmp_ge_u32 s2, 576")
    e("s_cbranch_scc1 Lend2")
    e("s_load_dwordx2 s[4:5], s[0:1], 0")
    e("s_load_dwordx2 s[6:7], s[0:1], 48")
    e("s_load_dwordx2 s[8:9], s[0:1], 64")
    if PROF: e("s_memrealtime s[32:33]")
    e("v_lshrrev_b32 v1, 6, v0")
    e("v_and_b32 v2, 63, v0")
    e("v_readfirstlane_b32 s3, v1")
    c("rb = wg/36 ; wv = (wg%36)*4+wave")
    e("s_mul_i32 s10, s2, 1821")
    e("s_lshr_b32 s10, s10, 16")
    e("s_mul_i32 s11, s10, 36")
    e("s_sub_u32 s11, s2, s11")
    e("s_lshl_b32 s11, s11, 2")
    e("s_add_u32 s11, s11, s3")
    e("s_mul_i32 s24, s11, 1821")
    e("s_lshr_b32 s24, s24, 16")
    e("s_mul_i32 s25, s24, 36")
    e("s_sub_u32 s25, s11, s25")
    e("s_and_b32 s26, s25, 1")
    e("s_lshr_b32 s25, s25, 1")
    c("partial offset = rb*16*PCHUNK + wv*1024 + lane*16")
    e(f"s_mul_i32 s27, s10, {16*PCHUNK}")
    e("s_lshl_b32 s28, s11, 10")
    e("s_add_u32 s27, s27, s28")
    e("v_lshlrev_b32 v3, 4, v2")
    c("x/out offset = (128rb+32r+lane%32)*1152 + tile*64 + (lane/32)*32 + half*16")
    e("s_lshl_b32 s28, s10, 7")
    e("s_lshl_b32 s29, s24, 5")
    e("s_add_u32 s28, s28, s29")
    e("s_mul_i32 s28, s28, 1152")
    e("s_lshl_b32 s29, s25, 6")
    e("s_add_u32 s28, s28, s29")
    e("s_lshl_b32 s29, s26, 4")
    e("s_add_u32 s28, s28, s29")
    e("v_and_b32 v4, 31, v2")
    e("v_mul_u32_u24 v4, 1152, v4")
    e("v_lshrrev_b32 v5, 5, v2")
    e("v_lshl_add_u32 v4, v5, 5, v4")
    e("s_mov_b32 s30, 0x00003f80")
    e("s_mov_b32 s31, 0x3f800000")
    e("s_waitcnt lgkmcnt(0)")
    for (s, k, sz) in ((12, 4, 2048*1152), (16, 6, 2048*1152), (20, 8, WS_BYTES)):
        e(f"s_mov_b32 s{s}, s{k}")
        e(f"s_and_b32 s{s+1}, s{k+1}, 0xffff")
        e(f"s_mov_b32 s{s+2}, {sz}")
        e(f"s_mov_b32 s{s+3}, 0x00020000")
    P = 32
    for j in range(16):
        e(f"buffer_load_dwordx4 {vr(P+4*j,4)}, v3, s[20:23], s27 offen")
        if j < 15: e(f"s_add_u32 s27, s27, {PCHUNK}")
    e("buffer_load_dwordx4 v[28:31], v4, s[12:15], s28 offen")
    e("s_lshl_b32 s27, s10, 9")
    e("s_lshl_b32 s29, s24, 7")
    e("s_add_u32 s27, s27, s29")
    e(f"s_add_u32 s27, s27, {RSTD_OFF}")
    e("v_and_b32 v5, 31, v2")
    e("v_lshlrev_b32 v5, 2, v5")
    e("buffer_load_dword v6, v5, s[20:23], s27 offen")
    F, S = 8, 16
    for i in range(16): e(f"v_mov_b32 v{F+i}, 0")
    for j in range(16):
        e(f"s_waitcnt vmcnt({17-j})")
        a = F if j < 12 else S
        for i in range(4):
            e(f"v_dot2c_f32_bf16 v{a+2*i}, s30, v{P+4*j+i}")
            e(f"v_dot2c_f32_bf16 v{a+2*i+1}, s31, v{P+4*j+i}")
    e("s_nop 2")
    T = 32
    e("s_waitcnt vmcnt(0)")
    for i in range(8): e(f"v_mul_f32 v{F+i}, v{F+i}, v6")
    c("f,s -> bf16")
    for i in range(8):
        e(f"v_cvt_pk_bf16_f32 v{T+i}, v{F+2*i}, v{F+2*i+1}")
    for i in range(8):
        e(f"v_lshlrev_b32 v{F+2*i}, 16, v{T+i}")
        e(f"v_and_b32 v{F+2*i+1}, 0xffff0000, v{T+i}")
    c("g = silu(f) = f/(1+exp(-f))")
    for i in range(8): e(f"v_mul_f32 v{T+i}, 0xbfb8aa3b, v{F+i}")
    for i in range(8): e(f"v_exp_f32 v{T+i}, v{T+i}")
    for i in range(8): e(f"v_add_f32 v{T+i}, 1.0, v{T+i}")
    for i in range(8): e(f"v_rcp_f32 v{T+i}, v{T+i}")
    for i in range(8): e(f"v_mul_f32 v{F+i}, v{F+i}, v{T+i}")
    for i in range(4): e(f"v_cvt_pk_bf16_f32 v{T+i}, v{F+2*i}, v{F+2*i+1}")
    for i in range(4):
        e(f"v_lshlrev_b32 v{F+2*i}, 16, v{T+i}")
        e(f"v_and_b32 v{F+2*i+1}, 0xffff0000, v{T+i}")
    for i in range(8): e(f"v_mul_f32 v{F+i}, v{F+i}, v{S+i}")
    for i in range(4): e(f"v_cvt_pk_bf16_f32 v{T+i}, v{F+2*i}, v{F+2*i+1}")
    e("s_waitcnt vmcnt(0)")
    for i in range(4):
        e(f"v_lshlrev_b32 v{F+2*i}, 16, v{T+i}")
        e(f"v_and_b32 v{F+2*i+1}, 0xffff0000, v{T+i}")
        e(f"v_lshlrev_b32 v{S+2*i}, 16, v{28+i}")
        e(f"v_and_b32 v{S+2*i+1}, 0xffff0000, v{28+i}")
    for i in range(8): e(f"v_add_f32 v{F+i}, v{F+i}, v{S+i}")
    for i in range(4): e(f"v_cvt_pk_bf16_f32 v{T+i}, v{F+2*i}, v{F+2*i+1}")
    e(f"buffer_store_dwordx4 {vr(T,4)}, v4, s[16:19], s28 offen")
    if PROF:
        e("s_waitcnt vmcnt(0)")
        e("s_memrealtime s[34:35]")
        e("s_waitcnt lgkmcnt(0)")
        e("s_lshl_b32 s36, s2, 2")
        e("s_add_u32 s36, s36, s3")
        e("s_lshl_b32 s36, s36, 4")
        e(f"s_add_u32 s36, s36, {65<<20}")
        e("v_mov_b32 v1, 0")
        e("v_mov_b32 v8, s32")
        e("v_mov_b32 v9, 0")
        e("v_mov_b32 v10, s34")
        e("v_mov_b32 v11, 0")
        e("v_cmp_eq_u32 vcc, 0, v2")
        e("s_and_saveexec_b64 s[38:39], vcc")
        e("buffer_store_dwordx4 v[8:11], v1, s[20:23], s36 offen")
        e("s_waitcnt vmcnt(0)")
    lab("Lend2")
    e("s_endpgm")

def desc(kn, vg, acc, sg):
    return f""".amdhsa_kernel {kn}
  .amdhsa_next_free_vgpr {vg}
  .amdhsa_next_free_sgpr {sg}
  .amdhsa_accum_offset {acc}
  .amdhsa_group_segment_fixed_size 0
  .amdhsa_kernarg_size 72
  .amdhsa_user_sgpr_count 2
  .amdhsa_user_sgpr_kernarg_segment_ptr 1
  .amdhsa_system_sgpr_workgroup_id_x 1
.end_amdhsa_kernel
"""

def main(out):
    hdr = open(f"cdna_kernels/{NAME}.s.ref").read().split("; Override")[0]
    L.append(hdr.rstrip("\n"))
    L.append("; @launch kernel=k1_kernel grid=(256,1,1) block=(256,1,1) lds=163840")
    L.append("; @launch kernel=k2_kernel grid=(576,1,1) block=(256,1,1) lds=0")
    L.append('.amdgcn_target "amdgcn-amd-amdhsa--gfx950"')
    L.append(".text")
    k1()
    k2()
    L.append('.section .rodata,"a"')
    L.append(".p2align 6")
    L.append(desc("k1_kernel", 512, 256, 102))
    L.append(".p2align 6")
    L.append(desc("k2_kernel", 96, 96, 40))
    open(out, "w").write("\n".join(L) + "\n")

if __name__ == "__main__":
    main(sys.argv[1] if len(sys.argv) > 1 else f"cdna_kernels/{NAME}.s")
```

```python
import sys
NAME = "recurrent_scan__sliding_local_dilated__dense_activation_relu__prompt"
L = []
def e(s): L.append("    " + s)
def lab(s): L.append(s + ":")
def c(s): L.append("    ; " + s)

SLOT = 24576
NSLOT = 6
KVBASE = 73728
KVSTR = 592
PCHUNK = 147456
HALO_OFF = 256 * PCHUNK
WS_BYTES = HALO_OFF + 64 * 9216
D = 6
R = 8

RSTD_OFF = WS_BYTES
WS_BYTES += 32768
FL_OFF = RSTD_OFF
OOR = 0x40000000
WCOPY = 4
vTID, vLANE, vM, vHH = 0, 1, 2, 3
vA01, vB01, vA2, vB2, vMASKA, vWO = 4, 5, 6, 7, 8, 9
vRSTD, vST, vCI, vCUR, vBASE_G2, vBASE_AG2 = 10, 11, 12, 13, 14, 15
ACC = [16, 32]
PK = [48, 56]
vD, vD2 = 64, 70
vS = 76
H = 80
vT = 96
U = 80
X = 112
NXA = 20
XA = 64
FR = 0
sSRD, sX, sWS, sDBG = 4, 8, 12, 16
sWAVE, sRB, sJOB, sATT = 20, 21, 22, 23
sSOFF, sINC = 24, 25
sMB0, sMB1, sRD, sG, sIDX = 28, 29, 30, 31, 32
sONES, sSELLO, sSELHI = 41, 42, 43
sT0, sT1, sT2, sT3 = 54, 55, 56, 57
sSTOFF, sW6K, sCUR = 58, 59, 60
sK = 64
sEX = 84
kx, kqkv, kwo, kw1, kw2, kdbg, kws = sK, sK+2, sK+4, sK+8, sK+10, sK+14, sK+16
TOG = 0x12000
def xop(s_): return f"a[{XA+4*s_}:{XA+4*s_+3}]" if s_ < NXA else f"v[{X+4*s_}:{X+4*s_+3}]"
import os
PROF = os.environ.get("PROF", "0") == "1"
if PROF: WS_BYTES = 128 << 20
def stamp(i, real=False):
    if not PROF: return
    e(("s_memrealtime" if real else "s_memtime") + " s[86:87]")
    e("s_waitcnt lgkmcnt(0)")
    e(f"s_mov_b32 s{88+i}, s86")
def prof_out():
    if not PROF: return
    stamp(1, True)
    e(f"s_lshl_b32 s86, s2, 2")
    e(f"s_add_u32 s86, s86, s{sWAVE}")
    e(f"s_lshl_b32 s86, s86, 7")
    e(f"s_add_u32 s86, s86, {64<<20}")
    e("v_mov_b32 v1, 0")
    e("v_mov_b32 v3, 0")
    e("v_cmp_eq_u32 vcc, 0, v0")
    e("v_and_b32 v0, 63, v0")
    e("v_cmp_eq_u32 vcc, 0, v0")
    e(f"s_and_saveexec_b64 {sr(sEX,2)}, vcc")
    for i in range(12):
        e(f"v_mov_b32 v2, s{88+i}")
        e(f"buffer_store_dwordx2 v[2:3], v1, {sr(sWS,4)}, s86 offen offset:{8*i}")
        e("s_nop 1")
    e("s_waitcnt vmcnt(0)")
NOW = os.environ.get("NOW", "0") == "1"
NOST = os.environ.get("NOST", "0") == "1"
NODMA = os.environ.get("NODMA", "0") == "1"
NORD = os.environ.get("NORD", "0") == "1"
LIN = os.environ.get("LIN", "0") == "1"
NOPF = os.environ.get("NOPF", "0") == "1"
sPF = 44
sPF2, sPFO, sPFO2 = 48, 52, 53
vPF = 79
PFW1 = int(os.environ.get("PFW1", "0"))
PFN = int(os.environ.get("PFN", "14"))
def pf_srd(k, sz, r=sPF):
    e(f"s_mov_b32 s{r}, s{k}")
    e(f"s_and_b32 s{r+1}, s{k+1}, 0xffff")
    e(f"s_mov_b32 s{r+2}, {0 if (NOW or NOPF) else sz}")
    e(f"s_mov_b32 s{r+3}, 0x00020000")
uid = [0]
def newlab(p):
    uid[0] += 1
    return f"L{p}_{uid[0]}"

def vr(b, n): return f"v[{b}:{b+n-1}]"
def ar(b, n): return f"a[{b}:{b+n-1}]"
def sr(b, n): return f"s[{b}:{b+n-1}]"

IMM = [0, 1024, 2048, 3072, 0, 1024]
def dma_ld(p):
    if NODMA: return []
    return [f"buffer_load_dwordx4 v{vD+p}, {sr(sSRD,4)}, s{sSOFF} offen offset:{IMM[p]} lds"]
def att_delta():
    return [
        f"v_add_u32 v{vCI}, 4, v{vCI}",
        f"v_subrev_u32 v{vS}, 27, v{vCI}",
        f"v_min_u32 v{vCI}, v{vCI}, v{vS}",
        f"v_mul_u32_u24 v{vS}, 57, v{vCI}",
        f"v_lshrrev_b32 v{vS}, 9, v{vS}",
        f"v_mul_u32_u24 v{vS}, 864, v{vS}",
        f"v_lshl_add_u32 v{vS+1}, v{vCI}, 5, v{vS}",
        f"v_sub_u32 v{vS}, v{vS+1}, v{vCUR}",
        f"v_mov_b32 v{vCUR}, v{vS+1}",
    ]

def emit_list(lst):
    for s in lst:
        if s.endswith(":"): L.append(s)
        else: e(s)

def tr_reads(fr, addr, off, second):
    if NORD: return []
    return [f"ds_read_b64_tr_b16 {ar(FR+4*fr,2)}, v{addr} offset:{off}",
            f"ds_read_b64_tr_b16 {ar(FR+4*fr+2,2)}, v{addr} offset:{off+second}"]

def round_bf16(v, tmp):
    return [f"v_cvt_pk_bf16_f32 v{tmp}, v{v}, v{v}", f"v_lshlrev_b32 v{v}, 16, v{tmp}"]

def gemm_body(nst, bop, fill, raddr):
    n = 24 * nst
    for i in range(n):
        st, w = divmod(i, 24)
        tile, ks = divmod(w, 12)
        j = (i + D) % n
        st2, w2 = divmod(j, 24)
        t2, ks2 = divmod(w2, 12)
        a, off = raddr(st2, t2)
        emit_list(tr_reads((i + D) % R, a, off + ks2 * 2048, 512))
        if i % 2 == 0: e(f"s_waitcnt lgkmcnt({2*D-2})")
        acc = vr(ACC[tile], 16)
        cc = "0" if (st == 0 and ks == 0) else acc
        e(f"v_mfma_f32_32x32x16_bf16 {acc}, {ar(FR+4*(i%R),4)}, {bop(12*st+ks)}, {cc}")
        emit_list(fill.get(i, []))

def add(fill, slot, ins):
    fill.setdefault(slot, []).extend(ins)

class Sched:
    def __init__(self, n):
        self.n = n; self.fill = {}; self.load = [0] * n
    def cap(self, i): return 3 if i % 2 == 0 else 2
    def put(self, slot, ins, cost=None):
        slot %= self.n
        add(self.fill, slot, ins)
        self.load[slot] += len(ins) if cost is None else cost
    def seq(self, lo, hi, groups):
        over = 0
        while True:
            ld = list(self.load); pos = []; i = lo; ok = True
            for g in groups:
                while i <= hi and ld[i % self.n] + len(g) > self.cap(i) + over and ld[i % self.n] > 0: i += 1
                if i > hi: ok = False; break
                pos.append(i); ld[i % self.n] += len(g)
            if ok: break
            over += 1
        for g, i in zip(groups, pos): self.put(i, g)
        return pos[-1]
    def vmwait(self, bar_slot, p5_slot_back):
        cnt = 0
        for a in range(p5_slot_back + 1, bar_slot + 1):
            cnt += sum(1 for x in self.fill.get(a % self.n, []) if x.startswith("buffer_"))
        return cnt

BAR = 9
def bars(S, nst, w):
    for st in range(nst):
        b = 24 * st
        n = S.vmwait(b + BAR, b - 72 + BAR + 1 + w + 20 - 24)
        if NODMA: n = 63
        S.put(b + BAR, [f"s_waitcnt vmcnt({n})", "s_barrier"])

RARE = []
def phase1(att, w):
    tag = f"{'a' if att else 'f'}{w}"
    S = Sched(72)
    for st in range(3):
        b = 24 * st
        for p in range(6):
            sl = b + BAR + 1 + w + 4 * p
            if p in (0, 4):
                r, k = [(sMB1, 2 * SLOT), (sMB0, 0), (sMB0, SLOT)][st]
                if sl - 1 >= 72: r = sMB1 if r == sMB0 else sMB0
                S.put(sl - 1, [f"s_add_u32 m0, s{r}, {k + w*6144 + (4096 if p == 4 else 0)}"])
            S.put(sl, dma_ld(p), cost=3)
        S.put(b + BAR + 1 + w + 21, [f"s_add_u32 s{sSOFF}, s{sSOFF}, s{sINC+st}"])
    d2 = [x for x in range(14, 30) if (x - (BAR + 1 + w)) % 4 == 2]
    S.put(d2[0], [f"buffer_load_dword a63, v{vPF}, {sr(sPF,4)}, s{sPFO} offen"], cost=3)
    S.seq(d2[0] + 1, 60, [[f"s_add_u32 s{sPFO}, s{sPFO}, {PFN*128}"],
                          [f"s_cmp_ge_u32 s{sG}, {42 // PFN - 1}", f"s_cselect_b32 s{sPF+2}, 0, s{sPF+2}"]])
    bars(S, 3, w)
    S.seq(36, 60, [[f"v_xor_b32 v{vA01}, v{vMASKA}, v{vA01}"]])
    S.seq(42, 70, [[f"v_xor_b32 v{vB01}, {TOG}, v{vB01}"]])
    S.seq(54, 71, [[f"v_xor_b32 v{vA2}, {TOG}, v{vA2}"]])
    S.seq(66, 71, [[f"v_xor_b32 v{vB2}, {TOG}, v{vB2}"]])
    S.put(71, [f"s_xor_b32 s{sMB0}, s{sMB0}, {TOG}", f"s_xor_b32 s{sMB1}, s{sMB1}, {TOG}",
               f"s_add_u32 s{sG}, s{sG}, 1", f"s_cmp_lt_u32 s{sG}, {7 if att else 6}"])
    sw = 32 + w
    if att:
        S.put(sw, [f"s_cmp_ge_u32 s{sG}, 5", f"s_cselect_b32 s{sSRD+2}, 0, s{sSRD+2}"])
        dl = att_delta()
        S.seq(12, 28, [[x] for x in dl])
        for p in range(6):
            lo = BAR + 1 + w + 4 * p + 1
            S.seq(max(lo, 29), 24 + BAR + w + 4 * p, [[f"v_add_u32 v{vD+p}, v{vD+p}, v{vS}"]])
    else:
        S.put(sw, [f"s_cmp_ge_u32 s{sG}, 4", f"s_cbranch_scc1 Lsw_{tag}", f"Lswr_{tag}:"], cost=2)
        r = [f"Lsw_{tag}:", f"s_cmp_eq_u32 s{sG}, 4", f"s_cbranch_scc0 Lsw5_{tag}",
             f"s_mov_b32 s{sSRD}, s{kw2}", f"s_and_b32 s{sSRD+1}, s{kw2+1}, 0xffff",
             f"s_mov_b32 s{sSRD+2}, {0 if NOW else 4608*1152}", f"s_mul_i32 s{sSOFF}, s{sJOB}, {384*1152}",
             f"s_mov_b32 s{sINC}, {192*1152}", f"s_mov_b32 s{sINC+1}, {192*1152}", f"s_mov_b32 s{sINC+2}, {(128-192*1152) & 0xffffffff}"]
        r += [f"v_mov_b32 v{vD+p}, v{vD2+p}" for p in range(6)]
        r += [f"s_branch Lswr_{tag}", f"Lsw5_{tag}:",
              f"s_mov_b32 s{sINC+2}, {192*1152}", f"s_mov_b32 s{sINC+1}, {(128-192*1152) & 0xffffffff}",
              f"v_xor_b32 v{vMASKA}, v{vA01}, v{vBASE_G2}", f"s_branch Lswr_{tag}"]
        RARE.extend(r)
    def idxblk(tile):
        o = [f"s_set_gpr_idx_on s{sIDX}, 0x8", "s_nop 0"]
        for i in range(8):
            if att: o.append(f"v_cvt_pk_bf16_f32 v{H+8*tile+i}, v{ACC[tile]+2*i}, v{ACC[tile]+2*i+1}")
            else: o.append(f"v_pk_max_i16 v{H+8*tile+i}, v{PK[tile]+i}, 0")
        o.append("s_set_gpr_idx_off")
        return o
    def pre(slot, ins):
        S.fill[slot % 72] = ins + S.fill.get(slot % 72, []); S.load[slot % 72] += len(ins)
    if att:
        S.seq(61, 68, [[f"v_mul_f32 v{ACC[0]+i}, v{ACC[0]+i}, v{vRSTD}"] for i in range(16)])
        sl = [x for x in (71, 70, 69) if (x - (BAR + 1 + w)) % 4 != 0][0]
        k = SLOT + (4096 if sl >= 48 + BAR + w + 16 else 0)
        pre(sl, idxblk(0) + [f"s_add_u32 m0, s{sMB0}, {k + w*6144}"])
        S.seq(1, 8, [[f"v_mul_f32 v{ACC[1]+i}, v{ACC[1]+i}, v{vRSTD}"] for i in range(16)])
        sl = [x for x in (11, 10) if (x - (BAR + 1 + w)) % 4 != 0][0]
        fix = [f"s_add_u32 m0, s{sMB1}, {2*SLOT + w*6144}"] if sl >= BAR + w else []
        S.put(sl, idxblk(1) + fix + [f"s_add_u32 s{sIDX}, s{sIDX}, s{sIDX+1}", f"s_mov_b32 s{sIDX+1}, 16"])
        if w == 3:
            S.seq(40, 44, [[f"s_cmp_ge_u32 s{sG}, 5", f"s_cbranch_scc1 Lpub", "Lpubr:"]])
    else:
        S.seq(61, 71, [[f"v_cvt_pk_bf16_f32 v{PK[0]+i}, v{ACC[0]+2*i}, v{ACC[0]+2*i+1}"] for i in range(8)])
        S.seq(1, 11, [[f"v_cvt_pk_bf16_f32 v{PK[1]+i}, v{ACC[1]+2*i}, v{ACC[1]+2*i+1}"] for i in range(8)])
        pre(BAR + w + 16, idxblk(0))
        pre(24 + BAR + w + 16, idxblk(1) + [f"s_add_u32 s{sIDX}, s{sIDX}, s{sIDX+1}", f"s_mov_b32 s{sIDX+1}, 16"])
    e(".p2align 6")
    lab(f"Lp1_{tag}")
    gemm_body(3, xop, S.fill, lambda st, t: ([vA01, vB01][t], st * SLOT) if st < 2 else ([vA2, vB2][t], 0))
    e(f"s_cbranch_scc1 Lp1_{tag}")

def phase2(w):
    S = Sched(48)
    vA, vB, vB0 = vA01, vB01, vA2
    for st in range(2):
        b = 24 * st
        for p in range(6):
            sl = b + BAR + 1 + w + 4 * p
            if p in (0, 4):
                r, k = [(sMB1, SLOT), (sMB0, 0)][st]
                if sl - 1 >= 48: r = sMB1
                S.put(sl - 1, [f"s_add_u32 m0, s{r}, {k + w*6144 + (4096 if p == 4 else 0)}"])
            S.put(sl, dma_ld(p), cost=3)
        inc = [128 - 192 * 1152, 192 * 1152][st]
        S.put(b + BAR + 1 + w + 21, [f"s_add_u32 s{sSOFF}, s{sSOFF}, {inc & 0xffffffff}"])
    S.put(32 + w, [f"s_cmp_ge_u32 s{sG}, 6", f"s_cselect_b32 s{sSRD+2}, 0, s{sSRD+2}"])
    st_ = lambda r, so, off: [f"buffer_store_dwordx4 {vr(r,4)}, v{vST}, {sr(sWS,4)}, s{so} offen offset:{off} sc0 sc1"]
    d0 = (BAR + 1 + w) % 4
    ssl = lambda lo: [x for x in range(lo, lo + 8) if (x - d0) % 4 == 2]
    a0, a1 = ssl(2); b0, b1 = ssl(14)
    S.put(a0, st_(PK[0], sT2, 0), cost=3); S.put(a1, st_(PK[0] + 4, sT2, 1024), cost=3)
    S.put(b0, st_(PK[1], sT2, 2048), cost=3); S.put(b1, st_(PK[1] + 4, sT2, 3072), cost=3)
    bars(S, 2, w)
    if w == 0:
        S.seq(10, 22, [[f"v_accvgpr_read_b32 v{vS+2}, a60"],
                       [f"v_cmp_eq_u32 vcc, 0x01010101, v{vS+2}"],
                       [f"s_cmp_eq_u32 s{sG}, 5", f"s_cselect_b32 s63, s62, {OOR}"],
                       [f"s_cmp_eq_u32 s{sG}, 8", "s_cselect_b32 s63, s62, s63"]])
        S.put(25, ["s_cmp_eq_u32 vcc_lo, -1", f"s_cselect_b32 s63, s63, {OOR}"])
        S.put(23, [f"s_cmp_eq_u32 s{sG}, 8", f"s_cselect_b32 s{sCUR+1}, 3, 1", f"v_mov_b32 v{vS}, s{sCUR+1}"])
        S.put(28, [f"buffer_store_dword v{vS}, v{vS+1}, {sr(sWS,4)}, s63 offen sc0 sc1"], cost=3)
    S.seq(37, 47, [[f"v_cvt_pk_bf16_f32 v{PK[0]+i}, v{ACC[0]+2*i}, v{ACC[0]+2*i+1}"] for i in range(8)])
    S.seq(1, 11, [[f"v_cvt_pk_bf16_f32 v{PK[1]+i}, v{ACC[1]+2*i}, v{ACC[1]+2*i+1}"] for i in range(8)])
    S.seq(24, 34, [[f"s_add_u32 s{sRD}, s{sRD}, {2*SLOT}", f"s_cmp_eq_u32 s{sRD}, {6*SLOT}", f"s_cselect_b32 s{sRD}, 0, s{sRD}"]])
    S.seq(35, 40, [[f"v_add_u32 v{vA}, s{sRD}, v{vBASE_G2}"]])
    S.seq(42, 46, [[f"v_add_u32 v{vB}, s{sRD}, v{vB0}"]])
    S.seq(24, 46, [[f"s_mov_b32 s{sT2}, s{sSTOFF}"], [f"s_add_u32 s{sSTOFF}, s{sSTOFF}, 4096"]])
    S.put(47, [f"s_mov_b32 s{sMB1}, s{sMB0}", f"s_mov_b32 s{sMB0}, s{sRD}",
               f"s_add_u32 s{sG}, s{sG}, 1", f"s_cmp_lt_u32 s{sG}, 9"])
    e(".p2align 6")
    lab(f"Lp2_{w}")
    gemm_body(2, lambda s_: vr(H + 4 * s_, 4), S.fill, lambda st, t: ([vA, vB][t], st * SLOT))
    e(f"s_cbranch_scc1 Lp2_{w}")

PSL = int(os.environ.get("PSL", "2"))
WOPF = int(os.environ.get("WOPF", "1"))
def signal(val, idx_sgpr):
    e(f"v_mov_b32 v{vS+2}, 0")
    e(f"v_mov_b32 v{vS+1}, {val}")
    e(f"v_cmp_eq_u32 vcc, 0, v{vLANE}")
    e(f"s_and_saveexec_b64 {sr(sEX,2)}, vcc")
    e(f"buffer_store_byte v{vS+1}, v{vS+2}, {sr(sDBG,4)}, s{idx_sgpr} offen sc0 sc1")
    e(f"s_mov_b64 exec, {sr(sEX,2)}")
    e("s_nop 3")

def ready_load():
    e(f"v_min_u32 v{vS+2}, 2, v{vLANE}")
    e(f"v_lshlrev_b32 v{vS+2}, 2, v{vS+2}")
    e(f"s_lshl_b32 s62, s{sRB}, 4")
    e(f"buffer_load_dword a60, v{vS+2}, {sr(sDBG,4)}, s62 offen sc0 sc1")

def ready_check(tag):
    e(f"v_accvgpr_read_b32 v{vS+2}, a60")
    e("s_nop 1")
    e(f"v_cmp_eq_u32 vcc, 0x01010101, v{vS+2}")
    e("s_nop 3")
    e("s_cmp_eq_u32 vcc_lo, -1")
    e(f"s_cbranch_scc1 Lrdy_{tag}")
    e(f"s_lshl_b32 s62, s{sRB}, 4")
    e(f"s_mov_b32 s63, 0x01010101")
    poll("r" + tag, 62, 3, "s63", "s63", vS - 1, 4)
    lab(f"Lrdy_{tag}")

def flag_regs():
    e(f"s_mul_i32 s62, s{sRB}, 1536")
    e(f"s_lshl_b32 s63, s{sJOB}, 2")
    e(f"s_add_u32 s62, s62, s63")
    e(f"s_add_u32 s62, s62, {FL_OFF}")
    e(f"v_lshlrev_b32 v{vS+1}, 7, v{vLANE}")
    e(f"v_mov_b32 v{vS+3}, {OOR}")
    e(f"v_cmp_gt_u32 vcc, 12, v{vLANE}")
    e("s_nop 1")
    e(f"v_cndmask_b32 v{vS+1}, v{vS+3}, v{vS+1}, vcc")

def wg_signal(tag, val):
    e("s_waitcnt vmcnt(0)")
    e("s_barrier")
    e(f"s_cmp_eq_u32 s{sWAVE}, 0")
    e(f"s_cbranch_scc0 Lnosig_{tag}")
    ready_check(tag)
    flag_regs()
    e(f"v_mov_b32 v{vS}, {val}")
    e(f"buffer_store_dword v{vS}, v{vS+1}, {sr(sWS,4)}, s62 offen sc0 sc1")
    lab(f"Lnosig_{tag}")

def poll(tag, idx_sgpr, nw, and_sgpr, cmp_sgpr, vt, slp, keep=False):
    e(f"s_mov_b32 s{sCUR+1}, 0x4000")
    lab(f"Lpoll_{tag}")
    ld = {1: "dword", 3: "dwordx3"}[nw]
    e(f"buffer_load_{ld} {vr(vt+1,nw) if nw>1 else 'v%d'%(vt+1)}, off, {sr(sDBG,4)}, s{idx_sgpr} sc0 sc1")
    e("s_waitcnt vmcnt(0)")
    if nw == 3:
        e(f"v_and_b32 v{vt+1}, v{vt+1}, v{vt+2}")
        e(f"v_and_b32 v{vt+1}, v{vt+1}, v{vt+3}")
        e("s_nop 1")
    e(f"v_readfirstlane_b32 s{sT2}, v{vt+1}")
    e("s_nop 3")
    e(f"s_and_b32 s{sT2}, s{sT2}, {and_sgpr}")
    e(f"s_cmp_eq_u32 s{sT2}, {cmp_sgpr}")
    e(f"s_cbranch_scc1 Lpollok_{tag}")
    e(f"s_sleep {slp}")
    e(f"s_sub_u32 s{sCUR+1}, s{sCUR+1}, 1")
    e(f"s_cbranch_scc0 Lpoll_{tag}")
    lab(f"Lpollok_{tag}")

def wg_poll(tag, bit, mask, vt, slp):
    e(f"s_cmp_eq_u32 s{sWAVE}, 0")
    e(f"s_cbranch_scc0 Lpollok_{tag}")
    e(f"s_mov_b32 s{sCUR+1}, 0x4000")
    lab(f"Lpoll_{tag}")
    e(f"buffer_load_dword v{vt+1}, v{vt}, {sr(sWS,4)}, s{sT3} offen sc0 sc1")
    e("s_waitcnt vmcnt(0)")
    e(f"v_and_b32 v{vt+1}, {bit}, v{vt+1}")
    e(f"v_cmp_ne_u32 vcc, 0, v{vt+1}")
    e("s_nop 3")
    e(f"s_and_b32 s{sT2}, vcc_lo, {mask}")
    e(f"s_cmp_eq_u32 s{sT2}, {mask}")
    e(f"s_cbranch_scc1 Lpollok_{tag}")
    e(f"s_sleep {slp}")
    e(f"s_sub_u32 s{sCUR+1}, s{sCUR+1}, 1")
    e(f"s_cbranch_scc0 Lpoll_{tag}")
    lab(f"Lpollok_{tag}")
    e("s_barrier")

def reduce_tail():
    sO = sPF
    P, XV, F = 80, 16, 28
    Sg = 52
    e(f"s_lshl_b32 s{sT0}, s{sRB}, 2")
    e(f"s_add_u32 s{sT0}, s{sT0}, s{sWAVE}")
    c("x/out offsets")
    e(f"s_mul_i32 s{sT0}, s{sT0}, {32*1152}")
    e(f"v_mul_u32_u24 v4, 1152, v{vM}")
    e(f"v_lshl_add_u32 v4, v{vHH}, 5, v4")
    for i in range(3):
        e(f"s_add_u32 s{sT2}, s{sJOB}, {12*i}")
        e(f"s_and_b32 s{sINC+i}, s{sT2}, 1")
        e(f"s_lshl_b32 s{sINC+i}, s{sINC+i}, 4")
        e(f"s_lshr_b32 s{sT2}, s{sT2}, 1")
        e(f"s_lshl_b32 s{sT2}, s{sT2}, 6")
        e(f"s_add_u32 s{sINC+i}, s{sINC+i}, s{sT2}")
        e(f"s_add_u32 s{sINC+i}, s{sINC+i}, s{sT0}")
    e(f"s_mov_b32 s{sO}, s{sK+12}")
    e(f"s_and_b32 s{sO+1}, s{sK+13}, 0xffff")
    e(f"s_mov_b32 s{sO+2}, {2048*1152}")
    e(f"s_mov_b32 s{sO+3}, 0x00020000")
    c("partial base = (rb*64 + wave)*36864 + job*3072")
    e(f"s_lshl_b32 s{sT0}, s{sRB}, 6")
    e(f"s_add_u32 s{sT0}, s{sT0}, s{sWAVE}")
    e(f"s_mul_i32 s{sSOFF}, s{sT0}, 36864")
    e(f"s_lshl_b32 s{sT0}, s{sJOB}, 10")
    e(f"s_add_u32 s{sSOFF}, s{sSOFF}, s{sT0}")
    wg_signal("f", 7)
    e(f"s_mul_i32 s{sT3}, s{sRB}, 12")
    e(f"s_add_u32 s{sT3}, s{sT3}, s{sJOB}")
    e(f"s_lshl_b32 s{sT3}, s{sT3}, 7")
    e(f"s_add_u32 s{sT3}, s{sT3}, {FL_OFF}")
    e(f"v_and_b32 v5, 15, v{vLANE}")
    e(f"v_lshlrev_b32 v5, 2, v5")
    for i in range(3):
        e(f"buffer_load_dwordx4 {vr(XV+4*i,4)}, v4, {sr(sX,4)}, s{sINC+i} offen")
    for i in range(48): e(f"v_mov_b32 v{F+i}, 0")
    stamp(8)
    def loads(n, base, i, j0):
        e(f"s_add_u32 s{sT0}, s{sSOFF}, {j0*PCHUNK + 12288*i}")
        for j in range(n):
            e(f"buffer_load_dwordx4 {vr(base+12*j+4*i,4)}, v{vST}, {sr(sWS,4)}, s{sT0} offen sc0 sc1")
            if j < n - 1: e(f"s_add_u32 s{sT0}, s{sT0}, {PCHUNK}")
    def accum(n, base, acc):
        for i3 in range(3):
            for j in range(n):
                e(f"s_waitcnt vmcnt({n*(2-i3) + n-1-j})")
                for i in range(4*i3, 4*i3+4):
                    e(f"v_dot2c_f32_bf16 v{acc+2*i}, s{sSELLO}, v{base+12*j+i}")
                    e(f"v_dot2c_f32_bf16 v{acc+2*i+1}, s{sSELHI}, v{base+12*j+i}")
    for i in range(3):
        wg_poll(f"f{i}", 1 << i, "0xfff", 5, 2)
        if i == 2: stamp(9)
        loads(12, P, i, 0)
    accum(12, P, F)
    e("s_nop 2")
    T = 80
    def rnd(b):
        for i in range(12): e(f"v_cvt_pk_bf16_f32 v{T+i}, v{b+2*i}, v{b+2*i+1}")
        for i in range(12):
            e(f"v_lshlrev_b32 v{b+2*i}, 16, v{T+i}")
            e(f"v_and_b32 v{b+2*i+1}, 0xffff0000, v{T+i}")
    for i in range(24): e(f"v_mul_f32 v{F+i}, v{F+i}, v{vRSTD}")
    rnd(F)
    c("g = silu(f)")
    for i in range(24): e(f"v_mul_f32 v{T+i}, 0xbfb8aa3b, v{F+i}")
    for i in range(24): e(f"v_exp_f32 v{T+i}, v{T+i}")
    for i in range(24): e(f"v_add_f32 v{T+i}, 1.0, v{T+i}")
    for i in range(24): e(f"v_rcp_f32 v{T+i}, v{T+i}")
    for i in range(24): e(f"v_mul_f32 v{F+i}, v{F+i}, v{T+i}")
    rnd(F)
    stamp(10)
    wg_poll("a", 1, "0xf000", 5, PSL)
    stamp(11)
    for i in range(3): loads(4, 112, i, 12)
    accum(4, 112, Sg)
    e("s_nop 2")
    rnd(Sg)
    for i in range(24): e(f"v_mul_f32 v{F+i}, v{F+i}, v{Sg+i}")
    rnd(F)
    for i in range(12):
        e(f"v_lshlrev_b32 v{Sg+2*i}, 16, v{XV+i}")
        e(f"v_and_b32 v{Sg+2*i+1}, 0xffff0000, v{XV+i}")
    for i in range(24): e(f"v_add_f32 v{F+i}, v{F+i}, v{Sg+i}")
    for i in range(12): e(f"v_cvt_pk_bf16_f32 v{T+i}, v{F+2*i}, v{F+2*i+1}")
    for i in range(3):
        e(f"buffer_store_dwordx4 {vr(T+4*i,4)}, v4, {sr(sO,4)}, s{sINC+i} offen")

def k1():
    kn = NAME + "_kernel"
    L.append(f".globl {kn}\n.p2align 8\n.type {kn},@function")
    lab(kn)
    e("s_cmp_ge_u32 s2, 256")
    e("s_cbranch_scc1 Lend1")
    e(f"s_load_dwordx16 {sr(sK,16)}, s[0:1], 0")
    e(f"s_load_dwordx2 {sr(sK+16,2)}, s[0:1], 64")
    if PROF:
        for i in range(12): e(f"s_mov_b32 s{88+i}, 0")
    stamp(0, True)
    stamp(2)
    c("lane decode")
    e(f"v_and_b32 v{vLANE}, 63, v0")
    e(f"v_lshrrev_b32 v{vT}, 6, v0")
    e(f"v_and_b32 v{vM}, 31, v0")
    e(f"v_readfirstlane_b32 s{sWAVE}, v{vT}")
    e(f"v_bfe_u32 v{vHH}, v0, 5, 1")
    c("wg decode: xcd=wg%8, q=wg/8; jg=xcd%4; i=q%4; rb=(xcd/4)*8+q/4")
    e(f"s_and_b32 s{sT0}, s2, 3")
    e(f"s_bfe_u32 s{sT1}, s2, 0x20003")
    e(f"s_bfe_u32 s{sT2}, s2, 0x10002")
    e(f"s_lshr_b32 s{sT3}, s2, 5")
    e(f"s_lshl_b32 s{sRB}, s{sT2}, 3")
    e(f"s_add_u32 s{sRB}, s{sRB}, s{sT3}")
    e(f"s_mul_i32 s{sJOB}, s{sT0}, 3")
    e(f"s_add_u32 s{sJOB}, s{sJOB}, s{sT1}")
    e(f"s_add_u32 s{sT2}, s{sT0}, 12")
    e(f"s_cmp_eq_u32 s{sT1}, 3")
    e(f"s_cselect_b32 s{sJOB}, s{sT2}, s{sJOB}")
    e(f"s_cselect_b32 s{sATT}, 1, 0")
    e(f"s_mul_i32 s{sW6K}, s{sWAVE}, 6144")
    e(f"s_mov_b32 s{sONES}, 0x3f803f80")
    e(f"s_mov_b32 s{sSELLO}, 0x00003f80")
    e(f"s_mov_b32 s{sSELHI}, 0x3f800000")
    c("x dma voffsets: i=lane/8, j'=lane%8; key=(i>>1)|(par<<2); off=i*1152+((j'^key)*16)")
    e(f"v_lshrrev_b32 v{vT}, 3, v{vLANE}")
    e(f"v_and_b32 v{vT+1}, 7, v{vLANE}")
    e(f"v_lshrrev_b32 v{vT+2}, 1, v{vT}")
    e(f"v_xor_b32 v{vT+2}, v{vT+1}, v{vT+2}")
    e(f"v_mul_u32_u24 v{vT+3}, 1152, v{vT}")
    e(f"v_lshl_add_u32 v{vT+4}, v{vT+2}, 4, v{vT+3}")
    e(f"v_xor_b32 v{vT+5}, 64, v{vT+4}")
    e("s_waitcnt lgkmcnt(0)")
    c("SRDs")
    for (s, k, sz) in ((sX, kx, 2048*1152), (sWS, kws, WS_BYTES), (sDBG, kdbg, 256)):
        e(f"s_mov_b32 s{s}, s{k}")
        e(f"s_and_b32 s{s+1}, s{k+1}, 0xffff")
        e(f"s_mov_b32 s{s+2}, {sz}")
        e(f"s_mov_b32 s{s+3}, 0x00020000")
    c("reducer WGs (wave 0) clear their flag line first")
    e(f"s_mul_i32 s63, s{sRB}, 12")
    e(f"s_add_u32 s63, s63, s{sJOB}")
    e(f"s_lshl_b32 s63, s63, 7")
    e(f"s_add_u32 s63, s63, {FL_OFF}")
    e(f"s_lshl_b32 s62, s{sRB}, 4")
    e(f"s_add_u32 s62, s62, s{sJOB}")
    e(f"s_add_u32 s{sT0}, s{sWAVE}, s{sATT}")
    e(f"s_cmp_eq_u32 s{sT0}, 0")
    e(f"s_cselect_b32 s63, s63, {OOR}")
    e(f"s_cselect_b32 s62, s62, {OOR}")
    e(f"v_and_b32 v{vS}, 15, v{vLANE}")
    e(f"v_lshlrev_b32 v{vS}, 2, v{vS}")
    e(f"v_mov_b32 v{vS+1}, 0")
    e(f"buffer_store_dword v{vS+1}, v{vS}, {sr(sWS,4)}, s63 offen sc0 sc1")
    c("x rows base")
    e(f"s_lshl_b32 s{sT0}, s{sRB}, 7")
    e(f"s_lshl_b32 s{sT1}, s{sWAVE}, 5")
    e(f"s_add_u32 s{sT0}, s{sT0}, s{sT1}")
    e(f"s_mul_i32 s{sT0}, s{sT0}, 1152")
    e(f"s_add_u32 s{sT1}, s{sT0}, {8*1152}")
    e(f"s_add_u32 s{sT2}, s{sT0}, {16*1152}")
    e(f"s_add_u32 s{sT3}, s{sT0}, {24*1152}")
    e(f"s_mul_i32 s{sCUR}, s{sWAVE}, 36864")
    for cg in range(9):
        for br in range(4):
            e(f"s_add_u32 m0, s{sCUR}, {(br*9+cg)*1024 - cg*128}")
            e("s_nop 0")
            e(f"buffer_load_dwordx4 v{vT+4+(br&1)}, {sr(sX,4)}, s{sT0+br} offen offset:{cg*128} lds")
    c("cache warm-up, chip-wide split: unit u = wg*4+wave, one dword per 128-B line")
    e(f"s_lshl_b32 s{sT0}, s2, 2")
    e(f"s_add_u32 s{sT0}, s{sT0}, s{sWAVE}")
    for (k_, sz_, n_) in ((kqkv, 576*3456, 16), (kw1, 576*9216, 41), (kwo, 576*1152, 6)):
        pf_srd(k_, sz_ if (n_ != 41 or PFW1 == 1) else 0)
        e(f"v_min_u32 v{vT}, {n_-1}, v{vLANE}")
        e(f"v_lshlrev_b32 v{vT}, 7, v{vT}")
        e(f"s_mul_i32 s{sT1}, s{sT0}, {n_*128}")
        e(f"buffer_load_dword a63, v{vT}, {sr(sPF,4)}, s{sT1} offen")
    pf_srd(kw2, 4608*1152)
    e(f"v_min_u32 v{vPF}, {PFN-1}, v{vLANE}")
    e(f"v_lshlrev_b32 v{vPF}, 7, v{vPF}")
    e(f"s_mul_i32 s{sPFO}, s{sT0}, {42*128}")
    c("x frag read addresses: base + (m/8)*9216 + (m%8)*128 + (((2q+hh)^key)*16), key=(m>>1)&7")
    e(f"v_lshrrev_b32 v{vT}, 3, v{vM}")
    e(f"v_mul_u32_u24 v{vT}, 9216, v{vT}")
    e(f"v_and_b32 v{vT+1}, 7, v{vM}")
    e(f"v_lshl_add_u32 v{vT}, v{vT+1}, 7, v{vT}")
    e(f"v_add_u32 v{vT}, s{sCUR}, v{vT}")
    e(f"v_bfe_u32 v{vT+1}, v{vM}, 1, 3")
    e(f"v_xor_b32 v{vT+1}, v{vT+1}, v{vHH}")
    for q in range(4):
        e(f"v_xor_b32 v{vT+2}, {2*q}, v{vT+1}")
        e(f"v_lshl_add_u32 v{vT+6+q}, v{vT+2}, 4, v{vT}")
    c("tr-read lane bases. g=lane/16: ch=g&1, hh=g>>1; r=(lane%16)/4, cc=lane%4")
    tr, tc, tch, trow, tsw = U+10, U+11, U+12, U+13, U+14
    e(f"v_bfe_u32 v{tr}, v{vLANE}, 2, 2")
    e(f"v_and_b32 v{tc}, 3, v{vLANE}")
    e(f"v_bfe_u32 v{tch}, v{vLANE}, 4, 1")
    e(f"v_lshl_add_u32 v{trow}, v{vHH}, 3, v{tr}")
    e(f"v_lshlrev_b32 v{trow}, 7, v{trow}")
    e(f"v_lshrrev_b32 v{tsw}, 1, v{tr}")
    vCOLP = U + 9
    c(" FFN gemm1: sw*64 + ch*32 + c*8")
    e(f"v_lshl_add_u32 v{vA01}, v{tsw}, 6, v{trow}")
    e(f"v_lshl_add_u32 v{vA01}, v{tch}, 5, v{vA01}")
    e(f"v_lshl_add_u32 v{vA01}, v{tc}, 3, v{vA01}")
    c(" gemm2 mapping: sw*64 + (c%2)*32 + ch*16 + (c/2)*8")
    e(f"v_and_b32 v{U+15}, 1, v{tc}")
    e(f"v_lshlrev_b32 v{vCOLP}, 6, v{tsw}")
    e(f"v_lshl_add_u32 v{vCOLP}, v{U+15}, 5, v{vCOLP}")
    e(f"v_lshl_add_u32 v{vCOLP}, v{tch}, 4, v{vCOLP}")
    e(f"v_lshrrev_b32 v{vT+2}, 1, v{tc}")
    e(f"v_lshl_add_u32 v{vCOLP}, v{vT+2}, 3, v{vCOLP}")
    e(f"v_add_u32 v{vBASE_G2}, v{vCOLP}, v{trow}")
    e(f"v_mul_u32_u24 v{vBASE_AG2}, 72, v{vHH}")
    e(f"v_add_u32 v{vBASE_AG2}, v{vBASE_AG2}, v{tr}")
    e(f"v_lshl_add_u32 v{vBASE_AG2}, v{vBASE_AG2}, 7, v{vCOLP}")
    c("dma lane decode")
    di, dj, dsw = U+10, U+11, U+12
    e(f"v_lshrrev_b32 v{di}, 3, v{vLANE}")
    e(f"v_and_b32 v{dj}, 7, v{vLANE}")
    e(f"v_bfe_u32 v{dsw}, v{di}, 1, 1")
    e(f"v_lshlrev_b32 v{U+13}, 2, v{dsw}")
    e(f"v_xor_b32 v{dj}, v{dj}, v{U+13}")
    e(f"v_lshlrev_b32 v{U+13}, 4, v{dj}")
    e(f"s_mul_i32 s{sT0}, s{sWAVE}, 48")
    e(f"v_add_u32 v{U+14}, s{sT0}, v{di}")
    e(f"v_mov_b32 v{vWO}, 0")
    for p_ in range(6): e(f"v_mov_b32 v{vD2+p_}, 0")
    e(f"s_cmp_eq_u32 s{sATT}, 1")
    e("s_cbranch_scc1 Lsetup_att")
    c("---- FFN setup")
    e(f"v_mul_u32_u24 v{U+14}, 9216, v{U+14}")
    e(f"v_add_u32 v{vD}, v{U+14}, v{U+13}")
    for p_ in range(1, 6): e(f"v_add_u32 v{vD+p_}, {p_*8*9216 - IMM[p_]}, v{vD}")
    c(" W2: row = 48w + 8*(i/4) + i%4")
    e(f"v_lshrrev_b32 v{U+14}, 2, v{di}")
    e(f"v_and_b32 v{U+15}, 3, v{di}")
    e(f"v_lshl_add_u32 v{U+14}, v{U+14}, 3, v{U+15}")
    e(f"v_add_u32 v{U+14}, s{sT0}, v{U+14}")
    e(f"v_mul_u32_u24 v{U+14}, 1152, v{U+14}")
    e(f"v_add_u32 v{vD2}, v{U+14}, v{U+13}")
    for p_ in range(1, 6): e(f"v_add_u32 v{vD2+p_}, {((p_//2)*16 + (p_%2)*4)*1152 - IMM[p_]}, v{vD2}")
    e(f"s_mov_b32 s{sSRD}, s{kw1}")
    e(f"s_and_b32 s{sSRD+1}, s{kw1+1}, 0xffff")
    e(f"s_mov_b32 s{sSRD+2}, {576*9216}")
    e(f"s_mul_i32 s{sSOFF}, s{sJOB}, 768")
    e(f"s_mov_b32 s{sINC}, {(128 - 2*192*9216) & 0xffffffff}")
    e(f"s_mov_b32 s{sINC+1}, {192*9216}")
    e(f"s_mov_b32 s{sINC+2}, {192*9216}")
    e(f"v_mov_b32 v{vS}, 0")
    e("s_branch Lsetup_done")
    lab("Lsetup_att")
    c("---- attention setup: ci = 9 + j/2 ; base = row*3456 + 16*(j%2) + 32*ci + 864")
    e(f"v_mov_b32 v{vA01}, v{vBASE_G2}")
    e(f"v_lshrrev_b32 v{U+15}, 1, v{dj}")
    e(f"v_add_u32 v{vCI}, 9, v{U+15}")
    e(f"v_lshlrev_b32 v{vCUR}, 5, v{vCI}")
    e(f"v_add_u32 v{vCUR}, 864, v{vCUR}")
    e(f"v_mul_u32_u24 v{U+14}, 3456, v{U+14}")
    e(f"v_add3_u32 v{vD}, v{U+14}, v{U+13}, 0")
    e(f"v_add_u32 v{vD}, 1152, v{vD}")
    for p_ in range(1, 6): e(f"v_add_u32 v{vD+p_}, {p_*8*3456 - IMM[p_]}, v{vD}")
    c(" Wo dma voffset: row=40w+i natural")
    e(f"s_mul_i32 s{sT1}, s{sWAVE}, 40")
    e(f"v_add_u32 v{U+14}, s{sT1}, v{di}")
    e(f"v_mul_u32_u24 v{U+14}, 1152, v{U+14}")
    e(f"v_add_u32 v{vWO}, v{U+14}, v{U+13}")
    e(f"s_mov_b32 s{sSRD}, s{kqkv}")
    e(f"s_and_b32 s{sSRD+1}, s{kqkv+1}, 0xffff")
    e(f"s_mov_b32 s{sSRD+2}, {576*3456}")
    e(f"s_sub_u32 s{sT1}, s{sJOB}, 12")
    e(f"s_mul_i32 s{sSOFF}, s{sT1}, 288")
    e(f"s_mov_b32 s{sINC}, {(- 2*192*3456) & 0xffffffff}")
    e(f"s_mov_b32 s{sINC+1}, {192*3456}")
    e(f"s_mov_b32 s{sINC+2}, {192*3456}")
    emit_list(att_delta())
    lab("Lsetup_done")
    e(f"s_mov_b32 s{sSRD+3}, 0x00020000")
    if NOW: e(f"s_mov_b32 s{sSRD+2}, 0")
    e(f"s_mov_b32 s{sMB0}, 0")
    e(f"s_mov_b32 s{sMB1}, {TOG}")
    e(f"s_mov_b32 s{sG}, 0")
    e(f"s_mov_b32 s{sIDX}, 0")
    e(f"s_mov_b32 s{sIDX+1}, 0")
    e(f"v_xor_b32 v{vB01}, 64, v{vA01}")
    e(f"v_add_u32 v{vA2}, {2*SLOT}, v{vA01}")
    e(f"v_add_u32 v{vB2}, {2*SLOT}, v{vB01}")
    e(f"v_mov_b32 v{vMASKA}, {TOG}")
    c("partial store: voffset = lane*16 ; soffset base = ((rb*16+job)*4+wave)*36864")
    e(f"v_lshlrev_b32 v{vST}, 4, v{vLANE}")
    e(f"s_lshl_b32 s{sT0}, s{sRB}, 4")
    e(f"s_add_u32 s{sT0}, s{sT0}, s{sJOB}")
    e(f"s_lshl_b32 s{sT0}, s{sT0}, 2")
    e(f"s_add_u32 s{sT0}, s{sT0}, s{sWAVE}")
    e(f"s_mul_i32 s{sSTOFF}, s{sT0}, 36864")
    if NOST: e(f"s_mov_b32 s{sSTOFF}, 0x40000000")
    c("---- read x frags, row sums (sum of squares only where rstd is needed)")
    s0 = 16
    for i in range(8): e(f"v_mov_b32 v{s0+i}, 0")
    def sums(cg):
        for i in range(16):
            e(f"v_dot2c_f32_bf16 v{s0+i%4}, s{sONES}, v{X+16*cg+i}")
        for i in range(16):
            e(f"v_dot2c_f32_bf16 v{s0+4+i%4}, v{X+16*cg+i}, v{X+16*cg+i}")
    e(f"s_cmp_eq_u32 s{sATT}, 1")
    for cg in range(9):
        e(f"s_waitcnt vmcnt({39 - 4*(cg+1)})")
        for q in range(4):
            s_ = 4 * cg + q
            e(f"ds_read_b128 {vr(X+4*s_,4)}, v{vT+6+q} offset:{cg*1024}")
        if cg > 0:
            e("s_waitcnt lgkmcnt(4)")
            sums(cg - 1)
        if PFW1 >= 2 and cg == 8:
            pf_srd(kw1, 576*9216, sPF2)
            e(f"v_min_u32 v{vT}, 40, v{vLANE}")
            e(f"v_lshlrev_b32 v{vT}, 7, v{vT}")
            e(f"s_lshl_b32 s{sT0}, s2, 2")
            e(f"s_add_u32 s{sT0}, s{sT0}, s{sWAVE}")
            e(f"s_mul_i32 s{sT1}, s{sT0}, {41*128}")
            e(f"buffer_load_dword a63, v{vT}, {sr(sPF2,4)}, s{sT1} offen")
            e(f"s_cmp_eq_u32 s{sATT}, 1")
    e("s_waitcnt lgkmcnt(0)")
    e("s_barrier")
    stamp(3)
    sums(8)
    prime = []
    for t_ in range(5):
        for p_ in range(6 if t_ < 4 else 3):
            o = []
            if p_ in (0, 4):
                o += [f"s_add_u32 m0, s{sW6K}, {t_*SLOT + (4096 if p_ == 4 else 0)}", "s_nop 0"]
            o += dma_ld(p_)
            if t_ == 2: o += [f"v_add_u32 v{vD+p_}, v{vD+p_}, v{vS}"]
            if t_ < 4 and p_ == 5: o += [f"s_add_u32 s{sSOFF}, s{sSOFF}, s{sINC + (0 if t_ == 2 else 1)}"]
            prime.append(o)
    for _ in range(3): emit_list(prime.pop(0))
    c("---- LN")
    q0 = s0 + 4
    for b_ in (s0, q0):
        e(f"v_add_f32 v{b_}, v{b_}, v{b_+1}")
        e(f"v_add_f32 v{b_+2}, v{b_+2}, v{b_+3}")
        e(f"v_add_f32 v{b_}, v{b_}, v{b_+2}")
        e(f"v_mov_b32 v{b_+1}, v{b_}")
        e("s_nop 1")
        e(f"v_permlane32_swap_b32 v{b_}, v{b_+1}")
        e("s_nop 1")
        e(f"v_add_f32 v{b_}, v{b_}, v{b_+1}")
        e(f"v_mul_f32 v{b_}, {1.0/576:.9e}, v{b_}")
    e(f"v_fma_f32 v{q0}, -v{s0}, v{s0}, v{q0}")
    emit_list(round_bf16(s0, s0+2))
    e(f"v_sub_f32 v{s0+2}, 0, v{s0}")
    negm = s0 + 2
    e(f"v_max_f32 v{q0}, 0, v{q0}")
    emit_list(round_bf16(q0, q0+1))
    e(f"v_add_f32 v{q0}, 0x3727c5ac, v{q0}")
    emit_list(round_bf16(q0, q0+1))
    e(f"v_sqrt_f32 v{q0}, v{q0}")
    e("s_nop 0")
    emit_list(round_bf16(q0, q0+1))
    e(f"v_rcp_f32 v{vRSTD}, v{q0}")
    t = 32
    for b in range(0, 152, 4):
        tb = t + (8 if (b // 4) % 2 else 0)
        if b < 144:
            for i in range(4):
                e(f"v_dot2_f32_bf16 v{tb+2*i}, v{X+b+i}, s{sSELLO}, v{negm}")
                e(f"v_dot2_f32_bf16 v{tb+2*i+1}, v{X+b+i}, s{sSELHI}, v{negm}")
        else: e("s_nop 2")
        if 0 < b <= 144:
            pb = t + (8 if (b // 4 - 1) % 2 else 0)
            for i in range(4):
                e(f"v_cvt_pk_bf16_f32 v{X+b-4+i}, v{pb+2*i}, v{pb+2*i+1}")
        if b > 4 and b - 8 < 4 * NXA:
            for i in range(4): e(f"v_accvgpr_write_b32 a{XA+b-8+i}, v{X+b-8+i}")
        if prime and (b // 4) % 3 != 2: emit_list(prime.pop(0))
    while prime: emit_list(prime.pop(0))
    stamp(4)
    c("stage 0 landed?")
    e("s_waitcnt vmcnt(21)")
    e("s_barrier")
    stamp(5)
    for i in range(D):
        emit_list(tr_reads(i % R, vA01, i * 2048, 512))
    e(f"s_cmp_lt_u32 s{sWAVE}, 2")
    e("s_cbranch_scc0 Lno3")
    emit_list(dma_ld(3))
    lab("Lno3")
    c("flag line cleared long ago (in-order vmcnt) -> announce; other waves: out of range")
    e(f"v_lshlrev_b32 v{vS+1}, 8, v{vLANE}")
    e(f"v_mov_b32 v{vS+2}, 1")
    e(f"buffer_store_byte v{vS+2}, v{vS+1}, {sr(sDBG,4)}, s62 offen sc0 sc1")
    e(f"s_lshl_b32 s{sT0}, s{sATT}, 2")
    e(f"s_add_u32 s{sT0}, s{sT0}, s{sWAVE}")
    for k_ in range(1, 8):
        e(f"s_cmp_eq_u32 s{sT0}, {k_}")
        e(f"s_cbranch_scc1 Lp1_{'a' if k_ >= 4 else 'f'}{k_ % 4}")
    for w in range(4):
        c(f"================ FFN wave {w}")
        phase1(False, w)
        stamp(6)
        e(f"s_mov_b32 s{sT2}, 0x40000000")
        for i in range(8): e(f"v_pk_max_i16 v{H+80+i}, v{PK[0]+i}, 0")
        for i in range(4):
            if w == 0 and i == 0: ready_load()
            else: e(f"buffer_store_dwordx4 {vr(PK[0],4)}, v{vST}, {sr(sWS,4)}, s{sT2} offen")
        e(f"v_xor_b32 v{vA2}, 64, v{vBASE_G2}")
        e(f"v_xor_b32 v{vB01}, 64, v{vBASE_G2}")
        e(f"s_mov_b32 s{sG}, 0")
        e(f"s_mov_b32 s{sRD}, 0")
        e(f"s_mov_b32 s{sMB0}, 0")
        e(f"s_mov_b32 s{sMB1}, {4*SLOT}")
        e("s_nop 3")
        for i in range(8): e(f"v_cvt_pk_bf16_f32 v{PK[1]+i}, v{ACC[1]+2*i}, v{ACC[1]+2*i+1}")
        for i in range(8): e(f"v_pk_max_i16 v{H+88+i}, v{PK[1]+i}, 0")
        if w == 0: flag_regs()
        phase2(w)
        if w < 3: e("s_branch Lffn_end")
    lab("Lffn_end")
    st_ = lambda r, off: e(f"buffer_store_dwordx4 {vr(r,4)}, v{vST}, {sr(sWS,4)}, s{sT2} offen offset:{off} sc0 sc1")
    st_(PK[0], 0); st_(PK[0] + 4, 1024)
    e("s_nop 7")
    e("s_nop 3")
    for i in range(8):
        e(f"v_cvt_pk_bf16_f32 v{PK[1]+i}, v{ACC[1]+2*i}, v{ACC[1]+2*i+1}")
    st_(PK[1], 2048); st_(PK[1] + 4, 3072)
    stamp(7)
    reduce_tail()
    if PROF: e("s_waitcnt vmcnt(0)")
    prof_out()
    e("s_endpgm")
    emit_list(RARE)
    c("halo publish / flag (attention wave 3)")
    lab("Lpub")
    e(f"s_lshl_b32 s{sT0}, s{sRB}, 2")
    e(f"s_add_u32 s{sT0}, s{sT0}, s{sJOB}")
    e(f"s_sub_u32 s{sT0}, s{sT0}, 12")
    e(f"s_cmp_eq_u32 s{sG}, 5")
    e("s_cbranch_scc0 Lflag")
    e(f"s_mul_i32 s{sT0}, s{sT0}, 9216")
    e(f"s_add_u32 s{sT0}, s{sT0}, {HALO_OFF}")
    e(f"v_and_b32 v{vS+2}, 15, v{vM}")
    e(f"v_mul_u32_u24 v{vS+2}, 576, v{vS+2}")
    e(f"v_lshl_add_u32 v{vS+2}, v{vHH}, 5, v{vS+2}")
    e(f"v_cmp_lt_u32 vcc, 15, v{vM}")
    e(f"s_and_saveexec_b64 {sr(sEX,2)}, vcc")
    for u in range(18):
        e(f"buffer_store_dwordx4 {vr(H+4*u,4)}, v{vS+2}, {sr(sWS,4)}, s{sT0} offen offset:{64*(u//2)+16*(u%2)} sc0 sc1")
    e(f"s_mov_b64 exec, {sr(sEX,2)}")
    e("s_nop 3")
    e("s_branch Lpubr")
    lab("Lflag")
    e("s_waitcnt vmcnt(16)")
    e(f"s_lshl_b32 s{sT0}, s{sRB}, 4")
    e(f"s_add_u32 s{sT0}, s{sT0}, s{sJOB}")
    signal(1, sT0)
    e("s_branch Lpubr")
    for w in range(4):
        c(f"================ attention wave {w}")
        phase1(True, w)
        if w < 3: e("s_branch Latt")
    attention()
    lab("Lend1")
    e("s_endpgm")

def wo_stage(j):
    o = []
    for p in range(5):
        o.append(f"s_add_u32 m0, s{sCUR}, {(j % 6) * SLOT + p * 1024}")
        o.append(f"s_add_u32 s{sT1}, s{sT3}, {p * 8 * 1152 + j * 128}")
        o.append(f"buffer_load_dwordx4 v{vWO}, {sr(sSRD,4)}, s{sT1} offen lds")
    return o

def attention():
    lab("Latt")
    stamp(6)
    Q = 16
    QBASE, QSTR = 30720, 336
    e(f"s_mov_b32 s{sSRD}, s{kwo}")
    e(f"s_and_b32 s{sSRD+1}, s{kwo+1}, 0xffff")
    e(f"s_mov_b32 s{sSRD+2}, {0 if NOW else 576*1152}")
    e(f"s_mul_i32 s{sCUR}, s{sWAVE}, 5120")
    e(f"s_sub_u32 s{sT3}, s{sJOB}, 12")
    e(f"s_mul_i32 s{sT3}, s{sT3}, {144*1152}")
    wa = 192
    e(f"s_lshl_b32 s{sT0}, s{sWAVE}, 5")
    e("s_nop 7")
    e(f"v_add_u32 v{wa+2}, s{sT0}, v{vM}")
    e(f"v_mul_u32_u24 v{wa}, {KVSTR}, v{wa+2}")
    e(f"v_add_u32 v{wa}, {KVBASE + 16*KVSTR}, v{wa}")
    e(f"v_lshl_add_u32 v{wa+3}, v{vHH}, 5, v{wa}")
    e(f"v_mul_u32_u24 v{wa+4}, {QSTR}, v{wa+2}")
    e(f"v_add_u32 v{wa+4}, {QBASE}, v{wa+4}")
    e(f"v_lshl_add_u32 v{wa+5}, v{vHH}, 5, v{wa+4}")
    e(f"v_mul_u32_u24 v{wa+1}, 144, v{vHH}")
    e(f"v_add_u32 v{wa}, v{wa}, v{wa+1}")
    e(f"v_add_u32 v{wa+4}, v{wa+4}, v{wa+1}")
    e(f"v_lshlrev_b32 v{wa+1}, 1, v{wa+1}")
    for i in range(16): e(f"v_mul_f32 v{ACC[1]+i}, v{ACC[1]+i}, v{vRSTD}")
    for i in range(8): e(f"v_cvt_pk_bf16_f32 v{H+104+i}, v{ACC[1]+2*i}, v{ACC[1]+2*i+1}")
    e("s_waitcnt vmcnt(0) lgkmcnt(0)")
    e("s_barrier")
    c("Wo stage 0")
    emit_list(wo_stage(0))
    c("write q,k,v to LDS")
    for u in range(10):
        e(f"ds_write_b128 v{wa+5}, {vr(H+72+4*u,4)} offset:{64*(u//2)+16*(u%2)}")
    for u in range(18):
        e(f"ds_write_b128 v{wa+3}, {vr(H+4*u,4)} offset:{64*(u//2)+16*(u%2)}")
    for i in range(9):
        e(f"ds_read_b128 {vr(Q+4*i,4)}, v{wa+4} offset:{16*i}")
    kva = vT
    e("s_waitcnt lgkmcnt(9)")
    e(f"v_mov_b32 v{kva}, v{wa}")
    e(f"v_mov_b32 v{kva+1}, v{wa+1}")
    c("halo (wave 0)")
    e(f"s_cmp_eq_u32 s{sWAVE}, 0")
    e("s_cbranch_scc0 Lhalo_done")
    HB = 112
    e(f"v_and_b32 v{kva+2}, 15, v{vM}")
    e(f"v_lshrrev_b32 v{kva+3}, 4, v{vM}")
    e(f"v_mul_u32_u24 v{kva+3}, 144, v{kva+3}")
    e(f"v_add_u32 v{kva+3}, v{kva+3}, v{kva+1}")
    e(f"v_mul_u32_u24 v{kva+4}, 576, v{kva+2}")
    e(f"v_add_u32 v{kva+4}, v{kva+4}, v{kva+3}")
    e(f"v_mul_u32_u24 v{kva+5}, {KVSTR}, v{kva+2}")
    e(f"v_add_u32 v{kva+5}, v{kva+5}, v{kva+3}")
    e(f"v_add_u32 v{kva+5}, {KVBASE}, v{kva+5}")
    for i in range(36): e(f"v_mov_b32 v{HB+i}, 0")
    e(f"s_cmp_eq_u32 s{sRB}, 0")
    e("s_cbranch_scc1 Lhalo_wr")
    e(f"s_lshl_b32 s{sT0}, s{sRB}, 2")
    e(f"s_add_u32 s{sT0}, s{sT0}, s{sJOB}")
    e(f"s_sub_u32 s{sT0}, s{sT0}, 16")
    e(f"s_lshl_b32 s{sT1}, s{sRB}, 4")
    e(f"s_sub_u32 s{sT1}, s{sT1}, 4")
    e(f"s_lshl_b32 s62, s{sJOB}, 3")
    e(f"s_lshl_b32 s62, 1, s62")
    poll("h", sT1, 1, "s62", "s62", kva+6, 2)
    e(f"s_mul_i32 s{sT0}, s{sT0}, 9216")
    e(f"s_add_u32 s{sT0}, s{sT0}, {HALO_OFF}")
    for i in range(9):
        e(f"buffer_load_dwordx4 {vr(HB+4*i,4)}, v{kva+4}, {sr(sWS,4)}, s{sT0} offen offset:{16*i} sc0 sc1")
    e("s_waitcnt vmcnt(0)")
    lab("Lhalo_wr")
    for i in range(9):
        e(f"ds_write_b128 v{kva+5}, {vr(HB+4*i,4)} offset:{16*i}")
    lab("Lhalo_done")
    e("s_waitcnt lgkmcnt(0)")
    e("s_barrier")
    stamp(7)
    for j in range(1, 3): emit_list(wo_stage(j))
    if WOPF:
        c("pull Wo stages 3..8 of this job towards L2")
        e(f"v_min_u32 v{kva+2}, 35, v{vLANE}")
        e(f"s_mul_i32 s{sT0}, s{sWAVE}, 36")
        e(f"v_add_u32 v{kva+2}, s{sT0}, v{kva+2}")
        e(f"v_mul_u32_u24 v{kva+2}, 1152, v{kva+2}")
        for i in range(6):
            e(f"buffer_load_dword a63, v{kva+2}, {sr(sSRD,4)}, s{sT3} offen offset:{384+128*i}")
    c("QK^T")
    LG = 52
    KB = [112, 148]
    e(f"v_subrev_u32 v{kva}, {14*KVSTR}, v{kva}")
    for i in range(32): e(f"v_mov_b32 v{LG+i}, 0")
    def rd(w, buf, voff):
        for i in range(9):
            e(f"ds_read_b128 {vr(KB[buf]+4*i,4)}, v{kva} offset:{(14-2*w)*KVSTR + voff + 16*i}")
    rd(0, 0, 0)
    for w in range(8):
        if w < 7: rd(w + 1, (w + 1) % 2, 0)
        else: rd(0, 0, 288)
        e("s_waitcnt lgkmcnt(9)")
        b = KB[w % 2]
        for i in range(9):
            for h in range(4):
                e(f"v_dot2c_f32_bf16 v{LG+8*h+w}, v{Q+9*h+i}, v{b+9*h+i}")
    c("mask + softmax")
    e(f"s_lshl_b32 s{sT0}, s{sRB}, 7")
    e(f"s_lshl_b32 s{sT1}, s{sWAVE}, 5")
    e(f"s_add_u32 s{sT0}, s{sT0}, s{sT1}")
    e(f"v_add_u32 v{kva+2}, s{sT0}, v{vM}")
    e(f"v_mov_b32 v{kva+3}, 0xce6e6b28")
    sc = (18 ** -0.5)
    for i in range(32):
        emit_list(round_bf16(LG+i, kva+4+(i % 4)))
    import struct
    for i in range(32):
        e(f"v_mul_f32 v{LG+i}, {sc:.9e}, v{LG+i}")
    for i in range(32):
        emit_list(round_bf16(LG+i, kva+4+(i % 4)))
    for w in range(1, 8):
        e(f"v_cmp_le_u32 vcc, {2*w}, v{kva+2}")
        e("s_nop 1")
        for h in range(4):
            e(f"v_cndmask_b32 v{LG+8*h+w}, v{kva+3}, v{LG+8*h+w}, vcc")
    MX = kva + 4
    for h in range(4):
        b = LG + 8 * h
        e(f"v_max3_f32 v{MX+h}, v{b}, v{b+1}, v{b+2}")
        e(f"v_max3_f32 v{MX+h}, v{MX+h}, v{b+3}, v{b+4}")
        e(f"v_max3_f32 v{MX+h}, v{MX+h}, v{b+5}, v{b+6}")
        e(f"v_max_f32 v{MX+h}, v{MX+h}, v{b+7}")
    for h in range(4):
        for w in range(8):
            e(f"v_sub_f32 v{LG+8*h+w}, v{LG+8*h+w}, v{MX+h}")
    for i in range(32): e(f"v_mul_f32 v{LG+i}, 0x3fb8aa3b, v{LG+i}")
    for i in range(32): e(f"v_exp_f32 v{LG+i}, v{LG+i}")
    e("s_nop 0")
    for h in range(4):
        b = LG + 8 * h
        e(f"v_add_f32 v{MX+h}, v{b}, v{b+1}")
    for w in range(2, 8):
        for h in range(4):
            e(f"v_add_f32 v{MX+h}, v{MX+h}, v{LG+8*h+w}")
    for h in range(4): e(f"v_rcp_f32 v{MX+h}, v{MX+h}")
    e("s_nop 0")
    for h in range(4):
        for w in range(8):
            e(f"v_mul_f32 v{LG+8*h+w}, v{LG+8*h+w}, v{MX+h}")
    PLO, PHI = LG, 16
    for i in range(32):
        e(f"v_cvt_pk_bf16_f32 v{PLO+i}, v{LG+i}, 0")
    for i in range(32):
        e(f"v_lshlrev_b32 v{PHI+i}, 16, v{PLO+i}")
    O = 184
    for i in range(72): e(f"v_mov_b32 v{O+i}, 0")
    c("PV")
    for w in range(8):
        if w < 7:
            rd(w + 1, (w + 1) % 2, 288)
            e("s_waitcnt lgkmcnt(9)")
        else:
            e("s_waitcnt lgkmcnt(0)")
        b = KB[w % 2]
        for i in range(36):
            h = i // 9
            e(f"v_dot2c_f32_bf16 v{O+2*i}, v{b+i}, v{PLO+8*h+w}")
            e(f"v_dot2c_f32_bf16 v{O+2*i+1}, v{b+i}, v{PHI+8*h+w}")
    e("s_barrier")
    stamp(8)
    e(f"s_cmp_eq_u32 s{sWAVE}, 0")
    e("s_cbranch_scc0 Lnordl")
    ready_load()
    lab("Lnordl")
    c("kv area free: Wo stages 3..5")
    for j in range(3, 6): emit_list(wo_stage(j))
    OP = 112
    for i in range(36):
        e(f"v_cvt_pk_bf16_f32 v{OP+i}, v{O+2*i}, v{O+2*i+1}")
    c("gemm2 (attention): 9 stages x 18 slots, unrolled")
    e("s_waitcnt vmcnt(25)")
    e("s_barrier")
    R2, D2 = 9, 5
    AB = 148
    for q in range(6):
        e(f"v_add_u32 v{AB+2*q}, {q*SLOT}, v{vBASE_AG2}")
        e(f"v_xor_b32 v{AB+2*q+1}, 64, v{AB+2*q}")
    n = 9 * 18
    def rds(i):
        j, w = divmod(i, 18)
        t, ks = divmod(w, 9)
        return tr_reads(i % R2, AB + 2 * (j % 6) + t, ks * 1024, 512)
    for i in range(D2): emit_list(rds(i))
    vmq = [("wo", j) for j in range(6) for _ in range(5)]
    fill = {}
    for i in range(n):
        j, w = divmod(i, 18)
        t, ks = divmod(w, 9)
        if i + D2 < n:
            emit_list(rds(i + D2))
            e(f"s_waitcnt lgkmcnt({2*D2})")
        else:
            e(f"s_waitcnt lgkmcnt({2*(n-1-i)})")
        acc = vr(ACC[t], 16)
        e(f"v_mfma_f32_32x32x16_bf16 {acc}, {ar(FR+4*(i%R2),4)}, {vr(OP+4*ks,4)}, {'0' if ks == 0 else acc}")
        if w == 8 and j < 8:
            idx = max(k for k, x in enumerate(vmq) if x == ("wo", j + 1))
            e(f"s_waitcnt vmcnt({len(vmq) - 1 - idx})")
            e("s_barrier")
            if j >= 1 and j + 5 < 9:
                emit_list(wo_stage(j + 5))
                vmq += [("wo", j + 5)] * 5
        if 12 <= w <= 15:
            for i2 in (2 * (w - 12), 2 * (w - 12) + 1):
                e(f"v_cvt_pk_bf16_f32 v{PK[0]+i2}, v{ACC[0]+2*i2}, v{ACC[0]+2*i2+1}")
        if w in (16, 17):
            hf = w - 16
            e(f"s_add_u32 s{sT0}, s{sSTOFF}, {j*4096}")
            e(f"buffer_store_dwordx4 {vr(PK[0]+4*hf,4)}, v{vST}, {sr(sWS,4)}, s{sT0} offen offset:{1024*hf} sc0 sc1")
            vmq.append(("st", 0))
        if j > 0 and 3 <= w <= 6:
            for i2 in (2 * (w - 3), 2 * (w - 3) + 1):
                e(f"v_cvt_pk_bf16_f32 v{PK[1]+i2}, v{ACC[1]+2*i2}, v{ACC[1]+2*i2+1}")
        if j > 0 and w == 7:
            e(f"s_add_u32 s{sT0}, s{sSTOFF}, {(j-1)*4096}")
            for hf in range(2):
                e(f"buffer_store_dwordx4 {vr(PK[1]+4*hf,4)}, v{vST}, {sr(sWS,4)}, s{sT0} offen offset:{2048+1024*hf} sc0 sc1")
                vmq.append(("st", 0))
    e("s_nop 7")
    e("s_nop 3")
    for i2 in range(8):
        e(f"v_cvt_pk_bf16_f32 v{PK[1]+i2}, v{ACC[1]+2*i2}, v{ACC[1]+2*i2+1}")
    e(f"s_add_u32 s{sT0}, s{sSTOFF}, {8*4096}")
    for hf in range(2):
        e(f"buffer_store_dwordx4 {vr(PK[1]+4*hf,4)}, v{vST}, {sr(sWS,4)}, s{sT0} offen offset:{2048+1024*hf} sc0 sc1")
    stamp(9)
    wg_signal("a", 1)
    stamp(10)
    prof_out()
    e("s_endpgm")

def k2():
    kn = "k2_kernel"
    L.append(f".globl {kn}\n.p2align 8\n.type {kn},@function")
    lab(kn)
    e("s_cmp_ge_u32 s2, 576")
    e("s_cbranch_scc1 Lend2")
    e("s_load_dwordx2 s[4:5], s[0:1], 0")
    e("s_load_dwordx2 s[6:7], s[0:1], 48")
    e("s_load_dwordx2 s[8:9], s[0:1], 64")
    if PROF: e("s_memrealtime s[32:33]")
    e("v_lshrrev_b32 v1, 6, v0")
    e("v_and_b32 v2, 63, v0")
    e("v_readfirstlane_b32 s3, v1")
    c("rb = wg/36 ; wv = (wg%36)*4+wave")
    e("s_mul_i32 s10, s2, 1821")
    e("s_lshr_b32 s10, s10, 16")
    e("s_mul_i32 s11, s10, 36")
    e("s_sub_u32 s11, s2, s11")
    e("s_lshl_b32 s11, s11, 2")
    e("s_add_u32 s11, s11, s3")
    e("s_mul_i32 s24, s11, 1821")
    e("s_lshr_b32 s24, s24, 16")
    e("s_mul_i32 s25, s24, 36")
    e("s_sub_u32 s25, s11, s25")
    e("s_and_b32 s26, s25, 1")
    e("s_lshr_b32 s25, s25, 1")
    c("partial offset = rb*16*PCHUNK + wv*1024 + lane*16")
    e(f"s_mul_i32 s27, s10, {16*PCHUNK}")
    e("s_lshl_b32 s28, s11, 10")
    e("s_add_u32 s27, s27, s28")
    e("v_lshlrev_b32 v3, 4, v2")
    c("x/out offset = (128rb+32r+lane%32)*1152 + tile*64 + (lane/32)*32 + half*16")
    e("s_lshl_b32 s28, s10, 7")
    e("s_lshl_b32 s29, s24, 5")
    e("s_add_u32 s28, s28, s29")
    e("s_mul_i32 s28, s28, 1152")
    e("s_lshl_b32 s29, s25, 6")
    e("s_add_u32 s28, s28, s29")
    e("s_lshl_b32 s29, s26, 4")
    e("s_add_u32 s28, s28, s29")
    e("v_and_b32 v4, 31, v2")
    e("v_mul_u32_u24 v4, 1152, v4")
    e("v_lshrrev_b32 v5, 5, v2")
    e("v_lshl_add_u32 v4, v5, 5, v4")
    e("s_mov_b32 s30, 0x00003f80")
    e("s_mov_b32 s31, 0x3f800000")
    e("s_waitcnt lgkmcnt(0)")
    for (s, k, sz) in ((12, 4, 2048*1152), (16, 6, 2048*1152), (20, 8, WS_BYTES)):
        e(f"s_mov_b32 s{s}, s{k}")
        e(f"s_and_b32 s{s+1}, s{k+1}, 0xffff")
        e(f"s_mov_b32 s{s+2}, {sz}")
        e(f"s_mov_b32 s{s+3}, 0x00020000")
    P = 32
    for j in range(16):
        e(f"buffer_load_dwordx4 {vr(P+4*j,4)}, v3, s[20:23], s27 offen")
        if j < 15: e(f"s_add_u32 s27, s27, {PCHUNK}")
    e("buffer_load_dwordx4 v[28:31], v4, s[12:15], s28 offen")
    e("s_lshl_b32 s27, s10, 9")
    e("s_lshl_b32 s29, s24, 7")
    e("s_add_u32 s27, s27, s29")
    e(f"s_add_u32 s27, s27, {RSTD_OFF}")
    e("v_and_b32 v5, 31, v2")
    e("v_lshlrev_b32 v5, 2, v5")
    e("buffer_load_dword v6, v5, s[20:23], s27 offen")
    F, S = 8, 16
    for i in range(16): e(f"v_mov_b32 v{F+i}, 0")
    for j in range(16):
        e(f"s_waitcnt vmcnt({17-j})")
        a = F if j < 12 else S
        for i in range(4):
            e(f"v_dot2c_f32_bf16 v{a+2*i}, s30, v{P+4*j+i}")
            e(f"v_dot2c_f32_bf16 v{a+2*i+1}, s31, v{P+4*j+i}")
    e("s_nop 2")
    T = 32
    e("s_waitcnt vmcnt(0)")
    for i in range(8): e(f"v_mul_f32 v{F+i}, v{F+i}, v6")
    c("f,s -> bf16")
    for i in range(8):
        e(f"v_cvt_pk_bf16_f32 v{T+i}, v{F+2*i}, v{F+2*i+1}")
    for i in range(8):
        e(f"v_lshlrev_b32 v{F+2*i}, 16, v{T+i}")
        e(f"v_and_b32 v{F+2*i+1}, 0xffff0000, v{T+i}")
    c("g = silu(f) = f/(1+exp(-f))")
    for i in range(8): e(f"v_mul_f32 v{T+i}, 0xbfb8aa3b, v{F+i}")
    for i in range(8): e(f"v_exp_f32 v{T+i}, v{T+i}")
    for i in range(8): e(f"v_add_f32 v{T+i}, 1.0, v{T+i}")
    for i in range(8): e(f"v_rcp_f32 v{T+i}, v{T+i}")
    for i in range(8): e(f"v_mul_f32 v{F+i}, v{F+i}, v{T+i}")
    for i in range(4): e(f"v_cvt_pk_bf16_f32 v{T+i}, v{F+2*i}, v{F+2*i+1}")
    for i in range(4):
        e(f"v_lshlrev_b32 v{F+2*i}, 16, v{T+i}")
        e(f"v_and_b32 v{F+2*i+1}, 0xffff0000, v{T+i}")
    for i in range(8): e(f"v_mul_f32 v{F+i}, v{F+i}, v{S+i}")
    for i in range(4): e(f"v_cvt_pk_bf16_f32 v{T+i}, v{F+2*i}, v{F+2*i+1}")
    e("s_waitcnt vmcnt(0)")
    for i in range(4):
        e(f"v_lshlrev_b32 v{F+2*i}, 16, v{T+i}")
        e(f"v_and_b32 v{F+2*i+1}, 0xffff0000, v{T+i}")
        e(f"v_lshlrev_b32 v{S+2*i}, 16, v{28+i}")
        e(f"v_and_b32 v{S+2*i+1}, 0xffff0000, v{28+i}")
    for i in range(8): e(f"v_add_f32 v{F+i}, v{F+i}, v{S+i}")
    for i in range(4): e(f"v_cvt_pk_bf16_f32 v{T+i}, v{F+2*i}, v{F+2*i+1}")
    e(f"buffer_store_dwordx4 {vr(T,4)}, v4, s[16:19], s28 offen")
    if PROF:
        e("s_waitcnt vmcnt(0)")
        e("s_memrealtime s[34:35]")
        e("s_waitcnt lgkmcnt(0)")
        e("s_lshl_b32 s36, s2, 2")
        e("s_add_u32 s36, s36, s3")
        e("s_lshl_b32 s36, s36, 4")
        e(f"s_add_u32 s36, s36, {65<<20}")
        e("v_mov_b32 v1, 0")
        e("v_mov_b32 v8, s32")
        e("v_mov_b32 v9, 0")
        e("v_mov_b32 v10, s34")
        e("v_mov_b32 v11, 0")
        e("v_cmp_eq_u32 vcc, 0, v2")
        e("s_and_saveexec_b64 s[38:39], vcc")
        e("buffer_store_dwordx4 v[8:11], v1, s[20:23], s36 offen")
        e("s_waitcnt vmcnt(0)")
    lab("Lend2")
    e("s_endpgm")

def desc(kn, vg, acc, sg):
    return f""".amdhsa_kernel {kn}
  .amdhsa_next_free_vgpr {vg}
  .amdhsa_next_free_sgpr {sg}
  .amdhsa_accum_offset {acc}
  .amdhsa_group_segment_fixed_size 0
  .amdhsa_kernarg_size 72
  .amdhsa_user_sgpr_count 2
  .amdhsa_user_sgpr_kernarg_segment_ptr 1
  .amdhsa_system_sgpr_workgroup_id_x 1
.end_amdhsa_kernel
"""

def main(out):
    hdr = open(f"cdna_kernels/{NAME}.s.ref").read().split("; Override")[0]
    L.append(hdr.rstrip("\n"))
    L.append("; @launch grid=(256,1,1) block=(256,1,1) lds=163840")
    L.append('.amdgcn_target "amdgcn-amd-amdhsa--gfx950"')
    L.append(".text")
    k1()
    L.append('.section .rodata,"a"')
    L.append(".p2align 6")
    L.append(desc(NAME + "_kernel", 512, 256, 102))
    open(out, "w").write("\n".join(L) + "\n")

if __name__ == "__main__":
    main(sys.argv[1] if len(sys.argv) > 1 else f"cdna_kernels/{NAME}.s")
```

```python
import sys
NAME = "recurrent_scan__sliding_local_dilated__dense_activation_relu__prompt"
L = []
def e(s): L.append("    " + s)
def lab(s): L.append(s + ":")
def c(s): L.append("    ; " + s)

SLOT = 24576
NSLOT = 6
KVBASE = 73728
KVSTR = 592
PCHUNK = 147456
HALO_OFF = 256 * PCHUNK
WS_BYTES = HALO_OFF + 64 * 9216
D = 6
R = 8

RSTD_OFF = WS_BYTES
WS_BYTES += 32768
FL_OFF = RSTD_OFF
OOR = 0x40000000
WCOPY = 4
vTID, vLANE, vM, vHH = 0, 1, 2, 3
vA01, vB01, vA2, vB2, vMASKA, vWO = 4, 5, 6, 7, 8, 9
vRSTD, vST, vCI, vCUR, vBASE_G2, vBASE_AG2 = 10, 11, 12, 13, 14, 15
ACC = [16, 32]
PK = [48, 56]
vD, vD2 = 64, 70
vS = 76
H = 80
vT = 96
U = 80
X = 112
NXA = 20
XA = 64
FR = 0
sSRD, sX, sWS, sDBG = 4, 8, 12, 16
sWAVE, sRB, sJOB, sATT = 20, 21, 22, 23
sSOFF, sINC = 24, 25
sMB0, sMB1, sRD, sG, sIDX = 28, 29, 30, 31, 32
sONES, sSELLO, sSELHI = 41, 42, 43
sT0, sT1, sT2, sT3 = 54, 55, 56, 57
sSTOFF, sW6K, sCUR = 58, 59, 60
sK = 64
sEX = 84
kx, kqkv, kwo, kw1, kw2, kdbg, kws = sK, sK+2, sK+4, sK+8, sK+10, sK+14, sK+16
TOG = 0x12000
def xop(s_): return f"a[{XA+4*s_}:{XA+4*s_+3}]" if s_ < NXA else f"v[{X+4*s_}:{X+4*s_+3}]"
import os
PROF = os.environ.get("PROF", "0") == "1"
if PROF: WS_BYTES = 128 << 20
def stamp(i, real=False):
    if not PROF: return
    e(("s_memrealtime" if real else "s_memtime") + " s[86:87]")
    e("s_waitcnt lgkmcnt(0)")
    e(f"s_mov_b32 s{88+i}, s86")
def prof_out():
    if not PROF: return
    stamp(1, True)
    e(f"s_lshl_b32 s86, s2, 2")
    e(f"s_add_u32 s86, s86, s{sWAVE}")
    e(f"s_lshl_b32 s86, s86, 7")
    e(f"s_add_u32 s86, s86, {64<<20}")
    e("v_mov_b32 v1, 0")
    e("v_mov_b32 v3, 0")
    e("v_cmp_eq_u32 vcc, 0, v0")
    e("v_and_b32 v0, 63, v0")
    e("v_cmp_eq_u32 vcc, 0, v0")
    e(f"s_and_saveexec_b64 {sr(sEX,2)}, vcc")
    for i in range(12):
        e(f"v_mov_b32 v2, s{88+i}")
        e(f"buffer_store_dwordx2 v[2:3], v1, {sr(sWS,4)}, s86 offen offset:{8*i}")
        e("s_nop 1")
    e("s_waitcnt vmcnt(0)")
NOW = os.environ.get("NOW", "0") == "1"
NOST = os.environ.get("NOST", "0") == "1"
NODMA = os.environ.get("NODMA", "0") == "1"
NORD = os.environ.get("NORD", "0") == "1"
LIN = os.environ.get("LIN", "0") == "1"
NOPF = os.environ.get("NOPF", "0") == "1"
sPF = 44
sPF2, sPFO, sPFO2 = 48, 52, 53
vPF = 79
PFW1 = int(os.environ.get("PFW1", "0"))
PFN = int(os.environ.get("PFN", "14"))
def pf_srd(k, sz, r=sPF):
    e(f"s_mov_b32 s{r}, s{k}")
    e(f"s_and_b32 s{r+1}, s{k+1}, 0xffff")
    e(f"s_mov_b32 s{r+2}, {0 if (NOW or NOPF) else sz}")
    e(f"s_mov_b32 s{r+3}, 0x00020000")
uid = [0]
def newlab(p):
    uid[0] += 1
    return f"L{p}_{uid[0]}"

def vr(b, n): return f"v[{b}:{b+n-1}]"
def ar(b, n): return f"a[{b}:{b+n-1}]"
def sr(b, n): return f"s[{b}:{b+n-1}]"

IMM = [0, 1024, 2048, 3072, 0, 1024]
def dma_ld(p):
    if NODMA: return []
    return [f"buffer_load_dwordx4 v{vD+p}, {sr(sSRD,4)}, s{sSOFF} offen offset:{IMM[p]} lds"]
def att_delta():
    return [
        f"v_add_u32 v{vCI}, 4, v{vCI}",
        f"v_subrev_u32 v{vS}, 27, v{vCI}",
        f"v_min_u32 v{vCI}, v{vCI}, v{vS}",
        f"v_mul_u32_u24 v{vS}, 57, v{vCI}",
        f"v_lshrrev_b32 v{vS}, 9, v{vS}",
        f"v_mul_u32_u24 v{vS}, 864, v{vS}",
        f"v_lshl_add_u32 v{vS+1}, v{vCI}, 5, v{vS}",
        f"v_sub_u32 v{vS}, v{vS+1}, v{vCUR}",
        f"v_mov_b32 v{vCUR}, v{vS+1}",
    ]

def emit_list(lst):
    for s in lst:
        if s.endswith(":"): L.append(s)
        else: e(s)

def tr_reads(fr, addr, off, second):
    if NORD: return []
    return [f"ds_read_b64_tr_b16 {ar(FR+4*fr,2)}, v{addr} offset:{off}",
            f"ds_read_b64_tr_b16 {ar(FR+4*fr+2,2)}, v{addr} offset:{off+second}"]

def round_bf16(v, tmp):
    return [f"v_cvt_pk_bf16_f32 v{tmp}, v{v}, v{v}", f"v_lshlrev_b32 v{v}, 16, v{tmp}"]

def gemm_body(nst, bop, fill, raddr):
    n = 24 * nst
    for i in range(n):
        st, w = divmod(i, 24)
        tile, ks = divmod(w, 12)
        j = (i + D) % n
        st2, w2 = divmod(j, 24)
        t2, ks2 = divmod(w2, 12)
        a, off = raddr(st2, t2)
        emit_list(tr_reads((i + D) % R, a, off + ks2 * 2048, 512))
        if i % 2 == 0: e(f"s_waitcnt lgkmcnt({2*D-2})")
        acc = vr(ACC[tile], 16)
        cc = "0" if (st == 0 and ks == 0) else acc
        e(f"v_mfma_f32_32x32x16_bf16 {acc}, {ar(FR+4*(i%R),4)}, {bop(12*st+ks)}, {cc}")
        emit_list(fill.get(i, []))

def add(fill, slot, ins):
    fill.setdefault(slot, []).extend(ins)

class Sched:
    def __init__(self, n):
        self.n = n; self.fill = {}; self.load = [0] * n
    def cap(self, i): return 3 if i % 2 == 0 else 2
    def put(self, slot, ins, cost=None):
        slot %= self.n
        add(self.fill, slot, ins)
        self.load[slot] += len(ins) if cost is None else cost
    def seq(self, lo, hi, groups):
        over = 0
        while True:
            ld = list(self.load); pos = []; i = lo; ok = True
            for g in groups:
                while i <= hi and ld[i % self.n] + len(g) > self.cap(i) + over and ld[i % self.n] > 0: i += 1
                if i > hi: ok = False; break
                pos.append(i); ld[i % self.n] += len(g)
            if ok: break
            over += 1
        for g, i in zip(groups, pos): self.put(i, g)
        return pos[-1]
    def vmwait(self, bar_slot, p5_slot_back):
        cnt = 0
        for a in range(p5_slot_back + 1, bar_slot + 1):
            cnt += sum(1 for x in self.fill.get(a % self.n, []) if x.startswith("buffer_"))
        return cnt

BAR = 9
def bars(S, nst, w):
    for st in range(nst):
        b = 24 * st
        n = S.vmwait(b + BAR, b - 72 + BAR + 1 + w + 20 - 24)
        if NODMA: n = 63
        S.put(b + BAR, [f"s_waitcnt vmcnt({n})", "s_barrier"])

RARE = []
def phase1(att, w):
    tag = f"{'a' if att else 'f'}{w}"
    S = Sched(72)
    for st in range(3):
        b = 24 * st
        for p in range(6):
            sl = b + BAR + 1 + w + 4 * p
            if p in (0, 4):
                r, k = [(sMB1, 2 * SLOT), (sMB0, 0), (sMB0, SLOT)][st]
                if sl - 1 >= 72: r = sMB1 if r == sMB0 else sMB0
                S.put(sl - 1, [f"s_add_u32 m0, s{r}, {k + w*6144 + (4096 if p == 4 else 0)}"])
            S.put(sl, dma_ld(p), cost=3)
        S.put(b + BAR + 1 + w + 21, [f"s_add_u32 s{sSOFF}, s{sSOFF}, s{sINC+st}"])
    d2 = [x for x in range(14, 30) if (x - (BAR + 1 + w)) % 4 == 2]
    S.put(d2[0], [f"buffer_load_dword a63, v{vPF}, {sr(sPF,4)}, s{sPFO} offen"], cost=3)
    S.seq(d2[0] + 1, 60, [[f"s_add_u32 s{sPFO}, s{sPFO}, {PFN*128}"],
                          [f"s_cmp_ge_u32 s{sG}, {42 // PFN - 1}", f"s_cselect_b32 s{sPF+2}, 0, s{sPF+2}"]])
    bars(S, 3, w)
    S.seq(36, 60, [[f"v_xor_b32 v{vA01}, v{vMASKA}, v{vA01}"]])
    S.seq(42, 70, [[f"v_xor_b32 v{vB01}, {TOG}, v{vB01}"]])
    S.seq(54, 71, [[f"v_xor_b32 v{vA2}, {TOG}, v{vA2}"]])
    S.seq(66, 71, [[f"v_xor_b32 v{vB2}, {TOG}, v{vB2}"]])
    S.put(71, [f"s_xor_b32 s{sMB0}, s{sMB0}, {TOG}", f"s_xor_b32 s{sMB1}, s{sMB1}, {TOG}",
               f"s_add_u32 s{sG}, s{sG}, 1", f"s_cmp_lt_u32 s{sG}, {7 if att else 6}"])
    sw = 32 + w
    if att:
        S.put(sw, [f"s_cmp_ge_u32 s{sG}, 5", f"s_cselect_b32 s{sSRD+2}, 0, s{sSRD+2}"])
        dl = att_delta()
        S.seq(12, 28, [[x] for x in dl])
        for p in range(6):
            lo = BAR + 1 + w + 4 * p + 1
            S.seq(max(lo, 29), 24 + BAR + w + 4 * p, [[f"v_add_u32 v{vD+p}, v{vD+p}, v{vS}"]])
    else:
        S.put(sw, [f"s_cmp_ge_u32 s{sG}, 4", f"s_cbranch_scc1 Lsw_{tag}", f"Lswr_{tag}:"], cost=2)
        r = [f"Lsw_{tag}:", f"s_cmp_eq_u32 s{sG}, 4", f"s_cbranch_scc0 Lsw5_{tag}",
             f"s_mov_b32 s{sSRD}, s{kw2}", f"s_and_b32 s{sSRD+1}, s{kw2+1}, 0xffff",
             f"s_mov_b32 s{sSRD+2}, {0 if NOW else 4608*1152}", f"s_mul_i32 s{sSOFF}, s{sJOB}, {384*1152}",
             f"s_mov_b32 s{sINC}, {192*1152}", f"s_mov_b32 s{sINC+1}, {192*1152}", f"s_mov_b32 s{sINC+2}, {(128-192*1152) & 0xffffffff}"]
        r += [f"v_mov_b32 v{vD+p}, v{vD2+p}" for p in range(6)]
        r += [f"s_branch Lswr_{tag}", f"Lsw5_{tag}:",
              f"s_mov_b32 s{sINC+2}, {192*1152}", f"s_mov_b32 s{sINC+1}, {(128-192*1152) & 0xffffffff}",
              f"v_xor_b32 v{vMASKA}, v{vA01}, v{vBASE_G2}", f"s_branch Lswr_{tag}"]
        RARE.extend(r)
    def idxblk(tile):
        o = [f"s_set_gpr_idx_on s{sIDX}, 0x8", "s_nop 0"]
        for i in range(8):
            if att: o.append(f"v_cvt_pk_bf16_f32 v{H+8*tile+i}, v{ACC[tile]+2*i}, v{ACC[tile]+2*i+1}")
            else: o.append(f"v_pk_max_i16 v{H+8*tile+i}, v{PK[tile]+i}, 0")
        o.append("s_set_gpr_idx_off")
        return o
    def pre(slot, ins):
        S.fill[slot % 72] = ins + S.fill.get(slot % 72, []); S.load[slot % 72] += len(ins)
    if att:
        S.seq(61, 68, [[f"v_mul_f32 v{ACC[0]+i}, v{ACC[0]+i}, v{vRSTD}"] for i in range(16)])
        sl = [x for x in (71, 70, 69) if (x - (BAR + 1 + w)) % 4 != 0][0]
        k = SLOT + (4096 if sl >= 48 + BAR + w + 16 else 0)
        pre(sl, idxblk(0) + [f"s_add_u32 m0, s{sMB0}, {k + w*6144}"])
        S.seq(1, 8, [[f"v_mul_f32 v{ACC[1]+i}, v{ACC[1]+i}, v{vRSTD}"] for i in range(16)])
        sl = [x for x in (11, 10) if (x - (BAR + 1 + w)) % 4 != 0][0]
        fix = [f"s_add_u32 m0, s{sMB1}, {2*SLOT + w*6144}"] if sl >= BAR + w else []
        S.put(sl, idxblk(1) + fix + [f"s_add_u32 s{sIDX}, s{sIDX}, s{sIDX+1}", f"s_mov_b32 s{sIDX+1}, 16"])
        if w == 3:
            S.seq(40, 44, [[f"s_cmp_ge_u32 s{sG}, 5", f"s_cbranch_scc1 Lpub", "Lpubr:"]])
    else:
        S.seq(61, 71, [[f"v_cvt_pk_bf16_f32 v{PK[0]+i}, v{ACC[0]+2*i}, v{ACC[0]+2*i+1}"] for i in range(8)])
        S.seq(1, 11, [[f"v_cvt_pk_bf16_f32 v{PK[1]+i}, v{ACC[1]+2*i}, v{ACC[1]+2*i+1}"] for i in range(8)])
        pre(BAR + w + 16, idxblk(0))
        pre(24 + BAR + w + 16, idxblk(1) + [f"s_add_u32 s{sIDX}, s{sIDX}, s{sIDX+1}", f"s_mov_b32 s{sIDX+1}, 16"])
    e(".p2align 6")
    lab(f"Lp1_{tag}")
    gemm_body(3, xop, S.fill, lambda st, t: ([vA01, vB01][t], st * SLOT) if st < 2 else ([vA2, vB2][t], 0))
    e(f"s_cbranch_scc1 Lp1_{tag}")

def phase2(w):
    S = Sched(48)
    vA, vB, vB0 = vA01, vB01, vA2
    for st in range(2):
        b = 24 * st
        for p in range(6):
            sl = b + BAR + 1 + w + 4 * p
            if p in (0, 4):
                r, k = [(sMB1, SLOT), (sMB0, 0)][st]
                if sl - 1 >= 48: r = sMB1
                S.put(sl - 1, [f"s_add_u32 m0, s{r}, {k + w*6144 + (4096 if p == 4 else 0)}"])
            S.put(sl, dma_ld(p), cost=3)
        inc = [128 - 192 * 1152, 192 * 1152][st]
        S.put(b + BAR + 1 + w + 21, [f"s_add_u32 s{sSOFF}, s{sSOFF}, {inc & 0xffffffff}"])
    S.put(32 + w, [f"s_cmp_ge_u32 s{sG}, 6", f"s_cselect_b32 s{sSRD+2}, 0, s{sSRD+2}"])
    st_ = lambda r, so, off: [f"buffer_store_dwordx4 {vr(r,4)}, v{vST}, {sr(sWS,4)}, s{so} offen offset:{off} sc0 sc1"]
    d0 = (BAR + 1 + w) % 4
    ssl = lambda lo: [x for x in range(lo, lo + 8) if (x - d0) % 4 == 2]
    a0, a1 = ssl(2); b0, b1 = ssl(14)
    S.put(a0, st_(PK[0], sT2, 0), cost=3); S.put(a1, st_(PK[0] + 4, sT2, 1024), cost=3)
    S.put(b0, st_(PK[1], sT2, 2048), cost=3); S.put(b1, st_(PK[1] + 4, sT2, 3072), cost=3)
    bars(S, 2, w)
    if w == 0:
        S.seq(10, 22, [[f"v_accvgpr_read_b32 v{vS+2}, a60"],
                       [f"v_cmp_eq_u32 vcc, 1, v{vS+2}"],
                       [f"s_cmp_eq_u32 s{sG}, 5", f"s_cselect_b32 s63, s62, {OOR}"],
                       [f"s_cmp_eq_u32 s{sG}, 8", "s_cselect_b32 s63, s62, s63"]])
        S.put(25, ["s_cmp_eq_u32 vcc_lo, -1", f"s_cselect_b32 s63, s63, {OOR}"])
        S.put(23, [f"s_cmp_eq_u32 s{sG}, 8", f"s_cselect_b32 s{sCUR+1}, 3, 1", f"v_mov_b32 v{vS}, s{sCUR+1}"])
        S.put(28, [f"buffer_store_dword v{vS}, v{vS+1}, {sr(sWS,4)}, s63 offen sc0 sc1"], cost=3)
    S.seq(37, 47, [[f"v_cvt_pk_bf16_f32 v{PK[0]+i}, v{ACC[0]+2*i}, v{ACC[0]+2*i+1}"] for i in range(8)])
    S.seq(1, 11, [[f"v_cvt_pk_bf16_f32 v{PK[1]+i}, v{ACC[1]+2*i}, v{ACC[1]+2*i+1}"] for i in range(8)])
    S.seq(24, 34, [[f"s_add_u32 s{sRD}, s{sRD}, {2*SLOT}", f"s_cmp_eq_u32 s{sRD}, {6*SLOT}", f"s_cselect_b32 s{sRD}, 0, s{sRD}"]])
    S.seq(35, 40, [[f"v_add_u32 v{vA}, s{sRD}, v{vBASE_G2}"]])
    S.seq(42, 46, [[f"v_add_u32 v{vB}, s{sRD}, v{vB0}"]])
    S.seq(24, 46, [[f"s_mov_b32 s{sT2}, s{sSTOFF}"], [f"s_add_u32 s{sSTOFF}, s{sSTOFF}, 4096"]])
    S.put(47, [f"s_mov_b32 s{sMB1}, s{sMB0}", f"s_mov_b32 s{sMB0}, s{sRD}",
               f"s_add_u32 s{sG}, s{sG}, 1", f"s_cmp_lt_u32 s{sG}, 9"])
    e(".p2align 6")
    lab(f"Lp2_{w}")
    gemm_body(2, lambda s_: vr(H + 4 * s_, 4), S.fill, lambda st, t: ([vA, vB][t], st * SLOT))
    e(f"s_cbranch_scc1 Lp2_{w}")

PSL = int(os.environ.get("PSL", "2"))
WOPF = int(os.environ.get("WOPF", "1"))
def signal(val, idx_sgpr):
    e(f"v_mov_b32 v{vS+2}, 0")
    e(f"v_mov_b32 v{vS+1}, {val}")
    e(f"v_cmp_eq_u32 vcc, 0, v{vLANE}")
    e(f"s_and_saveexec_b64 {sr(sEX,2)}, vcc")
    e(f"buffer_store_byte v{vS+1}, v{vS+2}, {sr(sDBG,4)}, s{idx_sgpr} offen sc0 sc1")
    e(f"s_mov_b64 exec, {sr(sEX,2)}")
    e("s_nop 3")

def ready_load():
    e(f"s_lshl_b32 s62, s{sRB}, 4")
    e(f"buffer_load_dword a60, off, {sr(sDBG,4)}, s62 sc0 sc1")

def ready_check(tag):
    e(f"v_accvgpr_read_b32 v{vS+2}, a60")
    e("s_nop 1")
    e(f"v_cmp_eq_u32 vcc, 1, v{vS+2}")
    e("s_nop 3")
    e("s_cmp_eq_u32 vcc_lo, -1")
    e(f"s_cbranch_scc1 Lrdy_{tag}")
    e(f"s_lshl_b32 s62, s{sRB}, 4")
    poll("r" + tag, 62, 1, "1", "1", vS - 1, 4)
    lab(f"Lrdy_{tag}")

def flag_regs():
    e(f"s_mul_i32 s62, s{sRB}, 1536")
    e(f"s_lshl_b32 s63, s{sJOB}, 2")
    e(f"s_add_u32 s62, s62, s63")
    e(f"s_add_u32 s62, s62, {FL_OFF}")
    e(f"v_lshlrev_b32 v{vS+1}, 7, v{vLANE}")
    e(f"v_mov_b32 v{vS+3}, {OOR}")
    e(f"v_cmp_gt_u32 vcc, 12, v{vLANE}")
    e("s_nop 1")
    e(f"v_cndmask_b32 v{vS+1}, v{vS+3}, v{vS+1}, vcc")

def wg_signal(tag, val):
    e("s_waitcnt vmcnt(0)")
    e("s_barrier")
    e(f"s_cmp_eq_u32 s{sWAVE}, 0")
    e(f"s_cbranch_scc0 Lnosig_{tag}")
    ready_check(tag)
    flag_regs()
    e(f"v_mov_b32 v{vS}, {val}")
    e(f"buffer_store_dword v{vS}, v{vS+1}, {sr(sWS,4)}, s62 offen sc0 sc1")
    lab(f"Lnosig_{tag}")

def poll(tag, idx_sgpr, nw, and_sgpr, cmp_sgpr, vt, slp, keep=False):
    e(f"s_mov_b32 s{sCUR+1}, 0x4000")
    lab(f"Lpoll_{tag}")
    ld = {1: "dword", 3: "dwordx3"}[nw]
    e(f"buffer_load_{ld} {vr(vt+1,nw) if nw>1 else 'v%d'%(vt+1)}, off, {sr(sDBG,4)}, s{idx_sgpr} sc0 sc1")
    e("s_waitcnt vmcnt(0)")
    if nw == 3:
        e(f"v_and_b32 v{vt+1}, v{vt+1}, v{vt+2}")
        e(f"v_and_b32 v{vt+1}, v{vt+1}, v{vt+3}")
        e("s_nop 1")
    e(f"v_readfirstlane_b32 s{sT2}, v{vt+1}")
    e("s_nop 3")
    e(f"s_and_b32 s{sT2}, s{sT2}, {and_sgpr}")
    e(f"s_cmp_eq_u32 s{sT2}, {cmp_sgpr}")
    e(f"s_cbranch_scc1 Lpollok_{tag}")
    e(f"s_sleep {slp}")
    e(f"s_sub_u32 s{sCUR+1}, s{sCUR+1}, 1")
    e(f"s_cbranch_scc0 Lpoll_{tag}")
    lab(f"Lpollok_{tag}")

def wg_poll(tag, bit, mask, vt, slp):
    e(f"s_cmp_eq_u32 s{sWAVE}, 0")
    e(f"s_cbranch_scc0 Lpollok_{tag}")
    e(f"s_mov_b32 s{sCUR+1}, 0x4000")
    lab(f"Lpoll_{tag}")
    e(f"buffer_load_dword v{vt+1}, v{vt}, {sr(sWS,4)}, s{sT3} offen sc0 sc1")
    e("s_waitcnt vmcnt(0)")
    e(f"v_and_b32 v{vt+1}, {bit}, v{vt+1}")
    e(f"v_cmp_ne_u32 vcc, 0, v{vt+1}")
    e("s_nop 3")
    e(f"s_and_b32 s{sT2}, vcc_lo, {mask}")
    e(f"s_cmp_eq_u32 s{sT2}, {mask}")
    e(f"s_cbranch_scc1 Lpollok_{tag}")
    e(f"s_sleep {slp}")
    e(f"s_sub_u32 s{sCUR+1}, s{sCUR+1}, 1")
    e(f"s_cbranch_scc0 Lpoll_{tag}")
    lab(f"Lpollok_{tag}")
    e("s_barrier")

def reduce_tail():
    sO = sPF
    P, XV, F = 80, 16, 28
    Sg = 52
    e(f"s_lshl_b32 s{sT0}, s{sRB}, 2")
    e(f"s_add_u32 s{sT0}, s{sT0}, s{sWAVE}")
    c("x/out offsets")
    e(f"s_mul_i32 s{sT0}, s{sT0}, {32*1152}")
    e(f"v_mul_u32_u24 v4, 1152, v{vM}")
    e(f"v_lshl_add_u32 v4, v{vHH}, 5, v4")
    for i in range(3):
        e(f"s_add_u32 s{sT2}, s{sJOB}, {12*i}")
        e(f"s_and_b32 s{sINC+i}, s{sT2}, 1")
        e(f"s_lshl_b32 s{sINC+i}, s{sINC+i}, 4")
        e(f"s_lshr_b32 s{sT2}, s{sT2}, 1")
        e(f"s_lshl_b32 s{sT2}, s{sT2}, 6")
        e(f"s_add_u32 s{sINC+i}, s{sINC+i}, s{sT2}")
        e(f"s_add_u32 s{sINC+i}, s{sINC+i}, s{sT0}")
    e(f"s_mov_b32 s{sO}, s{sK+12}")
    e(f"s_and_b32 s{sO+1}, s{sK+13}, 0xffff")
    e(f"s_mov_b32 s{sO+2}, {2048*1152}")
    e(f"s_mov_b32 s{sO+3}, 0x00020000")
    c("partial base = (rb*64 + wave)*36864 + job*3072")
    e(f"s_lshl_b32 s{sT0}, s{sRB}, 6")
    e(f"s_add_u32 s{sT0}, s{sT0}, s{sWAVE}")
    e(f"s_mul_i32 s{sSOFF}, s{sT0}, 36864")
    e(f"s_lshl_b32 s{sT0}, s{sJOB}, 10")
    e(f"s_add_u32 s{sSOFF}, s{sSOFF}, s{sT0}")
    wg_signal("f", 7)
    e(f"s_mul_i32 s{sT3}, s{sRB}, 12")
    e(f"s_add_u32 s{sT3}, s{sT3}, s{sJOB}")
    e(f"s_lshl_b32 s{sT3}, s{sT3}, 7")
    e(f"s_add_u32 s{sT3}, s{sT3}, {FL_OFF}")
    e(f"v_and_b32 v5, 15, v{vLANE}")
    e(f"v_lshlrev_b32 v5, 2, v5")
    for i in range(3):
        e(f"buffer_load_dwordx4 {vr(XV+4*i,4)}, v4, {sr(sX,4)}, s{sINC+i} offen")
    for i in range(48): e(f"v_mov_b32 v{F+i}, 0")
    stamp(8)
    def loads(n, base, i, j0):
        e(f"s_add_u32 s{sT0}, s{sSOFF}, {j0*PCHUNK + 12288*i}")
        for j in range(n):
            e(f"buffer_load_dwordx4 {vr(base+12*j+4*i,4)}, v{vST}, {sr(sWS,4)}, s{sT0} offen sc0 sc1")
            if j < n - 1: e(f"s_add_u32 s{sT0}, s{sT0}, {PCHUNK}")
    def accum(n, base, acc):
        for i3 in range(3):
            for j in range(n):
                e(f"s_waitcnt vmcnt({n*(2-i3) + n-1-j})")
                for i in range(4*i3, 4*i3+4):
                    e(f"v_dot2c_f32_bf16 v{acc+2*i}, s{sSELLO}, v{base+12*j+i}")
                    e(f"v_dot2c_f32_bf16 v{acc+2*i+1}, s{sSELHI}, v{base+12*j+i}")
    for i in range(3):
        wg_poll(f"f{i}", 1 << i, "0xfff", 5, 2)
        if i == 2: stamp(9)
        loads(12, P, i, 0)
    accum(12, P, F)
    e("s_nop 2")
    T = 80
    def rnd(b):
        for i in range(12): e(f"v_cvt_pk_bf16_f32 v{T+i}, v{b+2*i}, v{b+2*i+1}")
        for i in range(12):
            e(f"v_lshlrev_b32 v{b+2*i}, 16, v{T+i}")
            e(f"v_and_b32 v{b+2*i+1}, 0xffff0000, v{T+i}")
    for i in range(24): e(f"v_mul_f32 v{F+i}, v{F+i}, v{vRSTD}")
    rnd(F)
    c("g = silu(f)")
    for i in range(24): e(f"v_mul_f32 v{T+i}, 0xbfb8aa3b, v{F+i}")
    for i in range(24): e(f"v_exp_f32 v{T+i}, v{T+i}")
    for i in range(24): e(f"v_add_f32 v{T+i}, 1.0, v{T+i}")
    for i in range(24): e(f"v_rcp_f32 v{T+i}, v{T+i}")
    for i in range(24): e(f"v_mul_f32 v{F+i}, v{F+i}, v{T+i}")
    rnd(F)
    stamp(10)
    wg_poll("a", 1, "0xf000", 5, PSL)
    stamp(11)
    for i in range(3): loads(4, 112, i, 12)
    accum(4, 112, Sg)
    e("s_nop 2")
    rnd(Sg)
    for i in range(24): e(f"v_mul_f32 v{F+i}, v{F+i}, v{Sg+i}")
    rnd(F)
    for i in range(12):
        e(f"v_lshlrev_b32 v{Sg+2*i}, 16, v{XV+i}")
        e(f"v_and_b32 v{Sg+2*i+1}, 0xffff0000, v{XV+i}")
    for i in range(24): e(f"v_add_f32 v{F+i}, v{F+i}, v{Sg+i}")
    for i in range(12): e(f"v_cvt_pk_bf16_f32 v{T+i}, v{F+2*i}, v{F+2*i+1}")
    for i in range(3):
        e(f"buffer_store_dwordx4 {vr(T+4*i,4)}, v4, {sr(sO,4)}, s{sINC+i} offen")

def k1():
    kn = NAME + "_kernel"
    L.append(f".globl {kn}\n.p2align 8\n.type {kn},@function")
    lab(kn)
    e("s_cmp_ge_u32 s2, 256")
    e("s_cbranch_scc1 Lend1")
    e(f"s_load_dwordx16 {sr(sK,16)}, s[0:1], 0")
    e(f"s_load_dwordx2 {sr(sK+16,2)}, s[0:1], 64")
    if PROF:
        for i in range(12): e(f"s_mov_b32 s{88+i}, 0")
    stamp(0, True)
    stamp(2)
    c("lane decode")
    e(f"v_and_b32 v{vLANE}, 63, v0")
    e(f"v_lshrrev_b32 v{vT}, 6, v0")
    e(f"v_and_b32 v{vM}, 31, v0")
    e(f"v_readfirstlane_b32 s{sWAVE}, v{vT}")
    e(f"v_bfe_u32 v{vHH}, v0, 5, 1")
    c("wg decode: xcd=wg%8, q=wg/8; jg=xcd%4; i=q%4; rb=(xcd/4)*8+q/4")
    e(f"s_and_b32 s{sT0}, s2, 3")
    e(f"s_bfe_u32 s{sT1}, s2, 0x20003")
    e(f"s_bfe_u32 s{sT2}, s2, 0x10002")
    e(f"s_lshr_b32 s{sT3}, s2, 5")
    e(f"s_lshl_b32 s{sRB}, s{sT2}, 3")
    e(f"s_add_u32 s{sRB}, s{sRB}, s{sT3}")
    e(f"s_mul_i32 s{sJOB}, s{sT0}, 3")
    e(f"s_add_u32 s{sJOB}, s{sJOB}, s{sT1}")
    e(f"s_add_u32 s{sT2}, s{sT0}, 12")
    e(f"s_cmp_eq_u32 s{sT1}, 3")
    e(f"s_cselect_b32 s{sJOB}, s{sT2}, s{sJOB}")
    e(f"s_cselect_b32 s{sATT}, 1, 0")
    e(f"s_mul_i32 s{sW6K}, s{sWAVE}, 6144")
    e(f"s_mov_b32 s{sONES}, 0x3f803f80")
    e(f"s_mov_b32 s{sSELLO}, 0x00003f80")
    e(f"s_mov_b32 s{sSELHI}, 0x3f800000")
    c("x dma voffsets: i=lane/8, j'=lane%8; key=(i>>1)|(par<<2); off=i*1152+((j'^key)*16)")
    e(f"v_lshrrev_b32 v{vT}, 3, v{vLANE}")
    e(f"v_and_b32 v{vT+1}, 7, v{vLANE}")
    e(f"v_lshrrev_b32 v{vT+2}, 1, v{vT}")
    e(f"v_xor_b32 v{vT+2}, v{vT+1}, v{vT+2}")
    e(f"v_mul_u32_u24 v{vT+3}, 1152, v{vT}")
    e(f"v_lshl_add_u32 v{vT+4}, v{vT+2}, 4, v{vT+3}")
    e(f"v_xor_b32 v{vT+5}, 64, v{vT+4}")
    e("s_waitcnt lgkmcnt(0)")
    c("SRDs")
    for (s, k, sz) in ((sX, kx, 2048*1152), (sWS, kws, WS_BYTES), (sDBG, kdbg, 256)):
        e(f"s_mov_b32 s{s}, s{k}")
        e(f"s_and_b32 s{s+1}, s{k+1}, 0xffff")
        e(f"s_mov_b32 s{s+2}, {sz}")
        e(f"s_mov_b32 s{s+3}, 0x00020000")
    c("job 0 (wave 0) clears the 12 flag lines of its row block first")
    e(f"s_mul_i32 s63, s{sRB}, 1536")
    e(f"s_add_u32 s63, s63, {FL_OFF}")
    e(f"s_lshl_b32 s62, s{sRB}, 4")
    e(f"s_add_u32 s{sT0}, s{sWAVE}, s{sJOB}")
    e(f"s_cmp_eq_u32 s{sT0}, 0")
    e(f"s_cselect_b32 s63, s63, {OOR}")
    e(f"s_cselect_b32 s62, s62, {OOR}")
    e(f"v_min_u32 v24, 47, v{vLANE}")
    e(f"v_and_b32 v25, 3, v24")
    e(f"v_lshrrev_b32 v24, 2, v24")
    e(f"v_lshlrev_b32 v24, 7, v24")
    e(f"v_lshl_add_u32 v24, v25, 4, v24")
    for i in range(4): e(f"v_mov_b32 v{vS+i}, 0")
    e(f"buffer_store_dwordx4 {vr(vS,4)}, v24, {sr(sWS,4)}, s63 offen sc0 sc1")
    c("x rows base")
    e(f"s_lshl_b32 s{sT0}, s{sRB}, 7")
    e(f"s_lshl_b32 s{sT1}, s{sWAVE}, 5")
    e(f"s_add_u32 s{sT0}, s{sT0}, s{sT1}")
    e(f"s_mul_i32 s{sT0}, s{sT0}, 1152")
    e(f"s_add_u32 s{sT1}, s{sT0}, {8*1152}")
    e(f"s_add_u32 s{sT2}, s{sT0}, {16*1152}")
    e(f"s_add_u32 s{sT3}, s{sT0}, {24*1152}")
    e(f"s_mul_i32 s{sCUR}, s{sWAVE}, 36864")
    for cg in range(9):
        for br in range(4):
            e(f"s_add_u32 m0, s{sCUR}, {(br*9+cg)*1024 - cg*128}")
            e("s_nop 0")
            e(f"buffer_load_dwordx4 v{vT+4+(br&1)}, {sr(sX,4)}, s{sT0+br} offen offset:{cg*128} lds")
    c("cache warm-up, chip-wide split: unit u = wg*4+wave, one dword per 128-B line")
    e(f"s_lshl_b32 s{sT0}, s2, 2")
    e(f"s_add_u32 s{sT0}, s{sT0}, s{sWAVE}")
    for (k_, sz_, n_) in ((kqkv, 576*3456, 16), (kw1, 576*9216, 41), (kwo, 576*1152, 6)):
        pf_srd(k_, sz_ if (n_ != 41 or PFW1 == 1) else 0)
        e(f"v_min_u32 v{vT}, {n_-1}, v{vLANE}")
        e(f"v_lshlrev_b32 v{vT}, 7, v{vT}")
        e(f"s_mul_i32 s{sT1}, s{sT0}, {n_*128}")
        e(f"buffer_load_dword a63, v{vT}, {sr(sPF,4)}, s{sT1} offen")
    pf_srd(kw2, 4608*1152)
    e(f"v_min_u32 v{vPF}, {PFN-1}, v{vLANE}")
    e(f"v_lshlrev_b32 v{vPF}, 7, v{vPF}")
    e(f"s_mul_i32 s{sPFO}, s{sT0}, {42*128}")
    c("x frag read addresses: base + (m/8)*9216 + (m%8)*128 + (((2q+hh)^key)*16), key=(m>>1)&7")
    e(f"v_lshrrev_b32 v{vT}, 3, v{vM}")
    e(f"v_mul_u32_u24 v{vT}, 9216, v{vT}")
    e(f"v_and_b32 v{vT+1}, 7, v{vM}")
    e(f"v_lshl_add_u32 v{vT}, v{vT+1}, 7, v{vT}")
    e(f"v_add_u32 v{vT}, s{sCUR}, v{vT}")
    e(f"v_bfe_u32 v{vT+1}, v{vM}, 1, 3")
    e(f"v_xor_b32 v{vT+1}, v{vT+1}, v{vHH}")
    for q in range(4):
        e(f"v_xor_b32 v{vT+2}, {2*q}, v{vT+1}")
        e(f"v_lshl_add_u32 v{vT+6+q}, v{vT+2}, 4, v{vT}")
    c("tr-read lane bases. g=lane/16: ch=g&1, hh=g>>1; r=(lane%16)/4, cc=lane%4")
    tr, tc, tch, trow, tsw = U+10, U+11, U+12, U+13, U+14
    e(f"v_bfe_u32 v{tr}, v{vLANE}, 2, 2")
    e(f"v_and_b32 v{tc}, 3, v{vLANE}")
    e(f"v_bfe_u32 v{tch}, v{vLANE}, 4, 1")
    e(f"v_lshl_add_u32 v{trow}, v{vHH}, 3, v{tr}")
    e(f"v_lshlrev_b32 v{trow}, 7, v{trow}")
    e(f"v_lshrrev_b32 v{tsw}, 1, v{tr}")
    vCOLP = U + 9
    c(" FFN gemm1: sw*64 + ch*32 + c*8")
    e(f"v_lshl_add_u32 v{vA01}, v{tsw}, 6, v{trow}")
    e(f"v_lshl_add_u32 v{vA01}, v{tch}, 5, v{vA01}")
    e(f"v_lshl_add_u32 v{vA01}, v{tc}, 3, v{vA01}")
    c(" gemm2 mapping: sw*64 + (c%2)*32 + ch*16 + (c/2)*8")
    e(f"v_and_b32 v{U+15}, 1, v{tc}")
    e(f"v_lshlrev_b32 v{vCOLP}, 6, v{tsw}")
    e(f"v_lshl_add_u32 v{vCOLP}, v{U+15}, 5, v{vCOLP}")
    e(f"v_lshl_add_u32 v{vCOLP}, v{tch}, 4, v{vCOLP}")
    e(f"v_lshrrev_b32 v{vT+2}, 1, v{tc}")
    e(f"v_lshl_add_u32 v{vCOLP}, v{vT+2}, 3, v{vCOLP}")
    e(f"v_add_u32 v{vBASE_G2}, v{vCOLP}, v{trow}")
    e(f"v_mul_u32_u24 v{vBASE_AG2}, 72, v{vHH}")
    e(f"v_add_u32 v{vBASE_AG2}, v{vBASE_AG2}, v{tr}")
    e(f"v_lshl_add_u32 v{vBASE_AG2}, v{vBASE_AG2}, 7, v{vCOLP}")
    c("dma lane decode")
    di, dj, dsw = U+10, U+11, U+12
    e(f"v_lshrrev_b32 v{di}, 3, v{vLANE}")
    e(f"v_and_b32 v{dj}, 7, v{vLANE}")
    e(f"v_bfe_u32 v{dsw}, v{di}, 1, 1")
    e(f"v_lshlrev_b32 v{U+13}, 2, v{dsw}")
    e(f"v_xor_b32 v{dj}, v{dj}, v{U+13}")
    e(f"v_lshlrev_b32 v{U+13}, 4, v{dj}")
    e(f"s_mul_i32 s{sT0}, s{sWAVE}, 48")
    e(f"v_add_u32 v{U+14}, s{sT0}, v{di}")
    e(f"v_mov_b32 v{vWO}, 0")
    for p_ in range(6): e(f"v_mov_b32 v{vD2+p_}, 0")
    e(f"s_cmp_eq_u32 s{sATT}, 1")
    e("s_cbranch_scc1 Lsetup_att")
    c("---- FFN setup")
    e(f"v_mul_u32_u24 v{U+14}, 9216, v{U+14}")
    e(f"v_add_u32 v{vD}, v{U+14}, v{U+13}")
    for p_ in range(1, 6): e(f"v_add_u32 v{vD+p_}, {p_*8*9216 - IMM[p_]}, v{vD}")
    c(" W2: row = 48w + 8*(i/4) + i%4")
    e(f"v_lshrrev_b32 v{U+14}, 2, v{di}")
    e(f"v_and_b32 v{U+15}, 3, v{di}")
    e(f"v_lshl_add_u32 v{U+14}, v{U+14}, 3, v{U+15}")
    e(f"v_add_u32 v{U+14}, s{sT0}, v{U+14}")
    e(f"v_mul_u32_u24 v{U+14}, 1152, v{U+14}")
    e(f"v_add_u32 v{vD2}, v{U+14}, v{U+13}")
    for p_ in range(1, 6): e(f"v_add_u32 v{vD2+p_}, {((p_//2)*16 + (p_%2)*4)*1152 - IMM[p_]}, v{vD2}")
    e(f"s_mov_b32 s{sSRD}, s{kw1}")
    e(f"s_and_b32 s{sSRD+1}, s{kw1+1}, 0xffff")
    e(f"s_mov_b32 s{sSRD+2}, {576*9216}")
    e(f"s_mul_i32 s{sSOFF}, s{sJOB}, 768")
    e(f"s_mov_b32 s{sINC}, {(128 - 2*192*9216) & 0xffffffff}")
    e(f"s_mov_b32 s{sINC+1}, {192*9216}")
    e(f"s_mov_b32 s{sINC+2}, {192*9216}")
    e(f"v_mov_b32 v{vS}, 0")
    e("s_branch Lsetup_done")
    lab("Lsetup_att")
    c("---- attention setup: ci = 9 + j/2 ; base = row*3456 + 16*(j%2) + 32*ci + 864")
    e(f"v_mov_b32 v{vA01}, v{vBASE_G2}")
    e(f"v_lshrrev_b32 v{U+15}, 1, v{dj}")
    e(f"v_add_u32 v{vCI}, 9, v{U+15}")
    e(f"v_lshlrev_b32 v{vCUR}, 5, v{vCI}")
    e(f"v_add_u32 v{vCUR}, 864, v{vCUR}")
    e(f"v_mul_u32_u24 v{U+14}, 3456, v{U+14}")
    e(f"v_add3_u32 v{vD}, v{U+14}, v{U+13}, 0")
    e(f"v_add_u32 v{vD}, 1152, v{vD}")
    for p_ in range(1, 6): e(f"v_add_u32 v{vD+p_}, {p_*8*3456 - IMM[p_]}, v{vD}")
    c(" Wo dma voffset: row=40w+i natural")
    e(f"s_mul_i32 s{sT1}, s{sWAVE}, 40")
    e(f"v_add_u32 v{U+14}, s{sT1}, v{di}")
    e(f"v_mul_u32_u24 v{U+14}, 1152, v{U+14}")
    e(f"v_add_u32 v{vWO}, v{U+14}, v{U+13}")
    e(f"s_mov_b32 s{sSRD}, s{kqkv}")
    e(f"s_and_b32 s{sSRD+1}, s{kqkv+1}, 0xffff")
    e(f"s_mov_b32 s{sSRD+2}, {576*3456}")
    e(f"s_sub_u32 s{sT1}, s{sJOB}, 12")
    e(f"s_mul_i32 s{sSOFF}, s{sT1}, 288")
    e(f"s_mov_b32 s{sINC}, {(- 2*192*3456) & 0xffffffff}")
    e(f"s_mov_b32 s{sINC+1}, {192*3456}")
    e(f"s_mov_b32 s{sINC+2}, {192*3456}")
    emit_list(att_delta())
    lab("Lsetup_done")
    e(f"s_mov_b32 s{sSRD+3}, 0x00020000")
    if NOW: e(f"s_mov_b32 s{sSRD+2}, 0")
    e(f"s_mov_b32 s{sMB0}, 0")
    e(f"s_mov_b32 s{sMB1}, {TOG}")
    e(f"s_mov_b32 s{sG}, 0")
    e(f"s_mov_b32 s{sIDX}, 0")
    e(f"s_mov_b32 s{sIDX+1}, 0")
    e(f"v_xor_b32 v{vB01}, 64, v{vA01}")
    e(f"v_add_u32 v{vA2}, {2*SLOT}, v{vA01}")
    e(f"v_add_u32 v{vB2}, {2*SLOT}, v{vB01}")
    e(f"v_mov_b32 v{vMASKA}, {TOG}")
    c("partial store: voffset = lane*16 ; soffset base = ((rb*16+job)*4+wave)*36864")
    e(f"v_lshlrev_b32 v{vST}, 4, v{vLANE}")
    e(f"s_lshl_b32 s{sT0}, s{sRB}, 4")
    e(f"s_add_u32 s{sT0}, s{sT0}, s{sJOB}")
    e(f"s_lshl_b32 s{sT0}, s{sT0}, 2")
    e(f"s_add_u32 s{sT0}, s{sT0}, s{sWAVE}")
    e(f"s_mul_i32 s{sSTOFF}, s{sT0}, 36864")
    if NOST: e(f"s_mov_b32 s{sSTOFF}, 0x40000000")
    c("---- read x frags, row sums (sum of squares only where rstd is needed)")
    s0 = 16
    for i in range(8): e(f"v_mov_b32 v{s0+i}, 0")
    def sums(cg):
        for i in range(16):
            e(f"v_dot2c_f32_bf16 v{s0+i%4}, s{sONES}, v{X+16*cg+i}")
        for i in range(16):
            e(f"v_dot2c_f32_bf16 v{s0+4+i%4}, v{X+16*cg+i}, v{X+16*cg+i}")
    e(f"s_cmp_eq_u32 s{sATT}, 1")
    for cg in range(9):
        e(f"s_waitcnt vmcnt({39 - 4*(cg+1)})")
        for q in range(4):
            s_ = 4 * cg + q
            e(f"ds_read_b128 {vr(X+4*s_,4)}, v{vT+6+q} offset:{cg*1024}")
        if cg > 0:
            e("s_waitcnt lgkmcnt(4)")
            sums(cg - 1)
        if PFW1 >= 2 and cg == 8:
            pf_srd(kw1, 576*9216, sPF2)
            e(f"v_min_u32 v{vT}, 40, v{vLANE}")
            e(f"v_lshlrev_b32 v{vT}, 7, v{vT}")
            e(f"s_lshl_b32 s{sT0}, s2, 2")
            e(f"s_add_u32 s{sT0}, s{sT0}, s{sWAVE}")
            e(f"s_mul_i32 s{sT1}, s{sT0}, {41*128}")
            e(f"buffer_load_dword a63, v{vT}, {sr(sPF2,4)}, s{sT1} offen")
            e(f"s_cmp_eq_u32 s{sATT}, 1")
    e("s_waitcnt lgkmcnt(0)")
    e("s_barrier")
    stamp(3)
    sums(8)
    prime = []
    for t_ in range(5):
        for p_ in range(6 if t_ < 4 else 3):
            o = []
            if p_ in (0, 4):
                o += [f"s_add_u32 m0, s{sW6K}, {t_*SLOT + (4096 if p_ == 4 else 0)}", "s_nop 0"]
            o += dma_ld(p_)
            if t_ == 2: o += [f"v_add_u32 v{vD+p_}, v{vD+p_}, v{vS}"]
            if t_ < 4 and p_ == 5: o += [f"s_add_u32 s{sSOFF}, s{sSOFF}, s{sINC + (0 if t_ == 2 else 1)}"]
            prime.append(o)
    for _ in range(3): emit_list(prime.pop(0))
    c("---- LN")
    q0 = s0 + 4
    for b_ in (s0, q0):
        e(f"v_add_f32 v{b_}, v{b_}, v{b_+1}")
        e(f"v_add_f32 v{b_+2}, v{b_+2}, v{b_+3}")
        e(f"v_add_f32 v{b_}, v{b_}, v{b_+2}")
        e(f"v_mov_b32 v{b_+1}, v{b_}")
        e("s_nop 1")
        e(f"v_permlane32_swap_b32 v{b_}, v{b_+1}")
        e("s_nop 1")
        e(f"v_add_f32 v{b_}, v{b_}, v{b_+1}")
        e(f"v_mul_f32 v{b_}, {1.0/576:.9e}, v{b_}")
    e(f"v_fma_f32 v{q0}, -v{s0}, v{s0}, v{q0}")
    emit_list(round_bf16(s0, s0+2))
    e(f"v_sub_f32 v{s0+2}, 0, v{s0}")
    negm = s0 + 2
    e(f"v_max_f32 v{q0}, 0, v{q0}")
    emit_list(round_bf16(q0, q0+1))
    e(f"v_add_f32 v{q0}, 0x3727c5ac, v{q0}")
    emit_list(round_bf16(q0, q0+1))
    e(f"v_sqrt_f32 v{q0}, v{q0}")
    e("s_nop 0")
    emit_list(round_bf16(q0, q0+1))
    e(f"v_rcp_f32 v{vRSTD}, v{q0}")
    t = 32
    for b in range(0, 152, 4):
        tb = t + (8 if (b // 4) % 2 else 0)
        if b < 144:
            for i in range(4):
                e(f"v_dot2_f32_bf16 v{tb+2*i}, v{X+b+i}, s{sSELLO}, v{negm}")
                e(f"v_dot2_f32_bf16 v{tb+2*i+1}, v{X+b+i}, s{sSELHI}, v{negm}")
        else: e("s_nop 2")
        if 0 < b <= 144:
            pb = t + (8 if (b // 4 - 1) % 2 else 0)
            for i in range(4):
                e(f"v_cvt_pk_bf16_f32 v{X+b-4+i}, v{pb+2*i}, v{pb+2*i+1}")
        if b > 4 and b - 8 < 4 * NXA:
            for i in range(4): e(f"v_accvgpr_write_b32 a{XA+b-8+i}, v{X+b-8+i}")
        if prime and (b // 4) % 3 != 2: emit_list(prime.pop(0))
    while prime: emit_list(prime.pop(0))
    stamp(4)
    c("stage 0 landed?")
    e("s_waitcnt vmcnt(21)")
    e("s_barrier")
    stamp(5)
    for i in range(D):
        emit_list(tr_reads(i % R, vA01, i * 2048, 512))
    e(f"s_cmp_lt_u32 s{sWAVE}, 2")
    e("s_cbranch_scc0 Lno3")
    emit_list(dma_ld(3))
    lab("Lno3")
    c("flag line cleared long ago (in-order vmcnt) -> announce; other waves: out of range")
    e(f"v_lshlrev_b32 v{vS+1}, 8, v{vLANE}")
    e(f"v_mov_b32 v{vS+2}, 1")
    e(f"buffer_store_byte v{vS+2}, v{vS+1}, {sr(sDBG,4)}, s62 offen sc0 sc1")
    e(f"s_lshl_b32 s{sT0}, s{sATT}, 2")
    e(f"s_add_u32 s{sT0}, s{sT0}, s{sWAVE}")
    for k_ in range(1, 8):
        e(f"s_cmp_eq_u32 s{sT0}, {k_}")
        e(f"s_cbranch_scc1 Lp1_{'a' if k_ >= 4 else 'f'}{k_ % 4}")
    for w in range(4):
        c(f"================ FFN wave {w}")
        phase1(False, w)
        stamp(6)
        e(f"s_mov_b32 s{sT2}, 0x40000000")
        for i in range(8): e(f"v_pk_max_i16 v{H+80+i}, v{PK[0]+i}, 0")
        for i in range(4):
            if w == 0 and i == 0: ready_load()
            else: e(f"buffer_store_dwordx4 {vr(PK[0],4)}, v{vST}, {sr(sWS,4)}, s{sT2} offen")
        e(f"v_xor_b32 v{vA2}, 64, v{vBASE_G2}")
        e(f"v_xor_b32 v{vB01}, 64, v{vBASE_G2}")
        e(f"s_mov_b32 s{sG}, 0")
        e(f"s_mov_b32 s{sRD}, 0")
        e(f"s_mov_b32 s{sMB0}, 0")
        e(f"s_mov_b32 s{sMB1}, {4*SLOT}")
        e("s_nop 3")
        for i in range(8): e(f"v_cvt_pk_bf16_f32 v{PK[1]+i}, v{ACC[1]+2*i}, v{ACC[1]+2*i+1}")
        for i in range(8): e(f"v_pk_max_i16 v{H+88+i}, v{PK[1]+i}, 0")
        if w == 0: flag_regs()
        phase2(w)
        if w < 3: e("s_branch Lffn_end")
    lab("Lffn_end")
    st_ = lambda r, off: e(f"buffer_store_dwordx4 {vr(r,4)}, v{vST}, {sr(sWS,4)}, s{sT2} offen offset:{off} sc0 sc1")
    st_(PK[0], 0); st_(PK[0] + 4, 1024)
    e("s_nop 7")
    e("s_nop 3")
    for i in range(8):
        e(f"v_cvt_pk_bf16_f32 v{PK[1]+i}, v{ACC[1]+2*i}, v{ACC[1]+2*i+1}")
    st_(PK[1], 2048); st_(PK[1] + 4, 3072)
    stamp(7)
    reduce_tail()
    if PROF: e("s_waitcnt vmcnt(0)")
    prof_out()
    e("s_endpgm")
    emit_list(RARE)
    c("halo publish / flag (attention wave 3)")
    lab("Lpub")
    e(f"s_lshl_b32 s{sT0}, s{sRB}, 2")
    e(f"s_add_u32 s{sT0}, s{sT0}, s{sJOB}")
    e(f"s_sub_u32 s{sT0}, s{sT0}, 12")
    e(f"s_cmp_eq_u32 s{sG}, 5")
    e("s_cbranch_scc0 Lflag")
    e(f"s_mul_i32 s{sT0}, s{sT0}, 9216")
    e(f"s_add_u32 s{sT0}, s{sT0}, {HALO_OFF}")
    e(f"v_and_b32 v{vS+2}, 15, v{vM}")
    e(f"v_mul_u32_u24 v{vS+2}, 576, v{vS+2}")
    e(f"v_lshl_add_u32 v{vS+2}, v{vHH}, 5, v{vS+2}")
    e(f"v_cmp_lt_u32 vcc, 15, v{vM}")
    e(f"s_and_saveexec_b64 {sr(sEX,2)}, vcc")
    for u in range(18):
        e(f"buffer_store_dwordx4 {vr(H+4*u,4)}, v{vS+2}, {sr(sWS,4)}, s{sT0} offen offset:{64*(u//2)+16*(u%2)} sc0 sc1")
    e(f"s_mov_b64 exec, {sr(sEX,2)}")
    e("s_nop 3")
    e("s_branch Lpubr")
    lab("Lflag")
    e("s_waitcnt vmcnt(16)")
    e(f"s_lshl_b32 s{sT0}, s{sRB}, 4")
    e(f"s_add_u32 s{sT0}, s{sT0}, s{sJOB}")
    signal(1, sT0)
    e("s_branch Lpubr")
    for w in range(4):
        c(f"================ attention wave {w}")
        phase1(True, w)
        if w < 3: e("s_branch Latt")
    attention()
    lab("Lend1")
    e("s_endpgm")

def wo_stage(j):
    o = []
    for p in range(5):
        o.append(f"s_add_u32 m0, s{sCUR}, {(j % 6) * SLOT + p * 1024}")
        o.append(f"s_add_u32 s{sT1}, s{sT3}, {p * 8 * 1152 + j * 128}")
        o.append(f"buffer_load_dwordx4 v{vWO}, {sr(sSRD,4)}, s{sT1} offen lds")
    return o

def attention():
    lab("Latt")
    stamp(6)
    Q = 16
    QBASE, QSTR = 30720, 336
    e(f"s_mov_b32 s{sSRD}, s{kwo}")
    e(f"s_and_b32 s{sSRD+1}, s{kwo+1}, 0xffff")
    e(f"s_mov_b32 s{sSRD+2}, {0 if NOW else 576*1152}")
    e(f"s_mul_i32 s{sCUR}, s{sWAVE}, 5120")
    e(f"s_sub_u32 s{sT3}, s{sJOB}, 12")
    e(f"s_mul_i32 s{sT3}, s{sT3}, {144*1152}")
    wa = 192
    e(f"s_lshl_b32 s{sT0}, s{sWAVE}, 5")
    e("s_nop 7")
    e(f"v_add_u32 v{wa+2}, s{sT0}, v{vM}")
    e(f"v_mul_u32_u24 v{wa}, {KVSTR}, v{wa+2}")
    e(f"v_add_u32 v{wa}, {KVBASE + 16*KVSTR}, v{wa}")
    e(f"v_lshl_add_u32 v{wa+3}, v{vHH}, 5, v{wa}")
    e(f"v_mul_u32_u24 v{wa+4}, {QSTR}, v{wa+2}")
    e(f"v_add_u32 v{wa+4}, {QBASE}, v{wa+4}")
    e(f"v_lshl_add_u32 v{wa+5}, v{vHH}, 5, v{wa+4}")
    e(f"v_mul_u32_u24 v{wa+1}, 144, v{vHH}")
    e(f"v_add_u32 v{wa}, v{wa}, v{wa+1}")
    e(f"v_add_u32 v{wa+4}, v{wa+4}, v{wa+1}")
    e(f"v_lshlrev_b32 v{wa+1}, 1, v{wa+1}")
    for i in range(16): e(f"v_mul_f32 v{ACC[1]+i}, v{ACC[1]+i}, v{vRSTD}")
    for i in range(8): e(f"v_cvt_pk_bf16_f32 v{H+104+i}, v{ACC[1]+2*i}, v{ACC[1]+2*i+1}")
    e("s_waitcnt vmcnt(0) lgkmcnt(0)")
    e("s_barrier")
    c("Wo stage 0")
    emit_list(wo_stage(0))
    c("write q,k,v to LDS")
    for u in range(10):
        e(f"ds_write_b128 v{wa+5}, {vr(H+72+4*u,4)} offset:{64*(u//2)+16*(u%2)}")
    for u in range(18):
        e(f"ds_write_b128 v{wa+3}, {vr(H+4*u,4)} offset:{64*(u//2)+16*(u%2)}")
    for i in range(9):
        e(f"ds_read_b128 {vr(Q+4*i,4)}, v{wa+4} offset:{16*i}")
    kva = vT
    e("s_waitcnt lgkmcnt(9)")
    e(f"v_mov_b32 v{kva}, v{wa}")
    e(f"v_mov_b32 v{kva+1}, v{wa+1}")
    c("halo (wave 0)")
    e(f"s_cmp_eq_u32 s{sWAVE}, 0")
    e("s_cbranch_scc0 Lhalo_done")
    HB = 112
    e(f"v_and_b32 v{kva+2}, 15, v{vM}")
    e(f"v_lshrrev_b32 v{kva+3}, 4, v{vM}")
    e(f"v_mul_u32_u24 v{kva+3}, 144, v{kva+3}")
    e(f"v_add_u32 v{kva+3}, v{kva+3}, v{kva+1}")
    e(f"v_mul_u32_u24 v{kva+4}, 576, v{kva+2}")
    e(f"v_add_u32 v{kva+4}, v{kva+4}, v{kva+3}")
    e(f"v_mul_u32_u24 v{kva+5}, {KVSTR}, v{kva+2}")
    e(f"v_add_u32 v{kva+5}, v{kva+5}, v{kva+3}")
    e(f"v_add_u32 v{kva+5}, {KVBASE}, v{kva+5}")
    for i in range(36): e(f"v_mov_b32 v{HB+i}, 0")
    e(f"s_cmp_eq_u32 s{sRB}, 0")
    e("s_cbranch_scc1 Lhalo_wr")
    e(f"s_lshl_b32 s{sT0}, s{sRB}, 2")
    e(f"s_add_u32 s{sT0}, s{sT0}, s{sJOB}")
    e(f"s_sub_u32 s{sT0}, s{sT0}, 16")
    e(f"s_lshl_b32 s{sT1}, s{sRB}, 4")
    e(f"s_sub_u32 s{sT1}, s{sT1}, 4")
    e(f"s_lshl_b32 s62, s{sJOB}, 3")
    e(f"s_lshl_b32 s62, 1, s62")
    poll("h", sT1, 1, "s62", "s62", kva+6, 2)
    e(f"s_mul_i32 s{sT0}, s{sT0}, 9216")
    e(f"s_add_u32 s{sT0}, s{sT0}, {HALO_OFF}")
    for i in range(9):
        e(f"buffer_load_dwordx4 {vr(HB+4*i,4)}, v{kva+4}, {sr(sWS,4)}, s{sT0} offen offset:{16*i} sc0 sc1")
    e("s_waitcnt vmcnt(0)")
    lab("Lhalo_wr")
    for i in range(9):
        e(f"ds_write_b128 v{kva+5}, {vr(HB+4*i,4)} offset:{16*i}")
    lab("Lhalo_done")
    e("s_waitcnt lgkmcnt(0)")
    e("s_barrier")
    stamp(7)
    for j in range(1, 3): emit_list(wo_stage(j))
    if WOPF:
        c("pull Wo stages 3..8 of this job towards L2")
        e(f"v_min_u32 v{kva+2}, 35, v{vLANE}")
        e(f"s_mul_i32 s{sT0}, s{sWAVE}, 36")
        e(f"v_add_u32 v{kva+2}, s{sT0}, v{kva+2}")
        e(f"v_mul_u32_u24 v{kva+2}, 1152, v{kva+2}")
        for i in range(6):
            e(f"buffer_load_dword a63, v{kva+2}, {sr(sSRD,4)}, s{sT3} offen offset:{384+128*i}")
    e(f"s_cmp_eq_u32 s{sWAVE}, 0")
    e("s_cbranch_scc0 Lnordl")
    ready_load()
    lab("Lnordl")
    c("QK^T")
    LG = 52
    KB = [112, 148]
    e(f"v_subrev_u32 v{kva}, {14*KVSTR}, v{kva}")
    for i in range(32): e(f"v_mov_b32 v{LG+i}, 0")
    def rd(w, buf, voff):
        for i in range(9):
            e(f"ds_read_b128 {vr(KB[buf]+4*i,4)}, v{kva} offset:{(14-2*w)*KVSTR + voff + 16*i}")
    rd(0, 0, 0)
    for w in range(8):
        if w < 7: rd(w + 1, (w + 1) % 2, 0)
        else: rd(0, 0, 288)
        e("s_waitcnt lgkmcnt(9)")
        b = KB[w % 2]
        for i in range(9):
            for h in range(4):
                e(f"v_dot2c_f32_bf16 v{LG+8*h+w}, v{Q+9*h+i}, v{b+9*h+i}")
    c("mask + softmax")
    e(f"s_lshl_b32 s{sT0}, s{sRB}, 7")
    e(f"s_lshl_b32 s{sT1}, s{sWAVE}, 5")
    e(f"s_add_u32 s{sT0}, s{sT0}, s{sT1}")
    e(f"v_add_u32 v{kva+2}, s{sT0}, v{vM}")
    e(f"v_mov_b32 v{kva+3}, 0xce6e6b28")
    sc = (18 ** -0.5)
    for i in range(32):
        emit_list(round_bf16(LG+i, kva+4+(i % 4)))
    import struct
    for i in range(32):
        e(f"v_mul_f32 v{LG+i}, {sc:.9e}, v{LG+i}")
    for i in range(32):
        emit_list(round_bf16(LG+i, kva+4+(i % 4)))
    for w in range(1, 8):
        e(f"v_cmp_le_u32 vcc, {2*w}, v{kva+2}")
        e("s_nop 1")
        for h in range(4):
            e(f"v_cndmask_b32 v{LG+8*h+w}, v{kva+3}, v{LG+8*h+w}, vcc")
    MX = kva + 4
    for h in range(4):
        b = LG + 8 * h
        e(f"v_max3_f32 v{MX+h}, v{b}, v{b+1}, v{b+2}")
        e(f"v_max3_f32 v{MX+h}, v{MX+h}, v{b+3}, v{b+4}")
        e(f"v_max3_f32 v{MX+h}, v{MX+h}, v{b+5}, v{b+6}")
        e(f"v_max_f32 v{MX+h}, v{MX+h}, v{b+7}")
    for h in range(4):
        for w in range(8):
            e(f"v_sub_f32 v{LG+8*h+w}, v{LG+8*h+w}, v{MX+h}")
    for i in range(32): e(f"v_mul_f32 v{LG+i}, 0x3fb8aa3b, v{LG+i}")
    for i in range(32): e(f"v_exp_f32 v{LG+i}, v{LG+i}")
    e("s_nop 0")
    for h in range(4):
        b = LG + 8 * h
        e(f"v_add_f32 v{MX+h}, v{b}, v{b+1}")
    for w in range(2, 8):
        for h in range(4):
            e(f"v_add_f32 v{MX+h}, v{MX+h}, v{LG+8*h+w}")
    for h in range(4): e(f"v_rcp_f32 v{MX+h}, v{MX+h}")
    e("s_nop 0")
    for h in range(4):
        for w in range(8):
            e(f"v_mul_f32 v{LG+8*h+w}, v{LG+8*h+w}, v{MX+h}")
    PLO, PHI = LG, 16
    for i in range(32):
        e(f"v_cvt_pk_bf16_f32 v{PLO+i}, v{LG+i}, 0")
    for i in range(32):
        e(f"v_lshlrev_b32 v{PHI+i}, 16, v{PLO+i}")
    O = 184
    for i in range(72): e(f"v_mov_b32 v{O+i}, 0")
    c("PV")
    for w in range(8):
        if w < 7:
            rd(w + 1, (w + 1) % 2, 288)
            e("s_waitcnt lgkmcnt(9)")
        else:
            e("s_waitcnt lgkmcnt(0)")
        b = KB[w % 2]
        for i in range(36):
            h = i // 9
            e(f"v_dot2c_f32_bf16 v{O+2*i}, v{b+i}, v{PLO+8*h+w}")
            e(f"v_dot2c_f32_bf16 v{O+2*i+1}, v{b+i}, v{PHI+8*h+w}")
    e("s_barrier")
    stamp(8)
    c("kv area free: Wo stages 3..4")
    for j in range(3, 5): emit_list(wo_stage(j))
    OP = 112
    for i in range(36):
        e(f"v_cvt_pk_bf16_f32 v{OP+i}, v{O+2*i}, v{O+2*i+1}")
    c("gemm2 (attention): loop over 9 stages x 18 slots")
    R2, D2 = 9, int(os.environ.get("D2", "7"))
    vA, vB = 148, 149
    sCS, sWR, sNX, sDO, sPREV, sCURO = sMB0, sMB1, sRD, sSOFF, sINC, sINC + 1
    e(f"v_mov_b32 v{vA}, v{vBASE_AG2}")
    e(f"v_xor_b32 v{vB}, 64, v{vBASE_AG2}")
    e(f"s_mov_b32 s{sG}, 0")
    e(f"s_mov_b32 s{sCS}, {5*SLOT}")
    e(f"s_mov_b32 s{sNX}, 0")
    e(f"s_add_u32 s{sDO}, s{sT3}, {4*128}")
    for p in range(1, 5): e(f"v_add_u32 v{149+p}, {p*9216 - (p%4)*1024}, v{vWO}")
    e(f"s_mov_b32 s{sPREV}, {OOR}")
    e(f"s_mov_b32 s{sCURO}, s{sSTOFF}")
    e("s_waitcnt vmcnt(10)")
    e("s_barrier")
    stamp(9)
    def rds(i):
        w = i % 18
        t, ks = divmod(w, 9)
        return tr_reads(i % R2, [vA, vB][t], ks * 1024, 512)
    for i in range(D2): emit_list(rds(i))
    def wst(k, so):
        e(f"buffer_store_dwordx4 {vr(PK[k//2]+4*(k%2),4)}, v{vST}, {sr(sWS,4)}, s{so} offen offset:{1024*k} sc0 sc1")
    for dma, lim, nv in ((True, 4, 27), (False, 9, 16)):
        e(".p2align 6")
        lab(f"Lwo{lim}")
        for w in range(18):
            t, ks = divmod(w, 9)
            emit_list(rds(w + D2))
            if w % 2 == 0: e(f"s_waitcnt lgkmcnt({2*D2-2})")
            acc = vr(ACC[t], 16)
            e(f"v_mfma_f32_32x32x16_bf16 {acc}, {ar(FR+4*(w%R2),4)}, {vr(OP+4*ks,4)}, {'0' if ks == 0 else acc}")
            if w == 0:
                if dma: e(f"s_add_u32 s{sWR}, s{sCS}, s{sCUR}")
                e(f"s_mov_b32 s{sCS}, s{sNX}")
                if dma: e(f"s_add_u32 s{sDO}, s{sDO}, 128")
            if w == 1: e(f"s_add_u32 s{sNX}, s{sCS}, {SLOT}")
            if w == 3:
                e(f"s_cmp_eq_u32 s{sNX}, {6*SLOT}")
                e(f"s_cselect_b32 s{sNX}, 0, s{sNX}")
            if w == 6: e(f"v_add_u32 v{vA}, s{sNX}, v{vBASE_AG2}")
            if w == 10: e(f"v_xor_b32 v{vB}, 64, v{vA}")
            if w == 8:
                e(f"s_waitcnt vmcnt({nv})")
                e("s_barrier")
            if dma and w in (8, 16): e(f"s_add_u32 m0, s{sWR}, {4096 if w == 16 else 0}")
            if dma and w in (9, 11, 13, 15, 17):
                p = (w - 9) // 2
                e(f"buffer_load_dwordx4 v{149+p if p else vWO}, {sr(sSRD,4)}, s{sDO} offen offset:{(p%4)*1024} lds")
            cv = {2: (0, 1, 2), 4: (3, 4, 5), 6: (6, 7)}
            for tt, w0 in ((0, 10), (1, 0)):
                for i2 in cv.get(w - w0, ()):
                    e(f"v_cvt_pk_bf16_f32 v{PK[tt]+i2}, v{ACC[tt]+2*i2}, v{ACC[tt]+2*i2+1}")
            if w in (1, 3, 5, 7): wst(w // 2, sPREV)
            if w == 10:
                e(f"s_mov_b32 s{sPREV}, s{sCURO}")
                e(f"s_add_u32 s{sCURO}, s{sCURO}, 4096")
            if w == 17:
                e(f"s_add_u32 s{sG}, s{sG}, 1")
                e(f"s_cmp_lt_u32 s{sG}, {lim}")
        e(f"s_cbranch_scc1 Lwo{lim}")
        if dma: stamp(10)
    wst(0, sPREV); wst(1, sPREV)
    e("s_nop 7")
    e("s_nop 7")
    for i2 in range(8):
        e(f"v_cvt_pk_bf16_f32 v{PK[1]+i2}, v{ACC[1]+2*i2}, v{ACC[1]+2*i2+1}")
    wst(2, sPREV); wst(3, sPREV)
    stamp(11)
    wg_signal("a", 1)
    prof_out()
    e("s_endpgm")

def k2():
    kn = "k2_kernel"
    L.append(f".globl {kn}\n.p2align 8\n.type {kn},@function")
    lab(kn)
    e("s_cmp_ge_u32 s2, 576")
    e("s_cbranch_scc1 Lend2")
    e("s_load_dwordx2 s[4:5], s[0:1], 0")
    e("s_load_dwordx2 s[6:7], s[0:1], 48")
    e("s_load_dwordx2 s[8:9], s[0:1], 64")
    if PROF: e("s_memrealtime s[32:33]")
    e("v_lshrrev_b32 v1, 6, v0")
    e("v_and_b32 v2, 63, v0")
    e("v_readfirstlane_b32 s3, v1")
    c("rb = wg/36 ; wv = (wg%36)*4+wave")
    e("s_mul_i32 s10, s2, 1821")
    e("s_lshr_b32 s10, s10, 16")
    e("s_mul_i32 s11, s10, 36")
    e("s_sub_u32 s11, s2, s11")
    e("s_lshl_b32 s11, s11, 2")
    e("s_add_u32 s11, s11, s3")
    e("s_mul_i32 s24, s11, 1821")
    e("s_lshr_b32 s24, s24, 16")
    e("s_mul_i32 s25, s24, 36")
    e("s_sub_u32 s25, s11, s25")
    e("s_and_b32 s26, s25, 1")
    e("s_lshr_b32 s25, s25, 1")
    c("partial offset = rb*16*PCHUNK + wv*1024 + lane*16")
    e(f"s_mul_i32 s27, s10, {16*PCHUNK}")
    e("s_lshl_b32 s28, s11, 10")
    e("s_add_u32 s27, s27, s28")
    e("v_lshlrev_b32 v3, 4, v2")
    c("x/out offset = (128rb+32r+lane%32)*1152 + tile*64 + (lane/32)*32 + half*16")
    e("s_lshl_b32 s28, s10, 7")
    e("s_lshl_b32 s29, s24, 5")
    e("s_add_u32 s28, s28, s29")
    e("s_mul_i32 s28, s28, 1152")
    e("s_lshl_b32 s29, s25, 6")
    e("s_add_u32 s28, s28, s29")
    e("s_lshl_b32 s29, s26, 4")
    e("s_add_u32 s28, s28, s29")
    e("v_and_b32 v4, 31, v2")
    e("v_mul_u32_u24 v4, 1152, v4")
    e("v_lshrrev_b32 v5, 5, v2")
    e("v_lshl_add_u32 v4, v5, 5, v4")
    e("s_mov_b32 s30, 0x00003f80")
    e("s_mov_b32 s31, 0x3f800000")
    e("s_waitcnt lgkmcnt(0)")
    for (s, k, sz) in ((12, 4, 2048*1152), (16, 6, 2048*1152), (20, 8, WS_BYTES)):
        e(f"s_mov_b32 s{s}, s{k}")
        e(f"s_and_b32 s{s+1}, s{k+1}, 0xffff")
        e(f"s_mov_b32 s{s+2}, {sz}")
        e(f"s_mov_b32 s{s+3}, 0x00020000")
    P = 32
    for j in range(16):
        e(f"buffer_load_dwordx4 {vr(P+4*j,4)}, v3, s[20:23], s27 offen")
        if j < 15: e(f"s_add_u32 s27, s27, {PCHUNK}")
    e("buffer_load_dwordx4 v[28:31], v4, s[12:15], s28 offen")
    e("s_lshl_b32 s27, s10, 9")
    e("s_lshl_b32 s29, s24, 7")
    e("s_add_u32 s27, s27, s29")
    e(f"s_add_u32 s27, s27, {RSTD_OFF}")
    e("v_and_b32 v5, 31, v2")
    e("v_lshlrev_b32 v5, 2, v5")
    e("buffer_load_dword v6, v5, s[20:23], s27 offen")
    F, S = 8, 16
    for i in range(16): e(f"v_mov_b32 v{F+i}, 0")
    for j in range(16):
        e(f"s_waitcnt vmcnt({17-j})")
        a = F if j < 12 else S
        for i in range(4):
            e(f"v_dot2c_f32_bf16 v{a+2*i}, s30, v{P+4*j+i}")
            e(f"v_dot2c_f32_bf16 v{a+2*i+1}, s31, v{P+4*j+i}")
    e("s_nop 2")
    T = 32
    e("s_waitcnt vmcnt(0)")
    for i in range(8): e(f"v_mul_f32 v{F+i}, v{F+i}, v6")
    c("f,s -> bf16")
    for i in range(8):
        e(f"v_cvt_pk_bf16_f32 v{T+i}, v{F+2*i}, v{F+2*i+1}")
    for i in range(8):
        e(f"v_lshlrev_b32 v{F+2*i}, 16, v{T+i}")
        e(f"v_and_b32 v{F+2*i+1}, 0xffff0000, v{T+i}")
    c("g = silu(f) = f/(1+exp(-f))")
    for i in range(8): e(f"v_mul_f32 v{T+i}, 0xbfb8aa3b, v{F+i}")
    for i in range(8): e(f"v_exp_f32 v{T+i}, v{T+i}")
    for i in range(8): e(f"v_add_f32 v{T+i}, 1.0, v{T+i}")
    for i in range(8): e(f"v_rcp_f32 v{T+i}, v{T+i}")
    for i in range(8): e(f"v_mul_f32 v{F+i}, v{F+i}, v{T+i}")
    for i in range(4): e(f"v_cvt_pk_bf16_f32 v{T+i}, v{F+2*i}, v{F+2*i+1}")
    for i in range(4):
        e(f"v_lshlrev_b32 v{F+2*i}, 16, v{T+i}")
        e(f"v_and_b32 v{F+2*i+1}, 0xffff0000, v{T+i}")
    for i in range(8): e(f"v_mul_f32 v{F+i}, v{F+i}, v{S+i}")
    for i in range(4): e(f"v_cvt_pk_bf16_f32 v{T+i}, v{F+2*i}, v{F+2*i+1}")
    e("s_waitcnt vmcnt(0)")
    for i in range(4):
        e(f"v_lshlrev_b32 v{F+2*i}, 16, v{T+i}")
        e(f"v_and_b32 v{F+2*i+1}, 0xffff0000, v{T+i}")
        e(f"v_lshlrev_b32 v{S+2*i}, 16, v{28+i}")
        e(f"v_and_b32 v{S+2*i+1}, 0xffff0000, v{28+i}")
    for i in range(8): e(f"v_add_f32 v{F+i}, v{F+i}, v{S+i}")
    for i in range(4): e(f"v_cvt_pk_bf16_f32 v{T+i}, v{F+2*i}, v{F+2*i+1}")
    e(f"buffer_store_dwordx4 {vr(T,4)}, v4, s[16:19], s28 offen")
    if PROF:
        e("s_waitcnt vmcnt(0)")
        e("s_memrealtime s[34:35]")
        e("s_waitcnt lgkmcnt(0)")
        e("s_lshl_b32 s36, s2, 2")
        e("s_add_u32 s36, s36, s3")
        e("s_lshl_b32 s36, s36, 4")
        e(f"s_add_u32 s36, s36, {65<<20}")
        e("v_mov_b32 v1, 0")
        e("v_mov_b32 v8, s32")
        e("v_mov_b32 v9, 0")
        e("v_mov_b32 v10, s34")
        e("v_mov_b32 v11, 0")
        e("v_cmp_eq_u32 vcc, 0, v2")
        e("s_and_saveexec_b64 s[38:39], vcc")
        e("buffer_store_dwordx4 v[8:11], v1, s[20:23], s36 offen")
        e("s_waitcnt vmcnt(0)")
    lab("Lend2")
    e("s_endpgm")

def desc(kn, vg, acc, sg):
    return f""".amdhsa_kernel {kn}
  .amdhsa_next_free_vgpr {vg}
  .amdhsa_next_free_sgpr {sg}
  .amdhsa_accum_offset {acc}
  .amdhsa_group_segment_fixed_size 0
  .amdhsa_kernarg_size 72
  .amdhsa_user_sgpr_count 2
  .amdhsa_user_sgpr_kernarg_segment_ptr 1
  .amdhsa_system_sgpr_workgroup_id_x 1
.end_amdhsa_kernel
"""

def main(out):
    hdr = open(f"cdna_kernels/{NAME}.s.ref").read().split("; Override")[0]
    L.append(hdr.rstrip("\n"))
    L.append("; @launch grid=(256,1,1) block=(256,1,1) lds=163840")
    L.append('.amdgcn_target "amdgcn-amd-amdhsa--gfx950"')
    L.append(".text")
    k1()
    L.append('.section .rodata,"a"')
    L.append(".p2align 6")
    L.append(desc(NAME + "_kernel", 512, 256, 102))
    open(out, "w").write("\n".join(L) + "\n")

if __name__ == "__main__":
    main(sys.argv[1] if len(sys.argv) > 1 else f"cdna_kernels/{NAME}.s")
```

```python
import sys
NAME = "recurrent_scan__sliding_local_dilated__dense_activation_relu__prompt"
L = []
import re, os
PAD = {"on": False, "bytes": 0, "n": 0}
PADSP = int(os.environ.get("PADSP", "120"))
def isz(s):
    op = s.split()[0]
    if op.startswith(("buffer_", "ds_", "v_mfma", "v_cvt_pk", "v_lshl_add", "v_max3", "v_pk_", "v_accvgpr", "v_bfe", "v_mul_u32")): return 8
    m = re.search(r"[ ,](0x[0-9a-f]+|\d+\.\d+e[-+]\d+|\d+)(,|$)", s)
    if m and not op.startswith(("s_nop", "s_sleep", "s_waitcnt")):
        t = m.group(1)
        if "." in t or int(t, 0) > 64: return 8
    return 4
def e(s):
    L.append("    " + s)
    if PAD["on"] and not s.startswith("."):
        PAD["bytes"] += isz(s)
        if PAD["bytes"] >= PADSP and PAD["n"] < 128:
            L.append(f"Lpad{PAD['n']}:")
            L.append("    s_cbranch_execz Lret")
            PAD["n"] += 1; PAD["bytes"] = 4
def pads(on):
    PAD["on"] = on and PADSP > 0
    PAD["bytes"] = PADSP
def lab(s): L.append(s + ":")
def c(s): L.append("    ; " + s)

SLOT = 24576
NSLOT = 6
KVBASE = 73728
KVSTR = 592
PCHUNK = 147456
HALO_OFF = 256 * PCHUNK
WS_BYTES = HALO_OFF + 64 * 9216
D = 6
R = 8

RSTD_OFF = WS_BYTES
WS_BYTES += 32768
FL_OFF = RSTD_OFF
OOR = 0x40000000
WCOPY = 4
vTID, vLANE, vM, vHH = 0, 1, 2, 3
vA01, vB01, vA2, vB2, vMASKA, vWO = 4, 5, 6, 7, 8, 9
vRSTD, vST, vCI, vCUR, vBASE_G2, vBASE_AG2 = 10, 11, 12, 13, 14, 15
ACC = [16, 32]
PK = [48, 56]
vD, vD2 = 64, 70
vS = 76
H = 80
vT = 96
U = 80
X = 112
NXA = 20
XA = 64
FR = 0
sSRD, sX, sWS, sDBG = 4, 8, 12, 16
sWAVE, sRB, sJOB, sATT = 20, 21, 22, 23
sSOFF, sINC = 24, 25
sMB0, sMB1, sRD, sG, sIDX = 28, 29, 30, 31, 32
sONES, sSELLO, sSELHI = 41, 42, 43
sT0, sT1, sT2, sT3 = 54, 55, 56, 57
sSTOFF, sW6K, sCUR = 58, 59, 60
sK = 64
sEX = 84
kx, kqkv, kwo, kw1, kw2, kdbg, kws = sK, sK+2, sK+4, sK+8, sK+10, sK+14, sK+16
TOG = 0x12000
def xop(s_): return f"a[{XA+4*s_}:{XA+4*s_+3}]" if s_ < NXA else f"v[{X+4*s_}:{X+4*s_+3}]"
import os
PROF = os.environ.get("PROF", "0") == "1"
if PROF: WS_BYTES = 128 << 20
def stamp(i, real=False):
    if not PROF: return
    e(("s_memrealtime" if real else "s_memtime") + " s[86:87]")
    e("s_waitcnt lgkmcnt(0)")
    e(f"s_mov_b32 s{88+i}, s86")
def prof_out():
    if not PROF: return
    stamp(1, True)
    e(f"s_lshl_b32 s86, s2, 2")
    e(f"s_add_u32 s86, s86, s{sWAVE}")
    e(f"s_lshl_b32 s86, s86, 7")
    e(f"s_add_u32 s86, s86, {64<<20}")
    e("v_mov_b32 v1, 0")
    e("v_mov_b32 v3, 0")
    e("v_cmp_eq_u32 vcc, 0, v0")
    e("v_and_b32 v0, 63, v0")
    e("v_cmp_eq_u32 vcc, 0, v0")
    e(f"s_and_saveexec_b64 {sr(sEX,2)}, vcc")
    for i in range(12):
        e(f"v_mov_b32 v2, s{88+i}")
        e(f"buffer_store_dwordx2 v[2:3], v1, {sr(sWS,4)}, s86 offen offset:{8*i}")
        e("s_nop 1")
    e("s_waitcnt vmcnt(0)")
NOW = os.environ.get("NOW", "0") == "1"
NOST = os.environ.get("NOST", "0") == "1"
NODMA = os.environ.get("NODMA", "0") == "1"
NORD = os.environ.get("NORD", "0") == "1"
LIN = os.environ.get("LIN", "0") == "1"
NOPF = os.environ.get("NOPF", "0") == "1"
sPF = 44
sPF2, sPFO, sPFO2 = 48, 52, 53
vPF = 79
PFW1 = int(os.environ.get("PFW1", "0"))
PFN = int(os.environ.get("PFN", "14"))
def pf_srd(k, sz, r=sPF):
    e(f"s_mov_b32 s{r}, s{k}")
    e(f"s_and_b32 s{r+1}, s{k+1}, 0xffff")
    e(f"s_mov_b32 s{r+2}, {0 if (NOW or NOPF) else sz}")
    e(f"s_mov_b32 s{r+3}, 0x00020000")
uid = [0]
def newlab(p):
    uid[0] += 1
    return f"L{p}_{uid[0]}"

def vr(b, n): return f"v[{b}:{b+n-1}]"
def ar(b, n): return f"a[{b}:{b+n-1}]"
def sr(b, n): return f"s[{b}:{b+n-1}]"

IMM = [0, 1024, 2048, 3072, 0, 1024]
def dma_ld(p):
    if NODMA: return []
    return [f"buffer_load_dwordx4 v{vD+p}, {sr(sSRD,4)}, s{sSOFF} offen offset:{IMM[p]} lds"]
def att_delta():
    return [
        f"v_add_u32 v{vCI}, 4, v{vCI}",
        f"v_subrev_u32 v{vS}, 27, v{vCI}",
        f"v_min_u32 v{vCI}, v{vCI}, v{vS}",
        f"v_mul_u32_u24 v{vS}, 57, v{vCI}",
        f"v_lshrrev_b32 v{vS}, 9, v{vS}",
        f"v_mul_u32_u24 v{vS}, 864, v{vS}",
        f"v_lshl_add_u32 v{vS+1}, v{vCI}, 5, v{vS}",
        f"v_sub_u32 v{vS}, v{vS+1}, v{vCUR}",
        f"v_mov_b32 v{vCUR}, v{vS+1}",
    ]

def emit_list(lst):
    for s in lst:
        if s.endswith(":"): L.append(s)
        else: e(s)

def tr_reads(fr, addr, off, second):
    if NORD: return []
    return [f"ds_read_b64_tr_b16 {ar(FR+4*fr,2)}, v{addr} offset:{off}",
            f"ds_read_b64_tr_b16 {ar(FR+4*fr+2,2)}, v{addr} offset:{off+second}"]

def round_bf16(v, tmp):
    return [f"v_cvt_pk_bf16_f32 v{tmp}, v{v}, v{v}", f"v_lshlrev_b32 v{v}, 16, v{tmp}"]

def gemm_body(nst, bop, fill, raddr):
    n = 24 * nst
    for i in range(n):
        st, w = divmod(i, 24)
        tile, ks = divmod(w, 12)
        j = (i + D) % n
        st2, w2 = divmod(j, 24)
        t2, ks2 = divmod(w2, 12)
        a, off = raddr(st2, t2)
        emit_list(tr_reads((i + D) % R, a, off + ks2 * 2048, 512))
        if i % 2 == 0: e(f"s_waitcnt lgkmcnt({2*D-2})")
        acc = vr(ACC[tile], 16)
        cc = "0" if (st == 0 and ks == 0) else acc
        e(f"v_mfma_f32_32x32x16_bf16 {acc}, {ar(FR+4*(i%R),4)}, {bop(12*st+ks)}, {cc}")
        emit_list(fill.get(i, []))

def add(fill, slot, ins):
    fill.setdefault(slot, []).extend(ins)

class Sched:
    def __init__(self, n):
        self.n = n; self.fill = {}; self.load = [0] * n
    def cap(self, i): return 3 if i % 2 == 0 else 2
    def put(self, slot, ins, cost=None):
        slot %= self.n
        add(self.fill, slot, ins)
        self.load[slot] += len(ins) if cost is None else cost
    def seq(self, lo, hi, groups):
        over = 0
        while True:
            ld = list(self.load); pos = []; i = lo; ok = True
            for g in groups:
                while i <= hi and ld[i % self.n] + len(g) > self.cap(i) + over and ld[i % self.n] > 0: i += 1
                if i > hi: ok = False; break
                pos.append(i); ld[i % self.n] += len(g)
            if ok: break
            over += 1
        for g, i in zip(groups, pos): self.put(i, g)
        return pos[-1]
    def vmwait(self, bar_slot, p5_slot_back):
        cnt = 0
        for a in range(p5_slot_back + 1, bar_slot + 1):
            cnt += sum(1 for x in self.fill.get(a % self.n, []) if x.startswith("buffer_"))
        return cnt

BAR = 9
def bars(S, nst, w):
    for st in range(nst):
        b = 24 * st
        n = S.vmwait(b + BAR, b - 72 + BAR + 1 + w + 20 - 24)
        if NODMA: n = 63
        S.put(b + BAR, [f"s_waitcnt vmcnt({n})", "s_barrier"])

RARE = []
def phase1(att, w):
    tag = f"{'a' if att else 'f'}{w}"
    S = Sched(72)
    for st in range(3):
        b = 24 * st
        for p in range(6):
            sl = b + BAR + 1 + w + 4 * p
            if p in (0, 4):
                r, k = [(sMB1, 2 * SLOT), (sMB0, 0), (sMB0, SLOT)][st]
                if sl - 1 >= 72: r = sMB1 if r == sMB0 else sMB0
                S.put(sl - 1, [f"s_add_u32 m0, s{r}, {k + w*6144 + (4096 if p == 4 else 0)}"])
            S.put(sl, dma_ld(p), cost=3)
        S.put(b + BAR + 1 + w + 21, [f"s_add_u32 s{sSOFF}, s{sSOFF}, s{sINC+st}"])
    d2 = [x for x in range(14, 30) if (x - (BAR + 1 + w)) % 4 == 2]
    S.put(d2[0], [f"buffer_load_dword a63, v{vPF}, {sr(sPF,4)}, s{sPFO} offen"], cost=3)
    S.seq(d2[0] + 1, 60, [[f"s_add_u32 s{sPFO}, s{sPFO}, {PFN*128}"],
                          [f"s_cmp_ge_u32 s{sG}, {42 // PFN - 1}", f"s_cselect_b32 s{sPF+2}, 0, s{sPF+2}"]])
    bars(S, 3, w)
    S.seq(36, 60, [[f"v_xor_b32 v{vA01}, v{vMASKA}, v{vA01}"]])
    S.seq(42, 70, [[f"v_xor_b32 v{vB01}, {TOG}, v{vB01}"]])
    S.seq(54, 71, [[f"v_xor_b32 v{vA2}, {TOG}, v{vA2}"]])
    S.seq(66, 71, [[f"v_xor_b32 v{vB2}, {TOG}, v{vB2}"]])
    S.put(71, [f"s_xor_b32 s{sMB0}, s{sMB0}, {TOG}", f"s_xor_b32 s{sMB1}, s{sMB1}, {TOG}",
               f"s_add_u32 s{sG}, s{sG}, 1", f"s_cmp_lt_u32 s{sG}, {7 if att else 6}"])
    sw = 32 + w
    if att:
        S.put(sw, [f"s_cmp_ge_u32 s{sG}, 5", f"s_cselect_b32 s{sSRD+2}, 0, s{sSRD+2}"])
        dl = att_delta()
        S.seq(12, 28, [[x] for x in dl])
        for p in range(6):
            lo = BAR + 1 + w + 4 * p + 1
            S.seq(max(lo, 29), 24 + BAR + w + 4 * p, [[f"v_add_u32 v{vD+p}, v{vD+p}, v{vS}"]])
    else:
        S.put(sw, [f"s_cmp_ge_u32 s{sG}, 4", f"s_cbranch_scc1 Lsw_{tag}", f"Lswr_{tag}:"], cost=2)
        r = [f"Lsw_{tag}:", f"s_cmp_eq_u32 s{sG}, 4", f"s_cbranch_scc0 Lsw5_{tag}",
             f"s_mov_b32 s{sSRD}, s{kw2}", f"s_and_b32 s{sSRD+1}, s{kw2+1}, 0xffff",
             f"s_mov_b32 s{sSRD+2}, {0 if NOW else 4608*1152}", f"s_mul_i32 s{sSOFF}, s{sJOB}, {384*1152}",
             f"s_mov_b32 s{sINC}, {192*1152}", f"s_mov_b32 s{sINC+1}, {192*1152}", f"s_mov_b32 s{sINC+2}, {(128-192*1152) & 0xffffffff}"]
        r += [f"v_mov_b32 v{vD+p}, v{vD2+p}" for p in range(6)]
        r += [f"s_branch Lswr_{tag}", f"Lsw5_{tag}:",
              f"s_mov_b32 s{sINC+2}, {192*1152}", f"s_mov_b32 s{sINC+1}, {(128-192*1152) & 0xffffffff}",
              f"v_xor_b32 v{vMASKA}, v{vA01}, v{vBASE_G2}", f"s_branch Lswr_{tag}"]
        RARE.extend(r)
    def idxblk(tile):
        o = [f"s_set_gpr_idx_on s{sIDX}, 0x8", "s_nop 0"]
        for i in range(8):
            if att: o.append(f"v_cvt_pk_bf16_f32 v{H+8*tile+i}, v{ACC[tile]+2*i}, v{ACC[tile]+2*i+1}")
            else: o.append(f"v_pk_max_i16 v{H+8*tile+i}, v{PK[tile]+i}, 0")
        o.append("s_set_gpr_idx_off")
        return o
    def pre(slot, ins):
        S.fill[slot % 72] = ins + S.fill.get(slot % 72, []); S.load[slot % 72] += len(ins)
    if att:
        S.seq(61, 68, [[f"v_mul_f32 v{ACC[0]+i}, v{ACC[0]+i}, v{vRSTD}"] for i in range(16)])
        sl = [x for x in (71, 70, 69) if (x - (BAR + 1 + w)) % 4 != 0][0]
        k = SLOT + (4096 if sl >= 48 + BAR + w + 16 else 0)
        pre(sl, idxblk(0) + [f"s_add_u32 m0, s{sMB0}, {k + w*6144}"])
        S.seq(1, 8, [[f"v_mul_f32 v{ACC[1]+i}, v{ACC[1]+i}, v{vRSTD}"] for i in range(16)])
        sl = [x for x in (11, 10) if (x - (BAR + 1 + w)) % 4 != 0][0]
        fix = [f"s_add_u32 m0, s{sMB1}, {2*SLOT + w*6144}"] if sl >= BAR + w else []
        S.put(sl, idxblk(1) + fix + [f"s_add_u32 s{sIDX}, s{sIDX}, s{sIDX+1}", f"s_mov_b32 s{sIDX+1}, 16"])
        if w == 3:
            S.seq(40, 44, [[f"s_cmp_ge_u32 s{sG}, 5", f"s_cbranch_scc1 Lpub", "Lpubr:"]])
    else:
        S.seq(61, 71, [[f"v_cvt_pk_bf16_f32 v{PK[0]+i}, v{ACC[0]+2*i}, v{ACC[0]+2*i+1}"] for i in range(8)])
        S.seq(1, 11, [[f"v_cvt_pk_bf16_f32 v{PK[1]+i}, v{ACC[1]+2*i}, v{ACC[1]+2*i+1}"] for i in range(8)])
        pre(BAR + w + 16, idxblk(0))
        pre(24 + BAR + w + 16, idxblk(1) + [f"s_add_u32 s{sIDX}, s{sIDX}, s{sIDX+1}", f"s_mov_b32 s{sIDX+1}, 16"])
    e(".p2align 6")
    lab(f"Lp1_{tag}")
    gemm_body(3, xop, S.fill, lambda st, t: ([vA01, vB01][t], st * SLOT) if st < 2 else ([vA2, vB2][t], 0))
    e(f"s_cbranch_scc1 Lp1_{tag}")

def phase2(w):
    S = Sched(48)
    vA, vB, vB0 = vA01, vB01, vA2
    for st in range(2):
        b = 24 * st
        for p in range(6):
            sl = b + BAR + 1 + w + 4 * p
            if p in (0, 4):
                r, k = [(sMB1, SLOT), (sMB0, 0)][st]
                if sl - 1 >= 48: r = sMB1
                S.put(sl - 1, [f"s_add_u32 m0, s{r}, {k + w*6144 + (4096 if p == 4 else 0)}"])
            S.put(sl, dma_ld(p), cost=3)
        inc = [128 - 192 * 1152, 192 * 1152][st]
        S.put(b + BAR + 1 + w + 21, [f"s_add_u32 s{sSOFF}, s{sSOFF}, {inc & 0xffffffff}"])
    S.put(32 + w, [f"s_cmp_ge_u32 s{sG}, 6", f"s_cselect_b32 s{sSRD+2}, 0, s{sSRD+2}"])
    st_ = lambda r, so, off: [f"buffer_store_dwordx4 {vr(r,4)}, v{vST}, {sr(sWS,4)}, s{so} offen offset:{off} sc0 sc1"]
    d0 = (BAR + 1 + w) % 4
    ssl = lambda lo: [x for x in range(lo, lo + 8) if (x - d0) % 4 == 2]
    a0, a1 = ssl(2); b0, b1 = ssl(14)
    S.put(a0, st_(PK[0], sT2, 0), cost=3); S.put(a1, st_(PK[0] + 4, sT2, 1024), cost=3)
    S.put(b0, st_(PK[1], sT2, 2048), cost=3); S.put(b1, st_(PK[1] + 4, sT2, 3072), cost=3)
    bars(S, 2, w)
    if w == 0:
        S.seq(10, 22, [[f"v_accvgpr_read_b32 v{vS+2}, a60"],
                       [f"v_cmp_eq_u32 vcc, 1, v{vS+2}"],
                       [f"s_cmp_eq_u32 s{sG}, 5", f"s_cselect_b32 s63, s62, {OOR}"],
                       [f"s_cmp_eq_u32 s{sG}, 8", "s_cselect_b32 s63, s62, s63"]])
        S.put(25, ["s_cmp_eq_u32 vcc_lo, -1", f"s_cselect_b32 s63, s63, {OOR}"])
        S.put(23, [f"s_cmp_eq_u32 s{sG}, 8", f"s_cselect_b32 s{sCUR+1}, 3, 1", f"v_mov_b32 v{vS}, s{sCUR+1}"])
        S.put(28, [f"buffer_store_dword v{vS}, v{vS+1}, {sr(sWS,4)}, s63 offen sc0 sc1"], cost=3)
    S.seq(37, 47, [[f"v_cvt_pk_bf16_f32 v{PK[0]+i}, v{ACC[0]+2*i}, v{ACC[0]+2*i+1}"] for i in range(8)])
    S.seq(1, 11, [[f"v_cvt_pk_bf16_f32 v{PK[1]+i}, v{ACC[1]+2*i}, v{ACC[1]+2*i+1}"] for i in range(8)])
    S.seq(24, 34, [[f"s_add_u32 s{sRD}, s{sRD}, {2*SLOT}", f"s_cmp_eq_u32 s{sRD}, {6*SLOT}", f"s_cselect_b32 s{sRD}, 0, s{sRD}"]])
    S.seq(35, 40, [[f"v_add_u32 v{vA}, s{sRD}, v{vBASE_G2}"]])
    S.seq(42, 46, [[f"v_add_u32 v{vB}, s{sRD}, v{vB0}"]])
    S.seq(24, 46, [[f"s_mov_b32 s{sT2}, s{sSTOFF}"], [f"s_add_u32 s{sSTOFF}, s{sSTOFF}, 4096"]])
    S.put(47, [f"s_mov_b32 s{sMB1}, s{sMB0}", f"s_mov_b32 s{sMB0}, s{sRD}",
               f"s_add_u32 s{sG}, s{sG}, 1", f"s_cmp_lt_u32 s{sG}, 9"])
    e(".p2align 6")
    lab(f"Lp2_{w}")
    gemm_body(2, lambda s_: vr(H + 4 * s_, 4), S.fill, lambda st, t: ([vA, vB][t], st * SLOT))
    e(f"s_cbranch_scc1 Lp2_{w}")

PSL = int(os.environ.get("PSL", "2"))
WOPF = int(os.environ.get("WOPF", "1"))
def signal(val, idx_sgpr):
    e(f"v_mov_b32 v{vS+2}, 0")
    e(f"v_mov_b32 v{vS+1}, {val}")
    e(f"v_cmp_eq_u32 vcc, 0, v{vLANE}")
    e(f"s_and_saveexec_b64 {sr(sEX,2)}, vcc")
    e(f"buffer_store_byte v{vS+1}, v{vS+2}, {sr(sDBG,4)}, s{idx_sgpr} offen sc0 sc1")
    e(f"s_mov_b64 exec, {sr(sEX,2)}")
    e("s_nop 3")

def ready_load():
    e(f"s_lshl_b32 s62, s{sRB}, 4")
    e(f"buffer_load_dword a60, off, {sr(sDBG,4)}, s62 sc0 sc1")

def ready_check(tag):
    e(f"v_accvgpr_read_b32 v{vS+2}, a60")
    e("s_nop 1")
    e(f"v_cmp_eq_u32 vcc, 1, v{vS+2}")
    e("s_nop 3")
    e("s_cmp_eq_u32 vcc_lo, -1")
    e(f"s_cbranch_scc1 Lrdy_{tag}")
    e(f"s_lshl_b32 s62, s{sRB}, 4")
    poll("r" + tag, 62, 1, "1", "1", vS - 1, 4)
    lab(f"Lrdy_{tag}")

def flag_regs():
    e(f"s_mul_i32 s62, s{sRB}, 1536")
    e(f"s_lshl_b32 s63, s{sJOB}, 2")
    e(f"s_add_u32 s62, s62, s63")
    e(f"s_add_u32 s62, s62, {FL_OFF}")
    e(f"v_lshlrev_b32 v{vS+1}, 7, v{vLANE}")
    e(f"v_mov_b32 v{vS+3}, {OOR}")
    e(f"v_cmp_gt_u32 vcc, 12, v{vLANE}")
    e("s_nop 1")
    e(f"v_cndmask_b32 v{vS+1}, v{vS+3}, v{vS+1}, vcc")

def wg_signal(tag, val):
    e("s_waitcnt vmcnt(0)")
    e("s_barrier")
    e(f"s_cmp_eq_u32 s{sWAVE}, 0")
    e(f"s_cbranch_scc0 Lnosig_{tag}")
    ready_check(tag)
    flag_regs()
    e(f"v_mov_b32 v{vS}, {val}")
    e(f"buffer_store_dword v{vS}, v{vS+1}, {sr(sWS,4)}, s62 offen sc0 sc1")
    lab(f"Lnosig_{tag}")

def poll(tag, idx_sgpr, nw, and_sgpr, cmp_sgpr, vt, slp, keep=False):
    e(f"s_mov_b32 s{sCUR+1}, 0x4000")
    lab(f"Lpoll_{tag}")
    ld = {1: "dword", 3: "dwordx3"}[nw]
    e(f"buffer_load_{ld} {vr(vt+1,nw) if nw>1 else 'v%d'%(vt+1)}, off, {sr(sDBG,4)}, s{idx_sgpr} sc0 sc1")
    e("s_waitcnt vmcnt(0)")
    if nw == 3:
        e(f"v_and_b32 v{vt+1}, v{vt+1}, v{vt+2}")
        e(f"v_and_b32 v{vt+1}, v{vt+1}, v{vt+3}")
        e("s_nop 1")
    e(f"v_readfirstlane_b32 s{sT2}, v{vt+1}")
    e("s_nop 3")
    e(f"s_and_b32 s{sT2}, s{sT2}, {and_sgpr}")
    e(f"s_cmp_eq_u32 s{sT2}, {cmp_sgpr}")
    e(f"s_cbranch_scc1 Lpollok_{tag}")
    e(f"s_sleep {slp}")
    e(f"s_sub_u32 s{sCUR+1}, s{sCUR+1}, 1")
    e(f"s_cbranch_scc0 Lpoll_{tag}")
    lab(f"Lpollok_{tag}")

def wg_poll(tag, bit, mask, vt, slp):
    e(f"s_cmp_eq_u32 s{sWAVE}, 0")
    e(f"s_cbranch_scc0 Lpollok_{tag}")
    e(f"s_mov_b32 s{sCUR+1}, 0x4000")
    lab(f"Lpoll_{tag}")
    e(f"buffer_load_dword v{vt+1}, v{vt}, {sr(sWS,4)}, s{sT3} offen sc0 sc1")
    e("s_waitcnt vmcnt(0)")
    e(f"v_and_b32 v{vt+1}, {bit}, v{vt+1}")
    e(f"v_cmp_ne_u32 vcc, 0, v{vt+1}")
    e("s_nop 3")
    e(f"s_and_b32 s{sT2}, vcc_lo, {mask}")
    e(f"s_cmp_eq_u32 s{sT2}, {mask}")
    e(f"s_cbranch_scc1 Lpollok_{tag}")
    e(f"s_sleep {slp}")
    e(f"s_sub_u32 s{sCUR+1}, s{sCUR+1}, 1")
    e(f"s_cbranch_scc0 Lpoll_{tag}")
    lab(f"Lpollok_{tag}")
    e("s_barrier")

def reduce_tail():
    sO = sPF
    P, XV, F = 80, 16, 28
    Sg = 52
    e(f"s_lshl_b32 s{sT0}, s{sRB}, 2")
    e(f"s_add_u32 s{sT0}, s{sT0}, s{sWAVE}")
    c("x/out offsets")
    e(f"s_mul_i32 s{sT0}, s{sT0}, {32*1152}")
    e(f"v_mul_u32_u24 v4, 1152, v{vM}")
    e(f"v_lshl_add_u32 v4, v{vHH}, 5, v4")
    for i in range(3):
        e(f"s_add_u32 s{sT2}, s{sJOB}, {12*i}")
        e(f"s_and_b32 s{sINC+i}, s{sT2}, 1")
        e(f"s_lshl_b32 s{sINC+i}, s{sINC+i}, 4")
        e(f"s_lshr_b32 s{sT2}, s{sT2}, 1")
        e(f"s_lshl_b32 s{sT2}, s{sT2}, 6")
        e(f"s_add_u32 s{sINC+i}, s{sINC+i}, s{sT2}")
        e(f"s_add_u32 s{sINC+i}, s{sINC+i}, s{sT0}")
    e(f"s_mov_b32 s{sO}, s{sK+12}")
    e(f"s_and_b32 s{sO+1}, s{sK+13}, 0xffff")
    e(f"s_mov_b32 s{sO+2}, {2048*1152}")
    e(f"s_mov_b32 s{sO+3}, 0x00020000")
    c("partial base = (rb*64 + wave)*36864 + job*3072")
    e(f"s_lshl_b32 s{sT0}, s{sRB}, 6")
    e(f"s_add_u32 s{sT0}, s{sT0}, s{sWAVE}")
    e(f"s_mul_i32 s{sSOFF}, s{sT0}, 36864")
    e(f"s_lshl_b32 s{sT0}, s{sJOB}, 10")
    e(f"s_add_u32 s{sSOFF}, s{sSOFF}, s{sT0}")
    wg_signal("f", 7)
    e(f"s_mul_i32 s{sT3}, s{sRB}, 12")
    e(f"s_add_u32 s{sT3}, s{sT3}, s{sJOB}")
    e(f"s_lshl_b32 s{sT3}, s{sT3}, 7")
    e(f"s_add_u32 s{sT3}, s{sT3}, {FL_OFF}")
    e(f"v_and_b32 v5, 15, v{vLANE}")
    e(f"v_lshlrev_b32 v5, 2, v5")
    for i in range(3):
        e(f"buffer_load_dwordx4 {vr(XV+4*i,4)}, v4, {sr(sX,4)}, s{sINC+i} offen")
    for i in range(48): e(f"v_mov_b32 v{F+i}, 0")
    stamp(8)
    def loads(n, base, i, j0):
        e(f"s_add_u32 s{sT0}, s{sSOFF}, {j0*PCHUNK + 12288*i}")
        for j in range(n):
            e(f"buffer_load_dwordx4 {vr(base+12*j+4*i,4)}, v{vST}, {sr(sWS,4)}, s{sT0} offen sc0 sc1")
            if j < n - 1: e(f"s_add_u32 s{sT0}, s{sT0}, {PCHUNK}")
    def accum(n, base, acc):
        for i3 in range(3):
            for j in range(n):
                e(f"s_waitcnt vmcnt({n*(2-i3) + n-1-j})")
                for i in range(4*i3, 4*i3+4):
                    e(f"v_dot2c_f32_bf16 v{acc+2*i}, s{sSELLO}, v{base+12*j+i}")
                    e(f"v_dot2c_f32_bf16 v{acc+2*i+1}, s{sSELHI}, v{base+12*j+i}")
    for i in range(3):
        wg_poll(f"f{i}", 1 << i, "0xfff", 5, 2)
        if i == 2: stamp(9)
        loads(12, P, i, 0)
    accum(12, P, F)
    e("s_nop 2")
    T = 80
    def rnd(b):
        for i in range(12): e(f"v_cvt_pk_bf16_f32 v{T+i}, v{b+2*i}, v{b+2*i+1}")
        for i in range(12):
            e(f"v_lshlrev_b32 v{b+2*i}, 16, v{T+i}")
            e(f"v_and_b32 v{b+2*i+1}, 0xffff0000, v{T+i}")
    for i in range(24): e(f"v_mul_f32 v{F+i}, v{F+i}, v{vRSTD}")
    rnd(F)
    c("g = silu(f)")
    for i in range(24): e(f"v_mul_f32 v{T+i}, 0xbfb8aa3b, v{F+i}")
    for i in range(24): e(f"v_exp_f32 v{T+i}, v{T+i}")
    for i in range(24): e(f"v_add_f32 v{T+i}, 1.0, v{T+i}")
    for i in range(24): e(f"v_rcp_f32 v{T+i}, v{T+i}")
    for i in range(24): e(f"v_mul_f32 v{F+i}, v{F+i}, v{T+i}")
    rnd(F)
    stamp(10)
    pads(True)
    wg_poll("a", 1, "0xf000", 5, PSL)
    stamp(11)
    for i in range(3): loads(4, 112, i, 12)
    accum(4, 112, Sg)
    e("s_nop 2")
    rnd(Sg)
    for i in range(24): e(f"v_mul_f32 v{F+i}, v{F+i}, v{Sg+i}")
    rnd(F)
    for i in range(12):
        e(f"v_lshlrev_b32 v{Sg+2*i}, 16, v{XV+i}")
        e(f"v_and_b32 v{Sg+2*i+1}, 0xffff0000, v{XV+i}")
    for i in range(24): e(f"v_add_f32 v{F+i}, v{F+i}, v{Sg+i}")
    for i in range(12): e(f"v_cvt_pk_bf16_f32 v{T+i}, v{F+2*i}, v{F+2*i+1}")
    for i in range(3):
        e(f"buffer_store_dwordx4 {vr(T+4*i,4)}, v4, {sr(sO,4)}, s{sINC+i} offen")

def k1():
    kn = NAME + "_kernel"
    L.append(f".globl {kn}\n.p2align 8\n.type {kn},@function")
    lab(kn)
    e("s_cmp_ge_u32 s2, 256")
    e("s_cbranch_scc1 Lend1")
    e(f"s_load_dwordx16 {sr(sK,16)}, s[0:1], 0")
    e(f"s_load_dwordx2 {sr(sK+16,2)}, s[0:1], 64")
    if PROF:
        for i in range(12): e(f"s_mov_b32 s{88+i}, 0")
    stamp(0, True)
    stamp(2)
    c("lane decode")
    e(f"v_and_b32 v{vLANE}, 63, v0")
    e(f"v_lshrrev_b32 v{vT}, 6, v0")
    e(f"v_and_b32 v{vM}, 31, v0")
    e(f"v_readfirstlane_b32 s{sWAVE}, v{vT}")
    e(f"v_bfe_u32 v{vHH}, v0, 5, 1")
    c("wg decode: xcd=wg%8, q=wg/8; jg=xcd%4; i=q%4; rb=(xcd/4)*8+q/4")
    e(f"s_and_b32 s{sT0}, s2, 3")
    e(f"s_bfe_u32 s{sT1}, s2, 0x20003")
    e(f"s_bfe_u32 s{sT2}, s2, 0x10002")
    e(f"s_lshr_b32 s{sT3}, s2, 5")
    e(f"s_lshl_b32 s{sRB}, s{sT2}, 3")
    e(f"s_add_u32 s{sRB}, s{sRB}, s{sT3}")
    e(f"s_mul_i32 s{sJOB}, s{sT0}, 3")
    e(f"s_add_u32 s{sJOB}, s{sJOB}, s{sT1}")
    e(f"s_add_u32 s{sT2}, s{sT0}, 12")
    e(f"s_cmp_eq_u32 s{sT1}, 3")
    e(f"s_cselect_b32 s{sJOB}, s{sT2}, s{sJOB}")
    e(f"s_cselect_b32 s{sATT}, 1, 0")
    e(f"s_mul_i32 s{sW6K}, s{sWAVE}, 6144")
    e(f"s_mov_b32 s{sONES}, 0x3f803f80")
    e(f"s_mov_b32 s{sSELLO}, 0x00003f80")
    e(f"s_mov_b32 s{sSELHI}, 0x3f800000")
    c("x dma voffsets: i=lane/8, j'=lane%8; key=(i>>1)|(par<<2); off=i*1152+((j'^key)*16)")
    e(f"v_lshrrev_b32 v{vT}, 3, v{vLANE}")
    e(f"v_and_b32 v{vT+1}, 7, v{vLANE}")
    e(f"v_lshrrev_b32 v{vT+2}, 1, v{vT}")
    e(f"v_xor_b32 v{vT+2}, v{vT+1}, v{vT+2}")
    e(f"v_mul_u32_u24 v{vT+3}, 1152, v{vT}")
    e(f"v_lshl_add_u32 v{vT+4}, v{vT+2}, 4, v{vT+3}")
    e(f"v_xor_b32 v{vT+5}, 64, v{vT+4}")
    e("s_waitcnt lgkmcnt(0)")
    c("SRDs")
    for (s, k, sz) in ((sX, kx, 2048*1152), (sWS, kws, WS_BYTES), (sDBG, kdbg, 256)):
        e(f"s_mov_b32 s{s}, s{k}")
        e(f"s_and_b32 s{s+1}, s{k+1}, 0xffff")
        e(f"s_mov_b32 s{s+2}, {sz}")
        e(f"s_mov_b32 s{s+3}, 0x00020000")
    c("job 0 (wave 0) clears the 12 flag lines of its row block first")
    e(f"s_mul_i32 s63, s{sRB}, 1536")
    e(f"s_add_u32 s63, s63, {FL_OFF}")
    e(f"s_lshl_b32 s62, s{sRB}, 4")
    e(f"s_add_u32 s{sT0}, s{sWAVE}, s{sJOB}")
    e(f"s_cmp_eq_u32 s{sT0}, 0")
    e(f"s_cselect_b32 s63, s63, {OOR}")
    e(f"s_cselect_b32 s62, s62, {OOR}")
    e(f"v_min_u32 v24, 47, v{vLANE}")
    e(f"v_and_b32 v25, 3, v24")
    e(f"v_lshrrev_b32 v24, 2, v24")
    e(f"v_lshlrev_b32 v24, 7, v24")
    e(f"v_lshl_add_u32 v24, v25, 4, v24")
    for i in range(4): e(f"v_mov_b32 v{vS+i}, 0")
    e(f"buffer_store_dwordx4 {vr(vS,4)}, v24, {sr(sWS,4)}, s63 offen sc0 sc1")
    c("x rows base")
    e(f"s_lshl_b32 s{sT0}, s{sRB}, 7")
    e(f"s_lshl_b32 s{sT1}, s{sWAVE}, 5")
    e(f"s_add_u32 s{sT0}, s{sT0}, s{sT1}")
    e(f"s_mul_i32 s{sT0}, s{sT0}, 1152")
    e(f"s_add_u32 s{sT1}, s{sT0}, {8*1152}")
    e(f"s_add_u32 s{sT2}, s{sT0}, {16*1152}")
    e(f"s_add_u32 s{sT3}, s{sT0}, {24*1152}")
    e(f"s_mul_i32 s{sCUR}, s{sWAVE}, 36864")
    for cg in range(9):
        for br in range(4):
            e(f"s_add_u32 m0, s{sCUR}, {(br*9+cg)*1024 - cg*128}")
            e("s_nop 0")
            e(f"buffer_load_dwordx4 v{vT+4+(br&1)}, {sr(sX,4)}, s{sT0+br} offen offset:{cg*128} lds")
    c("cache warm-up, chip-wide split: unit u = wg*4+wave, one dword per 128-B line")
    e(f"s_lshl_b32 s{sT0}, s2, 2")
    e(f"s_add_u32 s{sT0}, s{sT0}, s{sWAVE}")
    for (k_, sz_, n_) in ((kqkv, 576*3456, 16), (kw1, 576*9216, 41), (kwo, 576*1152, 6)):
        pf_srd(k_, sz_ if (n_ != 41 or PFW1 == 1) else 0)
        e(f"v_min_u32 v{vT}, {n_-1}, v{vLANE}")
        e(f"v_lshlrev_b32 v{vT}, 7, v{vT}")
        e(f"s_mul_i32 s{sT1}, s{sT0}, {n_*128}")
        e(f"buffer_load_dword a63, v{vT}, {sr(sPF,4)}, s{sT1} offen")
    pf_srd(kw2, 4608*1152)
    e(f"v_min_u32 v{vPF}, {PFN-1}, v{vLANE}")
    e(f"v_lshlrev_b32 v{vPF}, 7, v{vPF}")
    e(f"s_mul_i32 s{sPFO}, s{sT0}, {42*128}")
    L.append("@@WALK@@")
    c("x frag read addresses: base + (m/8)*9216 + (m%8)*128 + (((2q+hh)^key)*16), key=(m>>1)&7")
    e(f"v_lshrrev_b32 v{vT}, 3, v{vM}")
    e(f"v_mul_u32_u24 v{vT}, 9216, v{vT}")
    e(f"v_and_b32 v{vT+1}, 7, v{vM}")
    e(f"v_lshl_add_u32 v{vT}, v{vT+1}, 7, v{vT}")
    e(f"v_add_u32 v{vT}, s{sCUR}, v{vT}")
    e(f"v_bfe_u32 v{vT+1}, v{vM}, 1, 3")
    e(f"v_xor_b32 v{vT+1}, v{vT+1}, v{vHH}")
    for q in range(4):
        e(f"v_xor_b32 v{vT+2}, {2*q}, v{vT+1}")
        e(f"v_lshl_add_u32 v{vT+6+q}, v{vT+2}, 4, v{vT}")
    c("tr-read lane bases. g=lane/16: ch=g&1, hh=g>>1; r=(lane%16)/4, cc=lane%4")
    tr, tc, tch, trow, tsw = U+10, U+11, U+12, U+13, U+14
    e(f"v_bfe_u32 v{tr}, v{vLANE}, 2, 2")
    e(f"v_and_b32 v{tc}, 3, v{vLANE}")
    e(f"v_bfe_u32 v{tch}, v{vLANE}, 4, 1")
    e(f"v_lshl_add_u32 v{trow}, v{vHH}, 3, v{tr}")
    e(f"v_lshlrev_b32 v{trow}, 7, v{trow}")
    e(f"v_lshrrev_b32 v{tsw}, 1, v{tr}")
    vCOLP = U + 9
    c(" FFN gemm1: sw*64 + ch*32 + c*8")
    e(f"v_lshl_add_u32 v{vA01}, v{tsw}, 6, v{trow}")
    e(f"v_lshl_add_u32 v{vA01}, v{tch}, 5, v{vA01}")
    e(f"v_lshl_add_u32 v{vA01}, v{tc}, 3, v{vA01}")
    c(" gemm2 mapping: sw*64 + (c%2)*32 + ch*16 + (c/2)*8")
    e(f"v_and_b32 v{U+15}, 1, v{tc}")
    e(f"v_lshlrev_b32 v{vCOLP}, 6, v{tsw}")
    e(f"v_lshl_add_u32 v{vCOLP}, v{U+15}, 5, v{vCOLP}")
    e(f"v_lshl_add_u32 v{vCOLP}, v{tch}, 4, v{vCOLP}")
    e(f"v_lshrrev_b32 v{vT+2}, 1, v{tc}")
    e(f"v_lshl_add_u32 v{vCOLP}, v{vT+2}, 3, v{vCOLP}")
    e(f"v_add_u32 v{vBASE_G2}, v{vCOLP}, v{trow}")
    e(f"v_mul_u32_u24 v{vBASE_AG2}, 72, v{vHH}")
    e(f"v_add_u32 v{vBASE_AG2}, v{vBASE_AG2}, v{tr}")
    e(f"v_lshl_add_u32 v{vBASE_AG2}, v{vBASE_AG2}, 7, v{vCOLP}")
    c("dma lane decode")
    di, dj, dsw = U+10, U+11, U+12
    e(f"v_lshrrev_b32 v{di}, 3, v{vLANE}")
    e(f"v_and_b32 v{dj}, 7, v{vLANE}")
    e(f"v_bfe_u32 v{dsw}, v{di}, 1, 1")
    e(f"v_lshlrev_b32 v{U+13}, 2, v{dsw}")
    e(f"v_xor_b32 v{dj}, v{dj}, v{U+13}")
    e(f"v_lshlrev_b32 v{U+13}, 4, v{dj}")
    e(f"s_mul_i32 s{sT0}, s{sWAVE}, 48")
    e(f"v_add_u32 v{U+14}, s{sT0}, v{di}")
    e(f"v_mov_b32 v{vWO}, 0")
    for p_ in range(6): e(f"v_mov_b32 v{vD2+p_}, 0")
    e(f"s_cmp_eq_u32 s{sATT}, 1")
    e("s_cbranch_scc1 Lsetup_att")
    c("---- FFN setup")
    e(f"v_mul_u32_u24 v{U+14}, 9216, v{U+14}")
    e(f"v_add_u32 v{vD}, v{U+14}, v{U+13}")
    for p_ in range(1, 6): e(f"v_add_u32 v{vD+p_}, {p_*8*9216 - IMM[p_]}, v{vD}")
    c(" W2: row = 48w + 8*(i/4) + i%4")
    e(f"v_lshrrev_b32 v{U+14}, 2, v{di}")
    e(f"v_and_b32 v{U+15}, 3, v{di}")
    e(f"v_lshl_add_u32 v{U+14}, v{U+14}, 3, v{U+15}")
    e(f"v_add_u32 v{U+14}, s{sT0}, v{U+14}")
    e(f"v_mul_u32_u24 v{U+14}, 1152, v{U+14}")
    e(f"v_add_u32 v{vD2}, v{U+14}, v{U+13}")
    for p_ in range(1, 6): e(f"v_add_u32 v{vD2+p_}, {((p_//2)*16 + (p_%2)*4)*1152 - IMM[p_]}, v{vD2}")
    e(f"s_mov_b32 s{sSRD}, s{kw1}")
    e(f"s_and_b32 s{sSRD+1}, s{kw1+1}, 0xffff")
    e(f"s_mov_b32 s{sSRD+2}, {576*9216}")
    e(f"s_mul_i32 s{sSOFF}, s{sJOB}, 768")
    e(f"s_mov_b32 s{sINC}, {(128 - 2*192*9216) & 0xffffffff}")
    e(f"s_mov_b32 s{sINC+1}, {192*9216}")
    e(f"s_mov_b32 s{sINC+2}, {192*9216}")
    e(f"v_mov_b32 v{vS}, 0")
    e("s_branch Lsetup_done")
    lab("Lsetup_att")
    c("---- attention setup: ci = 9 + j/2 ; base = row*3456 + 16*(j%2) + 32*ci + 864")
    e(f"v_mov_b32 v{vA01}, v{vBASE_G2}")
    e(f"v_lshrrev_b32 v{U+15}, 1, v{dj}")
    e(f"v_add_u32 v{vCI}, 9, v{U+15}")
    e(f"v_lshlrev_b32 v{vCUR}, 5, v{vCI}")
    e(f"v_add_u32 v{vCUR}, 864, v{vCUR}")
    e(f"v_mul_u32_u24 v{U+14}, 3456, v{U+14}")
    e(f"v_add3_u32 v{vD}, v{U+14}, v{U+13}, 0")
    e(f"v_add_u32 v{vD}, 1152, v{vD}")
    for p_ in range(1, 6): e(f"v_add_u32 v{vD+p_}, {p_*8*3456 - IMM[p_]}, v{vD}")
    c(" Wo dma voffset: row=40w+i natural")
    e(f"s_mul_i32 s{sT1}, s{sWAVE}, 40")
    e(f"v_add_u32 v{U+14}, s{sT1}, v{di}")
    e(f"v_mul_u32_u24 v{U+14}, 1152, v{U+14}")
    e(f"v_add_u32 v{vWO}, v{U+14}, v{U+13}")
    e(f"s_mov_b32 s{sSRD}, s{kqkv}")
    e(f"s_and_b32 s{sSRD+1}, s{kqkv+1}, 0xffff")
    e(f"s_mov_b32 s{sSRD+2}, {576*3456}")
    e(f"s_sub_u32 s{sT1}, s{sJOB}, 12")
    e(f"s_mul_i32 s{sSOFF}, s{sT1}, 288")
    e(f"s_mov_b32 s{sINC}, {(- 2*192*3456) & 0xffffffff}")
    e(f"s_mov_b32 s{sINC+1}, {192*3456}")
    e(f"s_mov_b32 s{sINC+2}, {192*3456}")
    emit_list(att_delta())
    lab("Lsetup_done")
    e(f"s_mov_b32 s{sSRD+3}, 0x00020000")
    if NOW: e(f"s_mov_b32 s{sSRD+2}, 0")
    e(f"s_mov_b32 s{sMB0}, 0")
    e(f"s_mov_b32 s{sMB1}, {TOG}")
    e(f"s_mov_b32 s{sG}, 0")
    e(f"s_mov_b32 s{sIDX}, 0")
    e(f"s_mov_b32 s{sIDX+1}, 0")
    e(f"v_xor_b32 v{vB01}, 64, v{vA01}")
    e(f"v_add_u32 v{vA2}, {2*SLOT}, v{vA01}")
    e(f"v_add_u32 v{vB2}, {2*SLOT}, v{vB01}")
    e(f"v_mov_b32 v{vMASKA}, {TOG}")
    c("partial store: voffset = lane*16 ; soffset base = ((rb*16+job)*4+wave)*36864")
    e(f"v_lshlrev_b32 v{vST}, 4, v{vLANE}")
    e(f"s_lshl_b32 s{sT0}, s{sRB}, 4")
    e(f"s_add_u32 s{sT0}, s{sT0}, s{sJOB}")
    e(f"s_lshl_b32 s{sT0}, s{sT0}, 2")
    e(f"s_add_u32 s{sT0}, s{sT0}, s{sWAVE}")
    e(f"s_mul_i32 s{sSTOFF}, s{sT0}, 36864")
    if NOST: e(f"s_mov_b32 s{sSTOFF}, 0x40000000")
    c("---- read x frags, row sums (sum of squares only where rstd is needed)")
    s0 = 16
    for i in range(8): e(f"v_mov_b32 v{s0+i}, 0")
    def sums(cg):
        for i in range(16):
            e(f"v_dot2c_f32_bf16 v{s0+i%4}, s{sONES}, v{X+16*cg+i}")
        for i in range(16):
            e(f"v_dot2c_f32_bf16 v{s0+4+i%4}, v{X+16*cg+i}, v{X+16*cg+i}")
    e(f"s_cmp_eq_u32 s{sATT}, 1")
    for cg in range(9):
        e(f"s_waitcnt vmcnt({39 - 4*(cg+1)})")
        for q in range(4):
            s_ = 4 * cg + q
            e(f"ds_read_b128 {vr(X+4*s_,4)}, v{vT+6+q} offset:{cg*1024}")
        if cg > 0:
            e("s_waitcnt lgkmcnt(4)")
            sums(cg - 1)
        if PFW1 >= 2 and cg == 8:
            pf_srd(kw1, 576*9216, sPF2)
            e(f"v_min_u32 v{vT}, 40, v{vLANE}")
            e(f"v_lshlrev_b32 v{vT}, 7, v{vT}")
            e(f"s_lshl_b32 s{sT0}, s2, 2")
            e(f"s_add_u32 s{sT0}, s{sT0}, s{sWAVE}")
            e(f"s_mul_i32 s{sT1}, s{sT0}, {41*128}")
            e(f"buffer_load_dword a63, v{vT}, {sr(sPF2,4)}, s{sT1} offen")
            e(f"s_cmp_eq_u32 s{sATT}, 1")
    e("s_waitcnt lgkmcnt(0)")
    e("s_barrier")
    stamp(3)
    sums(8)
    prime = []
    for t_ in range(5):
        for p_ in range(6 if t_ < 4 else 3):
            o = []
            if p_ in (0, 4):
                o += [f"s_add_u32 m0, s{sW6K}, {t_*SLOT + (4096 if p_ == 4 else 0)}", "s_nop 0"]
            o += dma_ld(p_)
            if t_ == 2: o += [f"v_add_u32 v{vD+p_}, v{vD+p_}, v{vS}"]
            if t_ < 4 and p_ == 5: o += [f"s_add_u32 s{sSOFF}, s{sSOFF}, s{sINC + (0 if t_ == 2 else 1)}"]
            prime.append(o)
    for _ in range(3): emit_list(prime.pop(0))
    c("---- LN")
    q0 = s0 + 4
    for b_ in (s0, q0):
        e(f"v_add_f32 v{b_}, v{b_}, v{b_+1}")
        e(f"v_add_f32 v{b_+2}, v{b_+2}, v{b_+3}")
        e(f"v_add_f32 v{b_}, v{b_}, v{b_+2}")
        e(f"v_mov_b32 v{b_+1}, v{b_}")
        e("s_nop 1")
        e(f"v_permlane32_swap_b32 v{b_}, v{b_+1}")
        e("s_nop 1")
        e(f"v_add_f32 v{b_}, v{b_}, v{b_+1}")
        e(f"v_mul_f32 v{b_}, {1.0/576:.9e}, v{b_}")
    e(f"v_fma_f32 v{q0}, -v{s0}, v{s0}, v{q0}")
    emit_list(round_bf16(s0, s0+2))
    e(f"v_sub_f32 v{s0+2}, 0, v{s0}")
    negm = s0 + 2
    e(f"v_max_f32 v{q0}, 0, v{q0}")
    emit_list(round_bf16(q0, q0+1))
    e(f"v_add_f32 v{q0}, 0x3727c5ac, v{q0}")
    emit_list(round_bf16(q0, q0+1))
    e(f"v_sqrt_f32 v{q0}, v{q0}")
    e("s_nop 0")
    emit_list(round_bf16(q0, q0+1))
    e(f"v_rcp_f32 v{vRSTD}, v{q0}")
    t = 32
    for b in range(0, 152, 4):
        tb = t + (8 if (b // 4) % 2 else 0)
        if b < 144:
            for i in range(4):
                e(f"v_dot2_f32_bf16 v{tb+2*i}, v{X+b+i}, s{sSELLO}, v{negm}")
                e(f"v_dot2_f32_bf16 v{tb+2*i+1}, v{X+b+i}, s{sSELHI}, v{negm}")
        else: e("s_nop 2")
        if 0 < b <= 144:
            pb = t + (8 if (b // 4 - 1) % 2 else 0)
            for i in range(4):
                e(f"v_cvt_pk_bf16_f32 v{X+b-4+i}, v{pb+2*i}, v{pb+2*i+1}")
        if b > 4 and b - 8 < 4 * NXA:
            for i in range(4): e(f"v_accvgpr_write_b32 a{XA+b-8+i}, v{X+b-8+i}")
        if prime and (b // 4) % 3 != 2: emit_list(prime.pop(0))
    while prime: emit_list(prime.pop(0))
    stamp(4)
    c("stage 0 landed?")
    e("s_waitcnt vmcnt(21)")
    e("s_barrier")
    stamp(5)
    for i in range(D):
        emit_list(tr_reads(i % R, vA01, i * 2048, 512))
    e(f"s_cmp_lt_u32 s{sWAVE}, 2")
    e("s_cbranch_scc0 Lno3")
    emit_list(dma_ld(3))
    lab("Lno3")
    c("flag line cleared long ago (in-order vmcnt) -> announce; other waves: out of range")
    e(f"v_lshlrev_b32 v{vS+1}, 8, v{vLANE}")
    e(f"v_mov_b32 v{vS+2}, 1")
    e(f"buffer_store_byte v{vS+2}, v{vS+1}, {sr(sDBG,4)}, s62 offen sc0 sc1")
    e(f"s_lshl_b32 s{sT0}, s{sATT}, 2")
    e(f"s_add_u32 s{sT0}, s{sT0}, s{sWAVE}")
    for k_ in range(1, 8):
        e(f"s_cmp_eq_u32 s{sT0}, {k_}")
        e(f"s_cbranch_scc1 Lp1_{'a' if k_ >= 4 else 'f'}{k_ % 4}")
    for w in range(4):
        c(f"================ FFN wave {w}")
        phase1(False, w)
        stamp(6)
        e(f"s_mov_b32 s{sT2}, 0x40000000")
        for i in range(8): e(f"v_pk_max_i16 v{H+80+i}, v{PK[0]+i}, 0")
        for i in range(4):
            if w == 0 and i == 0: ready_load()
            else: e(f"buffer_store_dwordx4 {vr(PK[0],4)}, v{vST}, {sr(sWS,4)}, s{sT2} offen")
        e(f"v_xor_b32 v{vA2}, 64, v{vBASE_G2}")
        e(f"v_xor_b32 v{vB01}, 64, v{vBASE_G2}")
        e(f"s_mov_b32 s{sG}, 0")
        e(f"s_mov_b32 s{sRD}, 0")
        e(f"s_mov_b32 s{sMB0}, 0")
        e(f"s_mov_b32 s{sMB1}, {4*SLOT}")
        e("s_nop 3")
        for i in range(8): e(f"v_cvt_pk_bf16_f32 v{PK[1]+i}, v{ACC[1]+2*i}, v{ACC[1]+2*i+1}")
        for i in range(8): e(f"v_pk_max_i16 v{H+88+i}, v{PK[1]+i}, 0")
        if w == 0: flag_regs()
        phase2(w)
        if w < 3: e("s_branch Lffn_end")
    lab("Lffn_end")
    st_ = lambda r, off: e(f"buffer_store_dwordx4 {vr(r,4)}, v{vST}, {sr(sWS,4)}, s{sT2} offen offset:{off} sc0 sc1")
    st_(PK[0], 0); st_(PK[0] + 4, 1024)
    e("s_nop 7")
    e("s_nop 3")
    for i in range(8):
        e(f"v_cvt_pk_bf16_f32 v{PK[1]+i}, v{ACC[1]+2*i}, v{ACC[1]+2*i+1}")
    st_(PK[1], 2048); st_(PK[1] + 4, 3072)
    stamp(7)
    reduce_tail()
    pads(False)
    if PROF: e("s_waitcnt vmcnt(0)")
    prof_out()
    e("s_endpgm")
    emit_list(RARE)
    c("halo publish / flag (attention wave 3)")
    lab("Lpub")
    e(f"s_lshl_b32 s{sT0}, s{sRB}, 2")
    e(f"s_add_u32 s{sT0}, s{sT0}, s{sJOB}")
    e(f"s_sub_u32 s{sT0}, s{sT0}, 12")
    e(f"s_cmp_eq_u32 s{sG}, 5")
    e("s_cbranch_scc0 Lflag")
    e(f"s_mul_i32 s{sT0}, s{sT0}, 9216")
    e(f"s_add_u32 s{sT0}, s{sT0}, {HALO_OFF}")
    e(f"v_and_b32 v{vS+2}, 15, v{vM}")
    e(f"v_mul_u32_u24 v{vS+2}, 576, v{vS+2}")
    e(f"v_lshl_add_u32 v{vS+2}, v{vHH}, 5, v{vS+2}")
    e(f"v_cmp_lt_u32 vcc, 15, v{vM}")
    e(f"s_and_saveexec_b64 {sr(sEX,2)}, vcc")
    for u in range(18):
        e(f"buffer_store_dwordx4 {vr(H+4*u,4)}, v{vS+2}, {sr(sWS,4)}, s{sT0} offen offset:{64*(u//2)+16*(u%2)} sc0 sc1")
    e(f"s_mov_b64 exec, {sr(sEX,2)}")
    e("s_nop 3")
    e("s_branch Lpubr")
    lab("Lflag")
    e("s_waitcnt vmcnt(16)")
    e(f"s_lshl_b32 s{sT0}, s{sRB}, 4")
    e(f"s_add_u32 s{sT0}, s{sT0}, s{sJOB}")
    signal(1, sT0)
    e("s_branch Lpubr")
    for w in range(4):
        c(f"================ attention wave {w}")
        phase1(True, w)
        if w < 3: e("s_branch Latt")
    attention()
    lab("Lend1")
    e("s_endpgm")
    walk()

def walk():
    n = PAD["n"]; W = []
    if n:
        W += ["s_lshr_b32 s82, s2, 3", "s_and_b32 s82, s82, 31", f"s_lshl_b32 s82, s82, 2", f"s_add_u32 s82, s82, s{sWAVE}",
              "s_and_b32 s83, s82, 7", "s_lshr_b32 s82, s82, 3", "s_mov_b64 exec, 0"]
        ng = (n + 7) // 8
        for g in range(ng): W += [f"s_cmp_eq_u32 s82, {g}", f"s_cbranch_scc1 Lwg{g}"]
        W += ["s_branch Lret"]
        for g in range(ng):
            W += [f"Lwg{g}:"]
            for k in range(8):
                if 8 * g + k < n: W += [f"s_cmp_eq_u32 s83, {k}", f"s_cbranch_scc1 Lpad{8*g+k}"]
            W += ["s_branch Lret"]
        W += ["Lret:", "s_mov_b64 exec, -1"]
    i = L.index("@@WALK@@")
    L[i:i+1] = [x if x.endswith(":") else "    " + x for x in W]

def wo_stage(j):
    o = []
    for p in range(5):
        o.append(f"s_add_u32 m0, s{sCUR}, {(j % 6) * SLOT + p * 1024}")
        o.append(f"s_add_u32 s{sT1}, s{sT3}, {p * 8 * 1152 + j * 128}")
        o.append(f"buffer_load_dwordx4 v{vWO}, {sr(sSRD,4)}, s{sT1} offen lds")
    return o

def attention():
    lab("Latt")
    pads(True)
    stamp(6)
    Q = 16
    QBASE, QSTR = 30720, 336
    e(f"s_mov_b32 s{sSRD}, s{kwo}")
    e(f"s_and_b32 s{sSRD+1}, s{kwo+1}, 0xffff")
    e(f"s_mov_b32 s{sSRD+2}, {0 if NOW else 576*1152}")
    e(f"s_mul_i32 s{sCUR}, s{sWAVE}, 5120")
    e(f"s_sub_u32 s{sT3}, s{sJOB}, 12")
    e(f"s_mul_i32 s{sT3}, s{sT3}, {144*1152}")
    wa = 192
    e(f"s_lshl_b32 s{sT0}, s{sWAVE}, 5")
    e("s_nop 7")
    e(f"v_add_u32 v{wa+2}, s{sT0}, v{vM}")
    e(f"v_mul_u32_u24 v{wa}, {KVSTR}, v{wa+2}")
    e(f"v_add_u32 v{wa}, {KVBASE + 16*KVSTR}, v{wa}")
    e(f"v_lshl_add_u32 v{wa+3}, v{vHH}, 5, v{wa}")
    e(f"v_mul_u32_u24 v{wa+4}, {QSTR}, v{wa+2}")
    e(f"v_add_u32 v{wa+4}, {QBASE}, v{wa+4}")
    e(f"v_lshl_add_u32 v{wa+5}, v{vHH}, 5, v{wa+4}")
    e(f"v_mul_u32_u24 v{wa+1}, 144, v{vHH}")
    e(f"v_add_u32 v{wa}, v{wa}, v{wa+1}")
    e(f"v_add_u32 v{wa+4}, v{wa+4}, v{wa+1}")
    e(f"v_lshlrev_b32 v{wa+1}, 1, v{wa+1}")
    for i in range(16): e(f"v_mul_f32 v{ACC[1]+i}, v{ACC[1]+i}, v{vRSTD}")
    for i in range(8): e(f"v_cvt_pk_bf16_f32 v{H+104+i}, v{ACC[1]+2*i}, v{ACC[1]+2*i+1}")
    e("s_waitcnt vmcnt(0) lgkmcnt(0)")
    e("s_barrier")
    c("Wo stage 0")
    emit_list(wo_stage(0))
    c("write q,k,v to LDS")
    for u in range(10):
        e(f"ds_write_b128 v{wa+5}, {vr(H+72+4*u,4)} offset:{64*(u//2)+16*(u%2)}")
    for u in range(18):
        e(f"ds_write_b128 v{wa+3}, {vr(H+4*u,4)} offset:{64*(u//2)+16*(u%2)}")
    for i in range(9):
        e(f"ds_read_b128 {vr(Q+4*i,4)}, v{wa+4} offset:{16*i}")
    kva = vT
    e("s_waitcnt lgkmcnt(9)")
    e(f"v_mov_b32 v{kva}, v{wa}")
    e(f"v_mov_b32 v{kva+1}, v{wa+1}")
    c("halo (wave 0)")
    e(f"s_cmp_eq_u32 s{sWAVE}, 0")
    e("s_cbranch_scc0 Lhalo_done")
    HB = 112
    e(f"v_and_b32 v{kva+2}, 15, v{vM}")
    e(f"v_lshrrev_b32 v{kva+3}, 4, v{vM}")
    e(f"v_mul_u32_u24 v{kva+3}, 144, v{kva+3}")
    e(f"v_add_u32 v{kva+3}, v{kva+3}, v{kva+1}")
    e(f"v_mul_u32_u24 v{kva+4}, 576, v{kva+2}")
    e(f"v_add_u32 v{kva+4}, v{kva+4}, v{kva+3}")
    e(f"v_mul_u32_u24 v{kva+5}, {KVSTR}, v{kva+2}")
    e(f"v_add_u32 v{kva+5}, v{kva+5}, v{kva+3}")
    e(f"v_add_u32 v{kva+5}, {KVBASE}, v{kva+5}")
    for i in range(36): e(f"v_mov_b32 v{HB+i}, 0")
    e(f"s_cmp_eq_u32 s{sRB}, 0")
    e("s_cbranch_scc1 Lhalo_wr")
    e(f"s_lshl_b32 s{sT0}, s{sRB}, 2")
    e(f"s_add_u32 s{sT0}, s{sT0}, s{sJOB}")
    e(f"s_sub_u32 s{sT0}, s{sT0}, 16")
    e(f"s_lshl_b32 s{sT1}, s{sRB}, 4")
    e(f"s_sub_u32 s{sT1}, s{sT1}, 4")
    e(f"s_lshl_b32 s62, s{sJOB}, 3")
    e(f"s_lshl_b32 s62, 1, s62")
    poll("h", sT1, 1, "s62", "s62", kva+6, 2)
    e(f"s_mul_i32 s{sT0}, s{sT0}, 9216")
    e(f"s_add_u32 s{sT0}, s{sT0}, {HALO_OFF}")
    for i in range(9):
        e(f"buffer_load_dwordx4 {vr(HB+4*i,4)}, v{kva+4}, {sr(sWS,4)}, s{sT0} offen offset:{16*i} sc0 sc1")
    e("s_waitcnt vmcnt(0)")
    lab("Lhalo_wr")
    for i in range(9):
        e(f"ds_write_b128 v{kva+5}, {vr(HB+4*i,4)} offset:{16*i}")
    lab("Lhalo_done")
    e("s_waitcnt lgkmcnt(0)")
    e("s_barrier")
    stamp(7)
    for j in range(1, 3): emit_list(wo_stage(j))
    if WOPF:
        c("pull Wo stages 3..8 of this job towards L2")
        e(f"v_min_u32 v{kva+2}, 35, v{vLANE}")
        e(f"s_mul_i32 s{sT0}, s{sWAVE}, 36")
        e(f"v_add_u32 v{kva+2}, s{sT0}, v{kva+2}")
        e(f"v_mul_u32_u24 v{kva+2}, 1152, v{kva+2}")
        for i in range(6):
            e(f"buffer_load_dword a63, v{kva+2}, {sr(sSRD,4)}, s{sT3} offen offset:{384+128*i}")
    e(f"s_cmp_eq_u32 s{sWAVE}, 0")
    e("s_cbranch_scc0 Lnordl")
    ready_load()
    lab("Lnordl")
    c("QK^T")
    LG = 52
    KB = [112, 148]
    e(f"v_subrev_u32 v{kva}, {14*KVSTR}, v{kva}")
    for i in range(32): e(f"v_mov_b32 v{LG+i}, 0")
    def rd(w, buf, voff):
        for i in range(9):
            e(f"ds_read_b128 {vr(KB[buf]+4*i,4)}, v{kva} offset:{(14-2*w)*KVSTR + voff + 16*i}")
    rd(0, 0, 0)
    for w in range(8):
        if w < 7: rd(w + 1, (w + 1) % 2, 0)
        else: rd(0, 0, 288)
        e("s_waitcnt lgkmcnt(9)")
        b = KB[w % 2]
        for i in range(9):
            for h in range(4):
                e(f"v_dot2c_f32_bf16 v{LG+8*h+w}, v{Q+9*h+i}, v{b+9*h+i}")
    c("mask + softmax")
    e(f"s_lshl_b32 s{sT0}, s{sRB}, 7")
    e(f"s_lshl_b32 s{sT1}, s{sWAVE}, 5")
    e(f"s_add_u32 s{sT0}, s{sT0}, s{sT1}")
    e(f"v_add_u32 v{kva+2}, s{sT0}, v{vM}")
    e(f"v_mov_b32 v{kva+3}, 0xce6e6b28")
    sc = (18 ** -0.5)
    for i in range(32):
        emit_list(round_bf16(LG+i, kva+4+(i % 4)))
    import struct
    for i in range(32):
        e(f"v_mul_f32 v{LG+i}, {sc:.9e}, v{LG+i}")
    for i in range(32):
        emit_list(round_bf16(LG+i, kva+4+(i % 4)))
    for w in range(1, 8):
        e(f"v_cmp_le_u32 vcc, {2*w}, v{kva+2}")
        e("s_nop 1")
        for h in range(4):
            e(f"v_cndmask_b32 v{LG+8*h+w}, v{kva+3}, v{LG+8*h+w}, vcc")
    MX = kva + 4
    for h in range(4):
        b = LG + 8 * h
        e(f"v_max3_f32 v{MX+h}, v{b}, v{b+1}, v{b+2}")
        e(f"v_max3_f32 v{MX+h}, v{MX+h}, v{b+3}, v{b+4}")
        e(f"v_max3_f32 v{MX+h}, v{MX+h}, v{b+5}, v{b+6}")
        e(f"v_max_f32 v{MX+h}, v{MX+h}, v{b+7}")
    for h in range(4):
        for w in range(8):
            e(f"v_sub_f32 v{LG+8*h+w}, v{LG+8*h+w}, v{MX+h}")
    for i in range(32): e(f"v_mul_f32 v{LG+i}, 0x3fb8aa3b, v{LG+i}")
    for i in range(32): e(f"v_exp_f32 v{LG+i}, v{LG+i}")
    e("s_nop 0")
    for h in range(4):
        b = LG + 8 * h
        e(f"v_add_f32 v{MX+h}, v{b}, v{b+1}")
    for w in range(2, 8):
        for h in range(4):
            e(f"v_add_f32 v{MX+h}, v{MX+h}, v{LG+8*h+w}")
    for h in range(4): e(f"v_rcp_f32 v{MX+h}, v{MX+h}")
    e("s_nop 0")
    for h in range(4):
        for w in range(8):
            e(f"v_mul_f32 v{LG+8*h+w}, v{LG+8*h+w}, v{MX+h}")
    PLO, PHI = LG, 16
    for i in range(32):
        e(f"v_cvt_pk_bf16_f32 v{PLO+i}, v{LG+i}, 0")
    for i in range(32):
        e(f"v_lshlrev_b32 v{PHI+i}, 16, v{PLO+i}")
    O = 184
    for i in range(72): e(f"v_mov_b32 v{O+i}, 0")
    c("PV")
    for w in range(8):
        if w < 7:
            rd(w + 1, (w + 1) % 2, 288)
            e("s_waitcnt lgkmcnt(9)")
        else:
            e("s_waitcnt lgkmcnt(0)")
        b = KB[w % 2]
        for i in range(36):
            h = i // 9
            e(f"v_dot2c_f32_bf16 v{O+2*i}, v{b+i}, v{PLO+8*h+w}")
            e(f"v_dot2c_f32_bf16 v{O+2*i+1}, v{b+i}, v{PHI+8*h+w}")
    e("s_barrier")
    stamp(8)
    c("kv area free: Wo stages 3..4")
    for j in range(3, 5): emit_list(wo_stage(j))
    OP = 112
    for i in range(36):
        e(f"v_cvt_pk_bf16_f32 v{OP+i}, v{O+2*i}, v{O+2*i+1}")
    c("gemm2 (attention): loop over 9 stages x 18 slots")
    R2, D2 = 9, int(os.environ.get("D2", "7"))
    vA, vB = 148, 149
    sCS, sWR, sNX, sDO, sPREV, sCURO = sMB0, sMB1, sRD, sSOFF, sINC, sINC + 1
    e(f"v_mov_b32 v{vA}, v{vBASE_AG2}")
    e(f"v_xor_b32 v{vB}, 64, v{vBASE_AG2}")
    e(f"s_mov_b32 s{sG}, 0")
    e(f"s_mov_b32 s{sCS}, {5*SLOT}")
    e(f"s_mov_b32 s{sNX}, 0")
    e(f"s_add_u32 s{sDO}, s{sT3}, {4*128}")
    for p in range(1, 5): e(f"v_add_u32 v{149+p}, {p*9216 - (p%4)*1024}, v{vWO}")
    e(f"s_mov_b32 s{sPREV}, {OOR}")
    e(f"s_mov_b32 s{sCURO}, s{sSTOFF}")
    e("s_waitcnt vmcnt(10)")
    e("s_barrier")
    stamp(9)
    def rds(i):
        w = i % 18
        t, ks = divmod(w, 9)
        return tr_reads(i % R2, [vA, vB][t], ks * 1024, 512)
    for i in range(D2): emit_list(rds(i))
    def wst(k, so):
        e(f"buffer_store_dwordx4 {vr(PK[k//2]+4*(k%2),4)}, v{vST}, {sr(sWS,4)}, s{so} offen offset:{1024*k} sc0 sc1")
    for dma, lim, nv in ((True, 4, 27), (False, 9, 16)):
        pads(False)
        e(".p2align 6")
        lab(f"Lwo{lim}")
        for w in range(18):
            t, ks = divmod(w, 9)
            emit_list(rds(w + D2))
            if w % 2 == 0: e(f"s_waitcnt lgkmcnt({2*D2-2})")
            acc = vr(ACC[t], 16)
            e(f"v_mfma_f32_32x32x16_bf16 {acc}, {ar(FR+4*(w%R2),4)}, {vr(OP+4*ks,4)}, {'0' if ks == 0 else acc}")
            if w == 0:
                if dma: e(f"s_add_u32 s{sWR}, s{sCS}, s{sCUR}")
                e(f"s_mov_b32 s{sCS}, s{sNX}")
                if dma: e(f"s_add_u32 s{sDO}, s{sDO}, 128")
            if w == 1: e(f"s_add_u32 s{sNX}, s{sCS}, {SLOT}")
            if w == 3:
                e(f"s_cmp_eq_u32 s{sNX}, {6*SLOT}")
                e(f"s_cselect_b32 s{sNX}, 0, s{sNX}")
            if w == 6: e(f"v_add_u32 v{vA}, s{sNX}, v{vBASE_AG2}")
            if w == 10: e(f"v_xor_b32 v{vB}, 64, v{vA}")
            if w == 8:
                e(f"s_waitcnt vmcnt({nv})")
                e("s_barrier")
            if dma and w in (8, 16): e(f"s_add_u32 m0, s{sWR}, {4096 if w == 16 else 0}")
            if dma and w in (9, 11, 13, 15, 17):
                p = (w - 9) // 2
                e(f"buffer_load_dwordx4 v{149+p if p else vWO}, {sr(sSRD,4)}, s{sDO} offen offset:{(p%4)*1024} lds")
            cv = {2: (0, 1, 2), 4: (3, 4, 5), 6: (6, 7)}
            for tt, w0 in ((0, 10), (1, 0)):
                for i2 in cv.get(w - w0, ()):
                    e(f"v_cvt_pk_bf16_f32 v{PK[tt]+i2}, v{ACC[tt]+2*i2}, v{ACC[tt]+2*i2+1}")
            if w in (1, 3, 5, 7): wst(w // 2, sPREV)
            if w == 10:
                e(f"s_mov_b32 s{sPREV}, s{sCURO}")
                e(f"s_add_u32 s{sCURO}, s{sCURO}, 4096")
            if w == 17:
                e(f"s_add_u32 s{sG}, s{sG}, 1")
                e(f"s_cmp_lt_u32 s{sG}, {lim}")
        e(f"s_cbranch_scc1 Lwo{lim}")
        if dma: stamp(10)
    pads(True)
    wst(0, sPREV); wst(1, sPREV)
    e("s_nop 7")
    e("s_nop 7")
    for i2 in range(8):
        e(f"v_cvt_pk_bf16_f32 v{PK[1]+i2}, v{ACC[1]+2*i2}, v{ACC[1]+2*i2+1}")
    wst(2, sPREV); wst(3, sPREV)
    stamp(11)
    wg_signal("a", 1)
    pads(False)
    prof_out()
    e("s_endpgm")

def k2():
    kn = "k2_kernel"
    L.append(f".globl {kn}\n.p2align 8\n.type {kn},@function")
    lab(kn)
    e("s_cmp_ge_u32 s2, 576")
    e("s_cbranch_scc1 Lend2")
    e("s_load_dwordx2 s[4:5], s[0:1], 0")
    e("s_load_dwordx2 s[6:7], s[0:1], 48")
    e("s_load_dwordx2 s[8:9], s[0:1], 64")
    if PROF: e("s_memrealtime s[32:33]")
    e("v_lshrrev_b32 v1, 6, v0")
    e("v_and_b32 v2, 63, v0")
    e("v_readfirstlane_b32 s3, v1")
    c("rb = wg/36 ; wv = (wg%36)*4+wave")
    e("s_mul_i32 s10, s2, 1821")
    e("s_lshr_b32 s10, s10, 16")
    e("s_mul_i32 s11, s10, 36")
    e("s_sub_u32 s11, s2, s11")
    e("s_lshl_b32 s11, s11, 2")
    e("s_add_u32 s11, s11, s3")
    e("s_mul_i32 s24, s11, 1821")
    e("s_lshr_b32 s24, s24, 16")
    e("s_mul_i32 s25, s24, 36")
    e("s_sub_u32 s25, s11, s25")
    e("s_and_b32 s26, s25, 1")
    e("s_lshr_b32 s25, s25, 1")
    c("partial offset = rb*16*PCHUNK + wv*1024 + lane*16")
    e(f"s_mul_i32 s27, s10, {16*PCHUNK}")
    e("s_lshl_b32 s28, s11, 10")
    e("s_add_u32 s27, s27, s28")
    e("v_lshlrev_b32 v3, 4, v2")
    c("x/out offset = (128rb+32r+lane%32)*1152 + tile*64 + (lane/32)*32 + half*16")
    e("s_lshl_b32 s28, s10, 7")
    e("s_lshl_b32 s29, s24, 5")
    e("s_add_u32 s28, s28, s29")
    e("s_mul_i32 s28, s28, 1152")
    e("s_lshl_b32 s29, s25, 6")
    e("s_add_u32 s28, s28, s29")
    e("s_lshl_b32 s29, s26, 4")
    e("s_add_u32 s28, s28, s29")
    e("v_and_b32 v4, 31, v2")
    e("v_mul_u32_u24 v4, 1152, v4")
    e("v_lshrrev_b32 v5, 5, v2")
    e("v_lshl_add_u32 v4, v5, 5, v4")
    e("s_mov_b32 s30, 0x00003f80")
    e("s_mov_b32 s31, 0x3f800000")
    e("s_waitcnt lgkmcnt(0)")
    for (s, k, sz) in ((12, 4, 2048*1152), (16, 6, 2048*1152), (20, 8, WS_BYTES)):
        e(f"s_mov_b32 s{s}, s{k}")
        e(f"s_and_b32 s{s+1}, s{k+1}, 0xffff")
        e(f"s_mov_b32 s{s+2}, {sz}")
        e(f"s_mov_b32 s{s+3}, 0x00020000")
    P = 32
    for j in range(16):
        e(f"buffer_load_dwordx4 {vr(P+4*j,4)}, v3, s[20:23], s27 offen")
        if j < 15: e(f"s_add_u32 s27, s27, {PCHUNK}")
    e("buffer_load_dwordx4 v[28:31], v4, s[12:15], s28 offen")
    e("s_lshl_b32 s27, s10, 9")
    e("s_lshl_b32 s29, s24, 7")
    e("s_add_u32 s27, s27, s29")
    e(f"s_add_u32 s27, s27, {RSTD_OFF}")
    e("v_and_b32 v5, 31, v2")
    e("v_lshlrev_b32 v5, 2, v5")
    e("buffer_load_dword v6, v5, s[20:23], s27 offen")
    F, S = 8, 16
    for i in range(16): e(f"v_mov_b32 v{F+i}, 0")
    for j in range(16):
        e(f"s_waitcnt vmcnt({17-j})")
        a = F if j < 12 else S
        for i in range(4):
            e(f"v_dot2c_f32_bf16 v{a+2*i}, s30, v{P+4*j+i}")
            e(f"v_dot2c_f32_bf16 v{a+2*i+1}, s31, v{P+4*j+i}")
    e("s_nop 2")
    T = 32
    e("s_waitcnt vmcnt(0)")
    for i in range(8): e(f"v_mul_f32 v{F+i}, v{F+i}, v6")
    c("f,s -> bf16")
    for i in range(8):
        e(f"v_cvt_pk_bf16_f32 v{T+i}, v{F+2*i}, v{F+2*i+1}")
    for i in range(8):
        e(f"v_lshlrev_b32 v{F+2*i}, 16, v{T+i}")
        e(f"v_and_b32 v{F+2*i+1}, 0xffff0000, v{T+i}")
    c("g = silu(f) = f/(1+exp(-f))")
    for i in range(8): e(f"v_mul_f32 v{T+i}, 0xbfb8aa3b, v{F+i}")
    for i in range(8): e(f"v_exp_f32 v{T+i}, v{T+i}")
    for i in range(8): e(f"v_add_f32 v{T+i}, 1.0, v{T+i}")
    for i in range(8): e(f"v_rcp_f32 v{T+i}, v{T+i}")
    for i in range(8): e(f"v_mul_f32 v{F+i}, v{F+i}, v{T+i}")
    for i in range(4): e(f"v_cvt_pk_bf16_f32 v{T+i}, v{F+2*i}, v{F+2*i+1}")
    for i in range(4):
        e(f"v_lshlrev_b32 v{F+2*i}, 16, v{T+i}")
        e(f"v_and_b32 v{F+2*i+1}, 0xffff0000, v{T+i}")
    for i in range(8): e(f"v_mul_f32 v{F+i}, v{F+i}, v{S+i}")
    for i in range(4): e(f"v_cvt_pk_bf16_f32 v{T+i}, v{F+2*i}, v{F+2*i+1}")
    e("s_waitcnt vmcnt(0)")
    for i in range(4):
        e(f"v_lshlrev_b32 v{F+2*i}, 16, v{T+i}")
        e(f"v_and_b32 v{F+2*i+1}, 0xffff0000, v{T+i}")
        e(f"v_lshlrev_b32 v{S+2*i}, 16, v{28+i}")
        e(f"v_and_b32 v{S+2*i+1}, 0xffff0000, v{28+i}")
    for i in range(8): e(f"v_add_f32 v{F+i}, v{F+i}, v{S+i}")
    for i in range(4): e(f"v_cvt_pk_bf16_f32 v{T+i}, v{F+2*i}, v{F+2*i+1}")
    e(f"buffer_store_dwordx4 {vr(T,4)}, v4, s[16:19], s28 offen")
    if PROF:
        e("s_waitcnt vmcnt(0)")
        e("s_memrealtime s[34:35]")
        e("s_waitcnt lgkmcnt(0)")
        e("s_lshl_b32 s36, s2, 2")
        e("s_add_u32 s36, s36, s3")
        e("s_lshl_b32 s36, s36, 4")
        e(f"s_add_u32 s36, s36, {65<<20}")
        e("v_mov_b32 v1, 0")
        e("v_mov_b32 v8, s32")
        e("v_mov_b32 v9, 0")
        e("v_mov_b32 v10, s34")
        e("v_mov_b32 v11, 0")
        e("v_cmp_eq_u32 vcc, 0, v2")
        e("s_and_saveexec_b64 s[38:39], vcc")
        e("buffer_store_dwordx4 v[8:11], v1, s[20:23], s36 offen")
        e("s_waitcnt vmcnt(0)")
    lab("Lend2")
    e("s_endpgm")

def desc(kn, vg, acc, sg):
    return f""".amdhsa_kernel {kn}
  .amdhsa_next_free_vgpr {vg}
  .amdhsa_next_free_sgpr {sg}
  .amdhsa_accum_offset {acc}
  .amdhsa_group_segment_fixed_size 0
  .amdhsa_kernarg_size 72
  .amdhsa_user_sgpr_count 2
  .amdhsa_user_sgpr_kernarg_segment_ptr 1
  .amdhsa_system_sgpr_workgroup_id_x 1
.end_amdhsa_kernel
"""

def main(out):
    hdr = open(f"cdna_kernels/{NAME}.s.ref").read().split("; Override")[0]
    L.append(hdr.rstrip("\n"))
    L.append("; @launch grid=(256,1,1) block=(256,1,1) lds=163840")
    L.append('.amdgcn_target "amdgcn-amd-amdhsa--gfx950"')
    L.append(".text")
    k1()
    L.append('.section .rodata,"a"')
    L.append(".p2align 6")
    L.append(desc(NAME + "_kernel", 512, 256, 102))
    open(out, "w").write("\n".join(L) + "\n")

if __name__ == "__main__":
    main(sys.argv[1] if len(sys.argv) > 1 else f"cdna_kernels/{NAME}.s")
```

```python
import sys
NAME = "recurrent_scan__sliding_local_dilated__dense_activation_relu__prompt"
L = []
import re, os
PAD = {"on": False, "bytes": 0, "n": 0}
PADALL = int(os.environ.get("PADALL", "0"))
HOPS = int(os.environ.get("HOPS", "1"))
PADPRO = int(os.environ.get("PADPRO", "0"))
PADLOOP = int(os.environ.get("PADLOOP", "0"))
PADSP = int(os.environ.get("PADSP", "120"))
def isz(s):
    op = s.split()[0]
    if op.startswith(("buffer_", "ds_", "v_mfma", "v_cvt_pk", "v_lshl_add", "v_max3", "v_pk_", "v_accvgpr", "v_bfe", "v_mul_u32")): return 8
    m = re.search(r"[ ,](0x[0-9a-f]+|\d+\.\d+e[-+]\d+|\d+)(,|$)", s)
    if m and not op.startswith(("s_nop", "s_sleep", "s_waitcnt")):
        t = m.group(1)
        if "." in t or int(t, 0) > 64: return 8
    return 4
def e(s):
    L.append("    " + s)
    if PAD["on"] and not s.startswith("."):
        PAD["bytes"] += isz(s)
        if PAD["bytes"] >= PADSP and PAD["n"] < 128 * HOPS:
            L.append(f"Lpad{PAD['n']}:")
            L.append("    s_cbranch_execz Lret")
            PAD["n"] += 1; PAD["bytes"] = 4
def pads(on):
    PAD["on"] = on and PADSP > 0
    PAD["bytes"] = PADSP
def lab(s): L.append(s + ":")
def c(s): L.append("    ; " + s)

SLOT = 24576
NSLOT = 6
KVBASE = 73728
KVSTR = 592
PCHUNK = 147456
HALO_OFF = 256 * PCHUNK
WS_BYTES = HALO_OFF + 64 * 9216
D = 6
R = 8

RSTD_OFF = WS_BYTES
WS_BYTES += 32768
FL_OFF = RSTD_OFF
OOR = 0x40000000
WCOPY = 4
vTID, vLANE, vM, vHH = 0, 1, 2, 3
vA01, vB01, vA2, vB2, vMASKA, vWO = 4, 5, 6, 7, 8, 9
vRSTD, vST, vCI, vCUR, vBASE_G2, vBASE_AG2 = 10, 11, 12, 13, 14, 15
ACC = [16, 32]
PK = [48, 56]
vD, vD2 = 64, 70
vS = 76
H = 80
vT = 96
U = 80
X = 112
NXA = 20
XA = 64
FR = 0
sSRD, sX, sWS, sDBG = 4, 8, 12, 16
sWAVE, sRB, sJOB, sATT = 20, 21, 22, 23
sSOFF, sINC = 24, 25
sMB0, sMB1, sRD, sG, sIDX = 28, 29, 30, 31, 32
sONES, sSELLO, sSELHI = 41, 42, 43
sT0, sT1, sT2, sT3 = 54, 55, 56, 57
sSTOFF, sW6K, sCUR = 58, 59, 60
sK = 64
sEX = 84
kx, kqkv, kwo, kw1, kw2, kdbg, kws = sK, sK+2, sK+4, sK+8, sK+10, sK+14, sK+16
TOG = 0x12000
def xop(s_): return f"a[{XA+4*s_}:{XA+4*s_+3}]" if s_ < NXA else f"v[{X+4*s_}:{X+4*s_+3}]"
import os
PROF = os.environ.get("PROF", "0") == "1"
if PROF: WS_BYTES = 128 << 20
def stamp(i, real=False):
    if not PROF: return
    e(("s_memrealtime" if real else "s_memtime") + " s[86:87]")
    e("s_waitcnt lgkmcnt(0)")
    e(f"s_mov_b32 s{88+i}, s86")
def prof_out():
    if not PROF: return
    stamp(1, True)
    e(f"s_lshl_b32 s86, s2, 2")
    e(f"s_add_u32 s86, s86, s{sWAVE}")
    e(f"s_lshl_b32 s86, s86, 7")
    e(f"s_add_u32 s86, s86, {64<<20}")
    e("v_mov_b32 v1, 0")
    e("v_mov_b32 v3, 0")
    e("v_cmp_eq_u32 vcc, 0, v0")
    e("v_and_b32 v0, 63, v0")
    e("v_cmp_eq_u32 vcc, 0, v0")
    e(f"s_and_saveexec_b64 {sr(sEX,2)}, vcc")
    for i in range(12):
        e(f"v_mov_b32 v2, s{88+i}")
        e(f"buffer_store_dwordx2 v[2:3], v1, {sr(sWS,4)}, s86 offen offset:{8*i}")
        e("s_nop 1")
    e("s_waitcnt vmcnt(0)")
NOW = os.environ.get("NOW", "0") == "1"
NOST = os.environ.get("NOST", "0") == "1"
NODMA = os.environ.get("NODMA", "0") == "1"
NORD = os.environ.get("NORD", "0") == "1"
LIN = os.environ.get("LIN", "0") == "1"
NOPF = os.environ.get("NOPF", "0") == "1"
sPF = 44
sPF2, sPFO, sPFO2 = 48, 52, 53
vPF = 79
PFW1 = int(os.environ.get("PFW1", "0"))
PFN = int(os.environ.get("PFN", "14"))
def pf_srd(k, sz, r=sPF):
    e(f"s_mov_b32 s{r}, s{k}")
    e(f"s_and_b32 s{r+1}, s{k+1}, 0xffff")
    e(f"s_mov_b32 s{r+2}, {0 if (NOW or NOPF) else sz}")
    e(f"s_mov_b32 s{r+3}, 0x00020000")
uid = [0]
def newlab(p):
    uid[0] += 1
    return f"L{p}_{uid[0]}"

def vr(b, n): return f"v[{b}:{b+n-1}]"
def ar(b, n): return f"a[{b}:{b+n-1}]"
def sr(b, n): return f"s[{b}:{b+n-1}]"

IMM = [0, 1024, 2048, 3072, 0, 1024]
def dma_ld(p):
    if NODMA: return []
    return [f"buffer_load_dwordx4 v{vD+p}, {sr(sSRD,4)}, s{sSOFF} offen offset:{IMM[p]} lds"]
def att_delta():
    return [
        f"v_add_u32 v{vCI}, 4, v{vCI}",
        f"v_subrev_u32 v{vS}, 27, v{vCI}",
        f"v_min_u32 v{vCI}, v{vCI}, v{vS}",
        f"v_mul_u32_u24 v{vS}, 57, v{vCI}",
        f"v_lshrrev_b32 v{vS}, 9, v{vS}",
        f"v_mul_u32_u24 v{vS}, 864, v{vS}",
        f"v_lshl_add_u32 v{vS+1}, v{vCI}, 5, v{vS}",
        f"v_sub_u32 v{vS}, v{vS+1}, v{vCUR}",
        f"v_mov_b32 v{vCUR}, v{vS+1}",
    ]

def emit_list(lst):
    for s in lst:
        if s.endswith(":"): L.append(s)
        else: e(s)

def tr_reads(fr, addr, off, second):
    if NORD: return []
    return [f"ds_read_b64_tr_b16 {ar(FR+4*fr,2)}, v{addr} offset:{off}",
            f"ds_read_b64_tr_b16 {ar(FR+4*fr+2,2)}, v{addr} offset:{off+second}"]

def round_bf16(v, tmp):
    return [f"v_cvt_pk_bf16_f32 v{tmp}, v{v}, v{v}", f"v_lshlrev_b32 v{v}, 16, v{tmp}"]

def gemm_body(nst, bop, fill, raddr):
    n = 24 * nst
    for i in range(n):
        st, w = divmod(i, 24)
        tile, ks = divmod(w, 12)
        j = (i + D) % n
        st2, w2 = divmod(j, 24)
        t2, ks2 = divmod(w2, 12)
        a, off = raddr(st2, t2)
        emit_list(tr_reads((i + D) % R, a, off + ks2 * 2048, 512))
        if i % 2 == 0: e(f"s_waitcnt lgkmcnt({2*D-2})")
        acc = vr(ACC[tile], 16)
        cc = "0" if (st == 0 and ks == 0) else acc
        e(f"v_mfma_f32_32x32x16_bf16 {acc}, {ar(FR+4*(i%R),4)}, {bop(12*st+ks)}, {cc}")
        emit_list(fill.get(i, []))

def add(fill, slot, ins):
    fill.setdefault(slot, []).extend(ins)

class Sched:
    def __init__(self, n):
        self.n = n; self.fill = {}; self.load = [0] * n
    def cap(self, i): return 3 if i % 2 == 0 else 2
    def put(self, slot, ins, cost=None):
        slot %= self.n
        add(self.fill, slot, ins)
        self.load[slot] += len(ins) if cost is None else cost
    def seq(self, lo, hi, groups):
        over = 0
        while True:
            ld = list(self.load); pos = []; i = lo; ok = True
            for g in groups:
                while i <= hi and ld[i % self.n] + len(g) > self.cap(i) + over and ld[i % self.n] > 0: i += 1
                if i > hi: ok = False; break
                pos.append(i); ld[i % self.n] += len(g)
            if ok: break
            over += 1
        for g, i in zip(groups, pos): self.put(i, g)
        return pos[-1]
    def vmwait(self, bar_slot, p5_slot_back):
        cnt = 0
        for a in range(p5_slot_back + 1, bar_slot + 1):
            cnt += sum(1 for x in self.fill.get(a % self.n, []) if x.startswith("buffer_"))
        return cnt

BAR = 9
def bars(S, nst, w):
    for st in range(nst):
        b = 24 * st
        n = S.vmwait(b + BAR, b - 72 + BAR + 1 + w + 20 - 24)
        if NODMA: n = 63
        S.put(b + BAR, [f"s_waitcnt vmcnt({n})", "s_barrier"])

RARE = []
def phase1(att, w):
    tag = f"{'a' if att else 'f'}{w}"
    S = Sched(72)
    for st in range(3):
        b = 24 * st
        for p in range(6):
            sl = b + BAR + 1 + w + 4 * p
            if p in (0, 4):
                r, k = [(sMB1, 2 * SLOT), (sMB0, 0), (sMB0, SLOT)][st]
                if sl - 1 >= 72: r = sMB1 if r == sMB0 else sMB0
                S.put(sl - 1, [f"s_add_u32 m0, s{r}, {k + w*6144 + (4096 if p == 4 else 0)}"])
            S.put(sl, dma_ld(p), cost=3)
        S.put(b + BAR + 1 + w + 21, [f"s_add_u32 s{sSOFF}, s{sSOFF}, s{sINC+st}"])
    d2 = [x for x in range(14, 30) if (x - (BAR + 1 + w)) % 4 == 2]
    S.put(d2[0], [f"buffer_load_dword a63, v{vPF}, {sr(sPF,4)}, s{sPFO} offen"], cost=3)
    S.seq(d2[0] + 1, 60, [[f"s_add_u32 s{sPFO}, s{sPFO}, {PFN*128}"],
                          [f"s_cmp_ge_u32 s{sG}, {42 // PFN - 1}", f"s_cselect_b32 s{sPF+2}, 0, s{sPF+2}"]])
    bars(S, 3, w)
    S.seq(36, 60, [[f"v_xor_b32 v{vA01}, v{vMASKA}, v{vA01}"]])
    S.seq(42, 70, [[f"v_xor_b32 v{vB01}, {TOG}, v{vB01}"]])
    S.seq(54, 71, [[f"v_xor_b32 v{vA2}, {TOG}, v{vA2}"]])
    S.seq(66, 71, [[f"v_xor_b32 v{vB2}, {TOG}, v{vB2}"]])
    S.put(71, [f"s_xor_b32 s{sMB0}, s{sMB0}, {TOG}", f"s_xor_b32 s{sMB1}, s{sMB1}, {TOG}",
               f"s_add_u32 s{sG}, s{sG}, 1", f"s_cmp_lt_u32 s{sG}, {7 if att else 6}"])
    sw = 32 + w
    if att:
        S.put(sw, [f"s_cmp_ge_u32 s{sG}, 5", f"s_cselect_b32 s{sSRD+2}, 0, s{sSRD+2}"])
        dl = att_delta()
        S.seq(12, 28, [[x] for x in dl])
        for p in range(6):
            lo = BAR + 1 + w + 4 * p + 1
            S.seq(max(lo, 29), 24 + BAR + w + 4 * p, [[f"v_add_u32 v{vD+p}, v{vD+p}, v{vS}"]])
    else:
        S.put(sw, [f"s_cmp_ge_u32 s{sG}, 4", f"s_cbranch_scc1 Lsw_{tag}", f"Lswr_{tag}:"], cost=2)
        r = [f"Lsw_{tag}:", f"s_cmp_eq_u32 s{sG}, 4", f"s_cbranch_scc0 Lsw5_{tag}",
             f"s_mov_b32 s{sSRD}, s{kw2}", f"s_and_b32 s{sSRD+1}, s{kw2+1}, 0xffff",
             f"s_mov_b32 s{sSRD+2}, {0 if NOW else 4608*1152}", f"s_mul_i32 s{sSOFF}, s{sJOB}, {384*1152}",
             f"s_mov_b32 s{sINC}, {192*1152}", f"s_mov_b32 s{sINC+1}, {192*1152}", f"s_mov_b32 s{sINC+2}, {(128-192*1152) & 0xffffffff}"]
        r += [f"v_mov_b32 v{vD+p}, v{vD2+p}" for p in range(6)]
        r += [f"s_branch Lswr_{tag}", f"Lsw5_{tag}:",
              f"s_mov_b32 s{sINC+2}, {192*1152}", f"s_mov_b32 s{sINC+1}, {(128-192*1152) & 0xffffffff}",
              f"v_xor_b32 v{vMASKA}, v{vA01}, v{vBASE_G2}", f"s_branch Lswr_{tag}"]
        RARE.extend(r)
    def idxblk(tile):
        o = [f"s_set_gpr_idx_on s{sIDX}, 0x8", "s_nop 0"]
        for i in range(8):
            if att: o.append(f"v_cvt_pk_bf16_f32 v{H+8*tile+i}, v{ACC[tile]+2*i}, v{ACC[tile]+2*i+1}")
            else: o.append(f"v_pk_max_i16 v{H+8*tile+i}, v{PK[tile]+i}, 0")
        o.append("s_set_gpr_idx_off")
        return o
    def pre(slot, ins):
        S.fill[slot % 72] = ins + S.fill.get(slot % 72, []); S.load[slot % 72] += len(ins)
    if att:
        S.seq(61, 68, [[f"v_mul_f32 v{ACC[0]+i}, v{ACC[0]+i}, v{vRSTD}"] for i in range(16)])
        sl = [x for x in (71, 70, 69) if (x - (BAR + 1 + w)) % 4 != 0][0]
        k = SLOT + (4096 if sl >= 48 + BAR + w + 16 else 0)
        pre(sl, idxblk(0) + [f"s_add_u32 m0, s{sMB0}, {k + w*6144}"])
        S.seq(1, 8, [[f"v_mul_f32 v{ACC[1]+i}, v{ACC[1]+i}, v{vRSTD}"] for i in range(16)])
        sl = [x for x in (11, 10) if (x - (BAR + 1 + w)) % 4 != 0][0]
        fix = [f"s_add_u32 m0, s{sMB1}, {2*SLOT + w*6144}"] if sl >= BAR + w else []
        S.put(sl, idxblk(1) + fix + [f"s_add_u32 s{sIDX}, s{sIDX}, s{sIDX+1}", f"s_mov_b32 s{sIDX+1}, 16"])
        if w == 3:
            S.seq(40, 44, [[f"s_cmp_ge_u32 s{sG}, 5", f"s_cbranch_scc1 Lpub", "Lpubr:"]])
    else:
        S.seq(61, 71, [[f"v_cvt_pk_bf16_f32 v{PK[0]+i}, v{ACC[0]+2*i}, v{ACC[0]+2*i+1}"] for i in range(8)])
        S.seq(1, 11, [[f"v_cvt_pk_bf16_f32 v{PK[1]+i}, v{ACC[1]+2*i}, v{ACC[1]+2*i+1}"] for i in range(8)])
        pre(BAR + w + 16, idxblk(0))
        pre(24 + BAR + w + 16, idxblk(1) + [f"s_add_u32 s{sIDX}, s{sIDX}, s{sIDX+1}", f"s_mov_b32 s{sIDX+1}, 16"])
    e(".p2align 6")
    lab(f"Lp1_{tag}")
    gemm_body(3, xop, S.fill, lambda st, t: ([vA01, vB01][t], st * SLOT) if st < 2 else ([vA2, vB2][t], 0))
    e(f"s_cbranch_scc1 Lp1_{tag}")

def phase2(w):
    S = Sched(48)
    vA, vB, vB0 = vA01, vB01, vA2
    for st in range(2):
        b = 24 * st
        for p in range(6):
            sl = b + BAR + 1 + w + 4 * p
            if p in (0, 4):
                r, k = [(sMB1, SLOT), (sMB0, 0)][st]
                if sl - 1 >= 48: r = sMB1
                S.put(sl - 1, [f"s_add_u32 m0, s{r}, {k + w*6144 + (4096 if p == 4 else 0)}"])
            S.put(sl, dma_ld(p), cost=3)
        inc = [128 - 192 * 1152, 192 * 1152][st]
        S.put(b + BAR + 1 + w + 21, [f"s_add_u32 s{sSOFF}, s{sSOFF}, {inc & 0xffffffff}"])
    S.put(32 + w, [f"s_cmp_ge_u32 s{sG}, 6", f"s_cselect_b32 s{sSRD+2}, 0, s{sSRD+2}"])
    st_ = lambda r, so, off: [f"buffer_store_dwordx4 {vr(r,4)}, v{vST}, {sr(sWS,4)}, s{so} offen offset:{off} sc0 sc1"]
    d0 = (BAR + 1 + w) % 4
    ssl = lambda lo: [x for x in range(lo, lo + 8) if (x - d0) % 4 == 2]
    a0, a1 = ssl(2); b0, b1 = ssl(14)
    S.put(a0, st_(PK[0], sT2, 0), cost=3); S.put(a1, st_(PK[0] + 4, sT2, 1024), cost=3)
    S.put(b0, st_(PK[1], sT2, 2048), cost=3); S.put(b1, st_(PK[1] + 4, sT2, 3072), cost=3)
    bars(S, 2, w)
    if w == 0:
        S.seq(10, 22, [[f"v_accvgpr_read_b32 v{vS+2}, a60"],
                       [f"v_cmp_eq_u32 vcc, 1, v{vS+2}"],
                       [f"s_cmp_eq_u32 s{sG}, 5", f"s_cselect_b32 s63, s62, {OOR}"],
                       [f"s_cmp_eq_u32 s{sG}, 8", "s_cselect_b32 s63, s62, s63"]])
        S.put(25, ["s_cmp_eq_u32 vcc_lo, -1", f"s_cselect_b32 s63, s63, {OOR}"])
        S.put(23, [f"s_cmp_eq_u32 s{sG}, 8", f"s_cselect_b32 s{sCUR+1}, 3, 1", f"v_mov_b32 v{vS}, s{sCUR+1}"])
        S.put(28, [f"buffer_store_dword v{vS}, v{vS+1}, {sr(sWS,4)}, s63 offen sc0 sc1"], cost=3)
    S.seq(37, 47, [[f"v_cvt_pk_bf16_f32 v{PK[0]+i}, v{ACC[0]+2*i}, v{ACC[0]+2*i+1}"] for i in range(8)])
    S.seq(1, 11, [[f"v_cvt_pk_bf16_f32 v{PK[1]+i}, v{ACC[1]+2*i}, v{ACC[1]+2*i+1}"] for i in range(8)])
    S.seq(24, 34, [[f"s_add_u32 s{sRD}, s{sRD}, {2*SLOT}", f"s_cmp_eq_u32 s{sRD}, {6*SLOT}", f"s_cselect_b32 s{sRD}, 0, s{sRD}"]])
    S.seq(35, 40, [[f"v_add_u32 v{vA}, s{sRD}, v{vBASE_G2}"]])
    S.seq(42, 46, [[f"v_add_u32 v{vB}, s{sRD}, v{vB0}"]])
    S.seq(24, 46, [[f"s_mov_b32 s{sT2}, s{sSTOFF}"], [f"s_add_u32 s{sSTOFF}, s{sSTOFF}, 4096"]])
    S.put(47, [f"s_mov_b32 s{sMB1}, s{sMB0}", f"s_mov_b32 s{sMB0}, s{sRD}",
               f"s_add_u32 s{sG}, s{sG}, 1", f"s_cmp_lt_u32 s{sG}, 9"])
    e(".p2align 6")
    lab(f"Lp2_{w}")
    gemm_body(2, lambda s_: vr(H + 4 * s_, 4), S.fill, lambda st, t: ([vA, vB][t], st * SLOT))
    e(f"s_cbranch_scc1 Lp2_{w}")

PSL = int(os.environ.get("PSL", "2"))
WOPF = int(os.environ.get("WOPF", "1"))
def signal(val, idx_sgpr):
    e(f"v_mov_b32 v{vS+2}, 0")
    e(f"v_mov_b32 v{vS+1}, {val}")
    e(f"v_cmp_eq_u32 vcc, 0, v{vLANE}")
    e(f"s_and_saveexec_b64 {sr(sEX,2)}, vcc")
    e(f"buffer_store_byte v{vS+1}, v{vS+2}, {sr(sDBG,4)}, s{idx_sgpr} offen sc0 sc1")
    e(f"s_mov_b64 exec, {sr(sEX,2)}")
    e("s_nop 3")

def ready_load():
    e(f"s_lshl_b32 s62, s{sRB}, 4")
    e(f"buffer_load_dword a60, off, {sr(sDBG,4)}, s62 sc0 sc1")

def ready_check(tag):
    e(f"v_accvgpr_read_b32 v{vS+2}, a60")
    e("s_nop 1")
    e(f"v_cmp_eq_u32 vcc, 1, v{vS+2}")
    e("s_nop 3")
    e("s_cmp_eq_u32 vcc_lo, -1")
    e(f"s_cbranch_scc1 Lrdy_{tag}")
    e(f"s_lshl_b32 s62, s{sRB}, 4")
    poll("r" + tag, 62, 1, "1", "1", vS - 1, 4)
    lab(f"Lrdy_{tag}")

def flag_regs():
    e(f"s_mul_i32 s62, s{sRB}, 1536")
    e(f"s_lshl_b32 s63, s{sJOB}, 2")
    e(f"s_add_u32 s62, s62, s63")
    e(f"s_add_u32 s62, s62, {FL_OFF}")
    e(f"v_lshlrev_b32 v{vS+1}, 7, v{vLANE}")
    e(f"v_mov_b32 v{vS+3}, {OOR}")
    e(f"v_cmp_gt_u32 vcc, 12, v{vLANE}")
    e("s_nop 1")
    e(f"v_cndmask_b32 v{vS+1}, v{vS+3}, v{vS+1}, vcc")

def wg_signal(tag, val):
    e("s_waitcnt vmcnt(0)")
    e("s_barrier")
    e(f"s_cmp_eq_u32 s{sWAVE}, 0")
    e(f"s_cbranch_scc0 Lnosig_{tag}")
    ready_check(tag)
    flag_regs()
    e(f"v_mov_b32 v{vS}, {val}")
    e(f"buffer_store_dword v{vS}, v{vS+1}, {sr(sWS,4)}, s62 offen sc0 sc1")
    lab(f"Lnosig_{tag}")

def poll(tag, idx_sgpr, nw, and_sgpr, cmp_sgpr, vt, slp, keep=False):
    e(f"s_mov_b32 s{sCUR+1}, 0x4000")
    if keep:
        e("s_waitcnt vmcnt(5)")
        e(f"v_accvgpr_read_b32 v{vt+1}, a61")
        e("s_nop 1")
        e(f"s_branch Lpchk_{tag}")
    lab(f"Lpoll_{tag}")
    ld = {1: "dword", 3: "dwordx3"}[nw]
    e(f"buffer_load_{ld} {vr(vt+1,nw) if nw>1 else 'v%d'%(vt+1)}, off, {sr(sDBG,4)}, s{idx_sgpr} sc0 sc1")
    e("s_waitcnt vmcnt(0)")
    if keep: lab(f"Lpchk_{tag}")
    if nw == 3:
        e(f"v_and_b32 v{vt+1}, v{vt+1}, v{vt+2}")
        e(f"v_and_b32 v{vt+1}, v{vt+1}, v{vt+3}")
        e("s_nop 1")
    e(f"v_readfirstlane_b32 s{sT2}, v{vt+1}")
    e("s_nop 3")
    e(f"s_and_b32 s{sT2}, s{sT2}, {and_sgpr}")
    e(f"s_cmp_eq_u32 s{sT2}, {cmp_sgpr}")
    e(f"s_cbranch_scc1 Lpollok_{tag}")
    e(f"s_sleep {slp}")
    e(f"s_sub_u32 s{sCUR+1}, s{sCUR+1}, 1")
    e(f"s_cbranch_scc0 Lpoll_{tag}")
    lab(f"Lpollok_{tag}")

def wg_poll(tag, bit, mask, vt, slp):
    e(f"s_cmp_eq_u32 s{sWAVE}, 0")
    e(f"s_cbranch_scc0 Lpollok_{tag}")
    e(f"s_mov_b32 s{sCUR+1}, 0x4000")
    lab(f"Lpoll_{tag}")
    e(f"buffer_load_dword v{vt+1}, v{vt}, {sr(sWS,4)}, s{sT3} offen sc0 sc1")
    e("s_waitcnt vmcnt(0)")
    e(f"v_and_b32 v{vt+1}, {bit}, v{vt+1}")
    e(f"v_cmp_ne_u32 vcc, 0, v{vt+1}")
    e("s_nop 3")
    e(f"s_and_b32 s{sT2}, vcc_lo, {mask}")
    e(f"s_cmp_eq_u32 s{sT2}, {mask}")
    e(f"s_cbranch_scc1 Lpollok_{tag}")
    e(f"s_sleep {slp}")
    e(f"s_sub_u32 s{sCUR+1}, s{sCUR+1}, 1")
    e(f"s_cbranch_scc0 Lpoll_{tag}")
    lab(f"Lpollok_{tag}")
    e("s_barrier")

def reduce_tail():
    sO = sPF
    P, XV, F = 80, 16, 28
    Sg = 52
    e(f"s_lshl_b32 s{sT0}, s{sRB}, 2")
    e(f"s_add_u32 s{sT0}, s{sT0}, s{sWAVE}")
    c("x/out offsets")
    e(f"s_mul_i32 s{sT0}, s{sT0}, {32*1152}")
    e(f"v_mul_u32_u24 v4, 1152, v{vM}")
    e(f"v_lshl_add_u32 v4, v{vHH}, 5, v4")
    for i in range(3):
        e(f"s_add_u32 s{sT2}, s{sJOB}, {12*i}")
        e(f"s_and_b32 s{sINC+i}, s{sT2}, 1")
        e(f"s_lshl_b32 s{sINC+i}, s{sINC+i}, 4")
        e(f"s_lshr_b32 s{sT2}, s{sT2}, 1")
        e(f"s_lshl_b32 s{sT2}, s{sT2}, 6")
        e(f"s_add_u32 s{sINC+i}, s{sINC+i}, s{sT2}")
        e(f"s_add_u32 s{sINC+i}, s{sINC+i}, s{sT0}")
    e(f"s_mov_b32 s{sO}, s{sK+12}")
    e(f"s_and_b32 s{sO+1}, s{sK+13}, 0xffff")
    e(f"s_mov_b32 s{sO+2}, {2048*1152}")
    e(f"s_mov_b32 s{sO+3}, 0x00020000")
    c("partial base = (rb*64 + wave)*36864 + job*3072")
    e(f"s_lshl_b32 s{sT0}, s{sRB}, 6")
    e(f"s_add_u32 s{sT0}, s{sT0}, s{sWAVE}")
    e(f"s_mul_i32 s{sSOFF}, s{sT0}, 36864")
    e(f"s_lshl_b32 s{sT0}, s{sJOB}, 10")
    e(f"s_add_u32 s{sSOFF}, s{sSOFF}, s{sT0}")
    if PADALL: pads(True)
    wg_signal("f", 7)
    e(f"s_mul_i32 s{sT3}, s{sRB}, 12")
    e(f"s_add_u32 s{sT3}, s{sT3}, s{sJOB}")
    e(f"s_lshl_b32 s{sT3}, s{sT3}, 7")
    e(f"s_add_u32 s{sT3}, s{sT3}, {FL_OFF}")
    e(f"v_and_b32 v5, 15, v{vLANE}")
    e(f"v_lshlrev_b32 v5, 2, v5")
    for i in range(3):
        e(f"buffer_load_dwordx4 {vr(XV+4*i,4)}, v4, {sr(sX,4)}, s{sINC+i} offen")
    for i in range(48): e(f"v_mov_b32 v{F+i}, 0")
    stamp(8)
    def loads(n, base, i, j0):
        e(f"s_add_u32 s{sT0}, s{sSOFF}, {j0*PCHUNK + 12288*i}")
        for j in range(n):
            e(f"buffer_load_dwordx4 {vr(base+12*j+4*i,4)}, v{vST}, {sr(sWS,4)}, s{sT0} offen sc0 sc1")
            if j < n - 1: e(f"s_add_u32 s{sT0}, s{sT0}, {PCHUNK}")
    def accum(n, base, acc):
        for i3 in range(3):
            for j in range(n):
                e(f"s_waitcnt vmcnt({n*(2-i3) + n-1-j})")
                for i in range(4*i3, 4*i3+4):
                    e(f"v_dot2c_f32_bf16 v{acc+2*i}, s{sSELLO}, v{base+12*j+i}")
                    e(f"v_dot2c_f32_bf16 v{acc+2*i+1}, s{sSELHI}, v{base+12*j+i}")
    for i in range(3):
        wg_poll(f"f{i}", 1 << i, "0xfff", 5, 2)
        if i == 2: stamp(9)
        loads(12, P, i, 0)
    accum(12, P, F)
    e("s_nop 2")
    T = 80
    def rnd(b):
        for i in range(12): e(f"v_cvt_pk_bf16_f32 v{T+i}, v{b+2*i}, v{b+2*i+1}")
        for i in range(12):
            e(f"v_lshlrev_b32 v{b+2*i}, 16, v{T+i}")
            e(f"v_and_b32 v{b+2*i+1}, 0xffff0000, v{T+i}")
    for i in range(24): e(f"v_mul_f32 v{F+i}, v{F+i}, v{vRSTD}")
    rnd(F)
    c("g = silu(f)")
    for i in range(24): e(f"v_mul_f32 v{T+i}, 0xbfb8aa3b, v{F+i}")
    for i in range(24): e(f"v_exp_f32 v{T+i}, v{T+i}")
    for i in range(24): e(f"v_add_f32 v{T+i}, 1.0, v{T+i}")
    for i in range(24): e(f"v_rcp_f32 v{T+i}, v{T+i}")
    for i in range(24): e(f"v_mul_f32 v{F+i}, v{F+i}, v{T+i}")
    rnd(F)
    stamp(10)
    if not PADALL: pads(True)
    wg_poll("a", 1, "0xf000", 5, PSL)
    stamp(11)
    for i in range(3): loads(4, 112, i, 12)
    accum(4, 112, Sg)
    e("s_nop 2")
    rnd(Sg)
    for i in range(24): e(f"v_mul_f32 v{F+i}, v{F+i}, v{Sg+i}")
    rnd(F)
    for i in range(12):
        e(f"v_lshlrev_b32 v{Sg+2*i}, 16, v{XV+i}")
        e(f"v_and_b32 v{Sg+2*i+1}, 0xffff0000, v{XV+i}")
    for i in range(24): e(f"v_add_f32 v{F+i}, v{F+i}, v{Sg+i}")
    for i in range(12): e(f"v_cvt_pk_bf16_f32 v{T+i}, v{F+2*i}, v{F+2*i+1}")
    for i in range(3):
        e(f"buffer_store_dwordx4 {vr(T+4*i,4)}, v4, {sr(sO,4)}, s{sINC+i} offen")

def k1():
    kn = NAME + "_kernel"
    L.append(f".globl {kn}\n.p2align 8\n.type {kn},@function")
    lab(kn)
    e("s_cmp_ge_u32 s2, 256")
    e("s_cbranch_scc1 Lend1")
    e(f"s_load_dwordx16 {sr(sK,16)}, s[0:1], 0")
    e(f"s_load_dwordx2 {sr(sK+16,2)}, s[0:1], 64")
    if PROF:
        for i in range(12): e(f"s_mov_b32 s{88+i}, 0")
    stamp(0, True)
    stamp(2)
    c("lane decode")
    e(f"v_and_b32 v{vLANE}, 63, v0")
    e(f"v_lshrrev_b32 v{vT}, 6, v0")
    e(f"v_and_b32 v{vM}, 31, v0")
    e(f"v_readfirstlane_b32 s{sWAVE}, v{vT}")
    e(f"v_bfe_u32 v{vHH}, v0, 5, 1")
    c("wg decode: xcd=wg%8, q=wg/8; jg=xcd%4; i=q%4; rb=(xcd/4)*8+q/4")
    e(f"s_and_b32 s{sT0}, s2, 3")
    e(f"s_bfe_u32 s{sT1}, s2, 0x20003")
    e(f"s_bfe_u32 s{sT2}, s2, 0x10002")
    e(f"s_lshr_b32 s{sT3}, s2, 5")
    e(f"s_lshl_b32 s{sRB}, s{sT2}, 3")
    e(f"s_add_u32 s{sRB}, s{sRB}, s{sT3}")
    e(f"s_mul_i32 s{sJOB}, s{sT0}, 3")
    e(f"s_add_u32 s{sJOB}, s{sJOB}, s{sT1}")
    e(f"s_add_u32 s{sT2}, s{sT0}, 12")
    e(f"s_cmp_eq_u32 s{sT1}, 3")
    e(f"s_cselect_b32 s{sJOB}, s{sT2}, s{sJOB}")
    e(f"s_cselect_b32 s{sATT}, 1, 0")
    e(f"s_mul_i32 s{sW6K}, s{sWAVE}, 6144")
    e(f"s_mov_b32 s{sONES}, 0x3f803f80")
    e(f"s_mov_b32 s{sSELLO}, 0x00003f80")
    e(f"s_mov_b32 s{sSELHI}, 0x3f800000")
    c("x dma voffsets: i=lane/8, j'=lane%8; key=(i>>1)|(par<<2); off=i*1152+((j'^key)*16)")
    e(f"v_lshrrev_b32 v{vT}, 3, v{vLANE}")
    e(f"v_and_b32 v{vT+1}, 7, v{vLANE}")
    e(f"v_lshrrev_b32 v{vT+2}, 1, v{vT}")
    e(f"v_xor_b32 v{vT+2}, v{vT+1}, v{vT+2}")
    e(f"v_mul_u32_u24 v{vT+3}, 1152, v{vT}")
    e(f"v_lshl_add_u32 v{vT+4}, v{vT+2}, 4, v{vT+3}")
    e(f"v_xor_b32 v{vT+5}, 64, v{vT+4}")
    e("s_waitcnt lgkmcnt(0)")
    c("SRDs")
    for (s, k, sz) in ((sX, kx, 2048*1152), (sWS, kws, WS_BYTES), (sDBG, kdbg, 256)):
        e(f"s_mov_b32 s{s}, s{k}")
        e(f"s_and_b32 s{s+1}, s{k+1}, 0xffff")
        e(f"s_mov_b32 s{s+2}, {sz}")
        e(f"s_mov_b32 s{s+3}, 0x00020000")
    c("job 0 (wave 0) clears the 12 flag lines of its row block first")
    e(f"s_mul_i32 s63, s{sRB}, 1536")
    e(f"s_add_u32 s63, s63, {FL_OFF}")
    e(f"s_lshl_b32 s62, s{sRB}, 4")
    e(f"s_add_u32 s{sT0}, s{sWAVE}, s{sJOB}")
    e(f"s_cmp_eq_u32 s{sT0}, 0")
    e(f"s_cselect_b32 s63, s63, {OOR}")
    e(f"s_cselect_b32 s62, s62, {OOR}")
    e(f"v_min_u32 v24, 47, v{vLANE}")
    e(f"v_and_b32 v25, 3, v24")
    e(f"v_lshrrev_b32 v24, 2, v24")
    e(f"v_lshlrev_b32 v24, 7, v24")
    e(f"v_lshl_add_u32 v24, v25, 4, v24")
    for i in range(4): e(f"v_mov_b32 v{vS+i}, 0")
    e(f"buffer_store_dwordx4 {vr(vS,4)}, v24, {sr(sWS,4)}, s63 offen sc0 sc1")
    c("x rows base")
    e(f"s_lshl_b32 s{sT0}, s{sRB}, 7")
    e(f"s_lshl_b32 s{sT1}, s{sWAVE}, 5")
    e(f"s_add_u32 s{sT0}, s{sT0}, s{sT1}")
    e(f"s_mul_i32 s{sT0}, s{sT0}, 1152")
    e(f"s_add_u32 s{sT1}, s{sT0}, {8*1152}")
    e(f"s_add_u32 s{sT2}, s{sT0}, {16*1152}")
    e(f"s_add_u32 s{sT3}, s{sT0}, {24*1152}")
    e(f"s_mul_i32 s{sCUR}, s{sWAVE}, 36864")
    for cg in range(9):
        for br in range(4):
            e(f"s_add_u32 m0, s{sCUR}, {(br*9+cg)*1024 - cg*128}")
            e("s_nop 0")
            e(f"buffer_load_dwordx4 v{vT+4+(br&1)}, {sr(sX,4)}, s{sT0+br} offen offset:{cg*128} lds")
    c("cache warm-up, chip-wide split: unit u = wg*4+wave, one dword per 128-B line")
    e(f"s_lshl_b32 s{sT0}, s2, 2")
    e(f"s_add_u32 s{sT0}, s{sT0}, s{sWAVE}")
    for (k_, sz_, n_) in ((kqkv, 576*3456, 16), (kw1, 576*9216, 41), (kwo, 576*1152, 6)):
        pf_srd(k_, sz_ if (n_ != 41 or PFW1 == 1) else 0)
        e(f"v_min_u32 v{vT}, {n_-1}, v{vLANE}")
        e(f"v_lshlrev_b32 v{vT}, 7, v{vT}")
        e(f"s_mul_i32 s{sT1}, s{sT0}, {n_*128}")
        e(f"buffer_load_dword a63, v{vT}, {sr(sPF,4)}, s{sT1} offen")
    pf_srd(kw2, 4608*1152)
    e(f"v_min_u32 v{vPF}, {PFN-1}, v{vLANE}")
    e(f"v_lshlrev_b32 v{vPF}, 7, v{vPF}")
    e(f"s_mul_i32 s{sPFO}, s{sT0}, {42*128}")
    L.append("@@WALK@@")
    c("x frag read addresses: base + (m/8)*9216 + (m%8)*128 + (((2q+hh)^key)*16), key=(m>>1)&7")
    e(f"v_lshrrev_b32 v{vT}, 3, v{vM}")
    e(f"v_mul_u32_u24 v{vT}, 9216, v{vT}")
    e(f"v_and_b32 v{vT+1}, 7, v{vM}")
    e(f"v_lshl_add_u32 v{vT}, v{vT+1}, 7, v{vT}")
    e(f"v_add_u32 v{vT}, s{sCUR}, v{vT}")
    e(f"v_bfe_u32 v{vT+1}, v{vM}, 1, 3")
    e(f"v_xor_b32 v{vT+1}, v{vT+1}, v{vHH}")
    for q in range(4):
        e(f"v_xor_b32 v{vT+2}, {2*q}, v{vT+1}")
        e(f"v_lshl_add_u32 v{vT+6+q}, v{vT+2}, 4, v{vT}")
    c("tr-read lane bases. g=lane/16: ch=g&1, hh=g>>1; r=(lane%16)/4, cc=lane%4")
    tr, tc, tch, trow, tsw = U+10, U+11, U+12, U+13, U+14
    e(f"v_bfe_u32 v{tr}, v{vLANE}, 2, 2")
    e(f"v_and_b32 v{tc}, 3, v{vLANE}")
    e(f"v_bfe_u32 v{tch}, v{vLANE}, 4, 1")
    e(f"v_lshl_add_u32 v{trow}, v{vHH}, 3, v{tr}")
    e(f"v_lshlrev_b32 v{trow}, 7, v{trow}")
    e(f"v_lshrrev_b32 v{tsw}, 1, v{tr}")
    vCOLP = U + 9
    c(" FFN gemm1: sw*64 + ch*32 + c*8")
    e(f"v_lshl_add_u32 v{vA01}, v{tsw}, 6, v{trow}")
    e(f"v_lshl_add_u32 v{vA01}, v{tch}, 5, v{vA01}")
    e(f"v_lshl_add_u32 v{vA01}, v{tc}, 3, v{vA01}")
    c(" gemm2 mapping: sw*64 + (c%2)*32 + ch*16 + (c/2)*8")
    e(f"v_and_b32 v{U+15}, 1, v{tc}")
    e(f"v_lshlrev_b32 v{vCOLP}, 6, v{tsw}")
    e(f"v_lshl_add_u32 v{vCOLP}, v{U+15}, 5, v{vCOLP}")
    e(f"v_lshl_add_u32 v{vCOLP}, v{tch}, 4, v{vCOLP}")
    e(f"v_lshrrev_b32 v{vT+2}, 1, v{tc}")
    e(f"v_lshl_add_u32 v{vCOLP}, v{vT+2}, 3, v{vCOLP}")
    e(f"v_add_u32 v{vBASE_G2}, v{vCOLP}, v{trow}")
    e(f"v_mul_u32_u24 v{vBASE_AG2}, 72, v{vHH}")
    e(f"v_add_u32 v{vBASE_AG2}, v{vBASE_AG2}, v{tr}")
    e(f"v_lshl_add_u32 v{vBASE_AG2}, v{vBASE_AG2}, 7, v{vCOLP}")
    c("dma lane decode")
    di, dj, dsw = U+10, U+11, U+12
    e(f"v_lshrrev_b32 v{di}, 3, v{vLANE}")
    e(f"v_and_b32 v{dj}, 7, v{vLANE}")
    e(f"v_bfe_u32 v{dsw}, v{di}, 1, 1")
    e(f"v_lshlrev_b32 v{U+13}, 2, v{dsw}")
    e(f"v_xor_b32 v{dj}, v{dj}, v{U+13}")
    e(f"v_lshlrev_b32 v{U+13}, 4, v{dj}")
    e(f"s_mul_i32 s{sT0}, s{sWAVE}, 48")
    e(f"v_add_u32 v{U+14}, s{sT0}, v{di}")
    e(f"v_mov_b32 v{vWO}, 0")
    for p_ in range(6): e(f"v_mov_b32 v{vD2+p_}, 0")
    e(f"s_cmp_eq_u32 s{sATT}, 1")
    e("s_cbranch_scc1 Lsetup_att")
    c("---- FFN setup")
    e(f"v_mul_u32_u24 v{U+14}, 9216, v{U+14}")
    e(f"v_add_u32 v{vD}, v{U+14}, v{U+13}")
    for p_ in range(1, 6): e(f"v_add_u32 v{vD+p_}, {p_*8*9216 - IMM[p_]}, v{vD}")
    c(" W2: row = 48w + 8*(i/4) + i%4")
    e(f"v_lshrrev_b32 v{U+14}, 2, v{di}")
    e(f"v_and_b32 v{U+15}, 3, v{di}")
    e(f"v_lshl_add_u32 v{U+14}, v{U+14}, 3, v{U+15}")
    e(f"v_add_u32 v{U+14}, s{sT0}, v{U+14}")
    e(f"v_mul_u32_u24 v{U+14}, 1152, v{U+14}")
    e(f"v_add_u32 v{vD2}, v{U+14}, v{U+13}")
    for p_ in range(1, 6): e(f"v_add_u32 v{vD2+p_}, {((p_//2)*16 + (p_%2)*4)*1152 - IMM[p_]}, v{vD2}")
    e(f"s_mov_b32 s{sSRD}, s{kw1}")
    e(f"s_and_b32 s{sSRD+1}, s{kw1+1}, 0xffff")
    e(f"s_mov_b32 s{sSRD+2}, {576*9216}")
    e(f"s_mul_i32 s{sSOFF}, s{sJOB}, 768")
    e(f"s_mov_b32 s{sINC}, {(128 - 2*192*9216) & 0xffffffff}")
    e(f"s_mov_b32 s{sINC+1}, {192*9216}")
    e(f"s_mov_b32 s{sINC+2}, {192*9216}")
    e(f"v_mov_b32 v{vS}, 0")
    e("s_branch Lsetup_done")
    lab("Lsetup_att")
    c("---- attention setup: ci = 9 + j/2 ; base = row*3456 + 16*(j%2) + 32*ci + 864")
    e(f"v_mov_b32 v{vA01}, v{vBASE_G2}")
    e(f"v_lshrrev_b32 v{U+15}, 1, v{dj}")
    e(f"v_add_u32 v{vCI}, 9, v{U+15}")
    e(f"v_lshlrev_b32 v{vCUR}, 5, v{vCI}")
    e(f"v_add_u32 v{vCUR}, 864, v{vCUR}")
    e(f"v_mul_u32_u24 v{U+14}, 3456, v{U+14}")
    e(f"v_add3_u32 v{vD}, v{U+14}, v{U+13}, 0")
    e(f"v_add_u32 v{vD}, 1152, v{vD}")
    for p_ in range(1, 6): e(f"v_add_u32 v{vD+p_}, {p_*8*3456 - IMM[p_]}, v{vD}")
    c(" Wo dma voffset: row=40w+i natural")
    e(f"s_mul_i32 s{sT1}, s{sWAVE}, 40")
    e(f"v_add_u32 v{U+14}, s{sT1}, v{di}")
    e(f"v_mul_u32_u24 v{U+14}, 1152, v{U+14}")
    e(f"v_add_u32 v{vWO}, v{U+14}, v{U+13}")
    e(f"s_mov_b32 s{sSRD}, s{kqkv}")
    e(f"s_and_b32 s{sSRD+1}, s{kqkv+1}, 0xffff")
    e(f"s_mov_b32 s{sSRD+2}, {576*3456}")
    e(f"s_sub_u32 s{sT1}, s{sJOB}, 12")
    e(f"s_mul_i32 s{sSOFF}, s{sT1}, 288")
    e(f"s_mov_b32 s{sINC}, {(- 2*192*3456) & 0xffffffff}")
    e(f"s_mov_b32 s{sINC+1}, {192*3456}")
    e(f"s_mov_b32 s{sINC+2}, {192*3456}")
    emit_list(att_delta())
    lab("Lsetup_done")
    e(f"s_mov_b32 s{sSRD+3}, 0x00020000")
    if NOW: e(f"s_mov_b32 s{sSRD+2}, 0")
    e(f"s_mov_b32 s{sMB0}, 0")
    e(f"s_mov_b32 s{sMB1}, {TOG}")
    e(f"s_mov_b32 s{sG}, 0")
    e(f"s_mov_b32 s{sIDX}, 0")
    e(f"s_mov_b32 s{sIDX+1}, 0")
    e(f"v_xor_b32 v{vB01}, 64, v{vA01}")
    e(f"v_add_u32 v{vA2}, {2*SLOT}, v{vA01}")
    e(f"v_add_u32 v{vB2}, {2*SLOT}, v{vB01}")
    e(f"v_mov_b32 v{vMASKA}, {TOG}")
    c("partial store: voffset = lane*16 ; soffset base = ((rb*16+job)*4+wave)*36864")
    e(f"v_lshlrev_b32 v{vST}, 4, v{vLANE}")
    e(f"s_lshl_b32 s{sT0}, s{sRB}, 4")
    e(f"s_add_u32 s{sT0}, s{sT0}, s{sJOB}")
    e(f"s_lshl_b32 s{sT0}, s{sT0}, 2")
    e(f"s_add_u32 s{sT0}, s{sT0}, s{sWAVE}")
    e(f"s_mul_i32 s{sSTOFF}, s{sT0}, 36864")
    if NOST: e(f"s_mov_b32 s{sSTOFF}, 0x40000000")
    if PADPRO: pads(True)
    c("---- read x frags, row sums (sum of squares only where rstd is needed)")
    s0 = 16
    for i in range(8): e(f"v_mov_b32 v{s0+i}, 0")
    def sums(cg):
        for i in range(16):
            e(f"v_dot2c_f32_bf16 v{s0+i%4}, s{sONES}, v{X+16*cg+i}")
        for i in range(16):
            e(f"v_dot2c_f32_bf16 v{s0+4+i%4}, v{X+16*cg+i}, v{X+16*cg+i}")
    e(f"s_cmp_eq_u32 s{sATT}, 1")
    for cg in range(9):
        e(f"s_waitcnt vmcnt({39 - 4*(cg+1)})")
        for q in range(4):
            s_ = 4 * cg + q
            e(f"ds_read_b128 {vr(X+4*s_,4)}, v{vT+6+q} offset:{cg*1024}")
        if cg > 0:
            e("s_waitcnt lgkmcnt(4)")
            sums(cg - 1)
        if PFW1 >= 2 and cg == 8:
            pf_srd(kw1, 576*9216, sPF2)
            e(f"v_min_u32 v{vT}, 40, v{vLANE}")
            e(f"v_lshlrev_b32 v{vT}, 7, v{vT}")
            e(f"s_lshl_b32 s{sT0}, s2, 2")
            e(f"s_add_u32 s{sT0}, s{sT0}, s{sWAVE}")
            e(f"s_mul_i32 s{sT1}, s{sT0}, {41*128}")
            e(f"buffer_load_dword a63, v{vT}, {sr(sPF2,4)}, s{sT1} offen")
            e(f"s_cmp_eq_u32 s{sATT}, 1")
    e("s_waitcnt lgkmcnt(0)")
    e("s_barrier")
    stamp(3)
    sums(8)
    prime = []
    for t_ in range(5):
        for p_ in range(6 if t_ < 4 else 3):
            o = []
            if p_ in (0, 4):
                o += [f"s_add_u32 m0, s{sW6K}, {t_*SLOT + (4096 if p_ == 4 else 0)}", "s_nop 0"]
            o += dma_ld(p_)
            if t_ == 2: o += [f"v_add_u32 v{vD+p_}, v{vD+p_}, v{vS}"]
            if t_ < 4 and p_ == 5: o += [f"s_add_u32 s{sSOFF}, s{sSOFF}, s{sINC + (0 if t_ == 2 else 1)}"]
            prime.append(o)
    for _ in range(3): emit_list(prime.pop(0))
    c("---- LN")
    q0 = s0 + 4
    for b_ in (s0, q0):
        e(f"v_add_f32 v{b_}, v{b_}, v{b_+1}")
        e(f"v_add_f32 v{b_+2}, v{b_+2}, v{b_+3}")
        e(f"v_add_f32 v{b_}, v{b_}, v{b_+2}")
        e(f"v_mov_b32 v{b_+1}, v{b_}")
        e("s_nop 1")
        e(f"v_permlane32_swap_b32 v{b_}, v{b_+1}")
        e("s_nop 1")
        e(f"v_add_f32 v{b_}, v{b_}, v{b_+1}")
        e(f"v_mul_f32 v{b_}, {1.0/576:.9e}, v{b_}")
    e(f"v_fma_f32 v{q0}, -v{s0}, v{s0}, v{q0}")
    emit_list(round_bf16(s0, s0+2))
    e(f"v_sub_f32 v{s0+2}, 0, v{s0}")
    negm = s0 + 2
    e(f"v_max_f32 v{q0}, 0, v{q0}")
    emit_list(round_bf16(q0, q0+1))
    e(f"v_add_f32 v{q0}, 0x3727c5ac, v{q0}")
    emit_list(round_bf16(q0, q0+1))
    e(f"v_sqrt_f32 v{q0}, v{q0}")
    e("s_nop 0")
    emit_list(round_bf16(q0, q0+1))
    e(f"v_rcp_f32 v{vRSTD}, v{q0}")
    t = 32
    for b in range(0, 152, 4):
        tb = t + (8 if (b // 4) % 2 else 0)
        if b < 144:
            for i in range(4):
                e(f"v_dot2_f32_bf16 v{tb+2*i}, v{X+b+i}, s{sSELLO}, v{negm}")
                e(f"v_dot2_f32_bf16 v{tb+2*i+1}, v{X+b+i}, s{sSELHI}, v{negm}")
        else: e("s_nop 2")
        if 0 < b <= 144:
            pb = t + (8 if (b // 4 - 1) % 2 else 0)
            for i in range(4):
                e(f"v_cvt_pk_bf16_f32 v{X+b-4+i}, v{pb+2*i}, v{pb+2*i+1}")
        if b > 4 and b - 8 < 4 * NXA:
            for i in range(4): e(f"v_accvgpr_write_b32 a{XA+b-8+i}, v{X+b-8+i}")
        if prime and (b // 4) % 3 != 2: emit_list(prime.pop(0))
    while prime: emit_list(prime.pop(0))
    stamp(4)
    c("stage 0 landed?")
    e("s_waitcnt vmcnt(21)")
    e("s_barrier")
    stamp(5)
    for i in range(D):
        emit_list(tr_reads(i % R, vA01, i * 2048, 512))
    e(f"s_cmp_lt_u32 s{sWAVE}, 2")
    e("s_cbranch_scc0 Lno3")
    emit_list(dma_ld(3))
    lab("Lno3")
    c("flag line cleared long ago (in-order vmcnt) -> announce; other waves: out of range")
    e(f"v_lshlrev_b32 v{vS+1}, 8, v{vLANE}")
    e(f"v_mov_b32 v{vS+2}, 1")
    e(f"buffer_store_byte v{vS+2}, v{vS+1}, {sr(sDBG,4)}, s62 offen sc0 sc1")
    e(f"s_lshl_b32 s{sT0}, s{sATT}, 2")
    e(f"s_add_u32 s{sT0}, s{sT0}, s{sWAVE}")
    for k_ in range(1, 8):
        e(f"s_cmp_eq_u32 s{sT0}, {k_}")
        e(f"s_cbranch_scc1 Lp1_{'a' if k_ >= 4 else 'f'}{k_ % 4}")
    pads(PADLOOP)
    for w in range(4):
        c(f"================ FFN wave {w}")
        phase1(False, w)
        stamp(6)
        e(f"s_mov_b32 s{sT2}, 0x40000000")
        for i in range(8): e(f"v_pk_max_i16 v{H+80+i}, v{PK[0]+i}, 0")
        for i in range(4):
            if w == 0 and i == 0: ready_load()
            else: e(f"buffer_store_dwordx4 {vr(PK[0],4)}, v{vST}, {sr(sWS,4)}, s{sT2} offen")
        e(f"v_xor_b32 v{vA2}, 64, v{vBASE_G2}")
        e(f"v_xor_b32 v{vB01}, 64, v{vBASE_G2}")
        e(f"s_mov_b32 s{sG}, 0")
        e(f"s_mov_b32 s{sRD}, 0")
        e(f"s_mov_b32 s{sMB0}, 0")
        e(f"s_mov_b32 s{sMB1}, {4*SLOT}")
        e("s_nop 3")
        for i in range(8): e(f"v_cvt_pk_bf16_f32 v{PK[1]+i}, v{ACC[1]+2*i}, v{ACC[1]+2*i+1}")
        for i in range(8): e(f"v_pk_max_i16 v{H+88+i}, v{PK[1]+i}, 0")
        if w == 0: flag_regs()
        phase2(w)
        if w < 3: e("s_branch Lffn_end")
    lab("Lffn_end")
    pads(False)
    st_ = lambda r, off: e(f"buffer_store_dwordx4 {vr(r,4)}, v{vST}, {sr(sWS,4)}, s{sT2} offen offset:{off} sc0 sc1")
    st_(PK[0], 0); st_(PK[0] + 4, 1024)
    e("s_nop 7")
    e("s_nop 3")
    for i in range(8):
        e(f"v_cvt_pk_bf16_f32 v{PK[1]+i}, v{ACC[1]+2*i}, v{ACC[1]+2*i+1}")
    st_(PK[1], 2048); st_(PK[1] + 4, 3072)
    stamp(7)
    reduce_tail()
    pads(False)
    if PROF: e("s_waitcnt vmcnt(0)")
    prof_out()
    e("s_endpgm")
    emit_list(RARE)
    c("halo publish / flag (attention wave 3)")
    lab("Lpub")
    e(f"s_lshl_b32 s{sT0}, s{sRB}, 2")
    e(f"s_add_u32 s{sT0}, s{sT0}, s{sJOB}")
    e(f"s_sub_u32 s{sT0}, s{sT0}, 12")
    e(f"s_cmp_eq_u32 s{sG}, 5")
    e("s_cbranch_scc0 Lflag")
    e(f"s_mul_i32 s{sT0}, s{sT0}, 9216")
    e(f"s_add_u32 s{sT0}, s{sT0}, {HALO_OFF}")
    e(f"v_and_b32 v{vS+2}, 15, v{vM}")
    e(f"v_mul_u32_u24 v{vS+2}, 576, v{vS+2}")
    e(f"v_lshl_add_u32 v{vS+2}, v{vHH}, 5, v{vS+2}")
    e(f"v_cmp_lt_u32 vcc, 15, v{vM}")
    e(f"s_and_saveexec_b64 {sr(sEX,2)}, vcc")
    for u in range(18):
        e(f"buffer_store_dwordx4 {vr(H+4*u,4)}, v{vS+2}, {sr(sWS,4)}, s{sT0} offen offset:{64*(u//2)+16*(u%2)} sc0 sc1")
    e(f"s_mov_b64 exec, {sr(sEX,2)}")
    e("s_nop 3")
    e("s_branch Lpubr")
    lab("Lflag")
    e("s_waitcnt vmcnt(16)")
    e(f"s_lshl_b32 s{sT0}, s{sRB}, 4")
    e(f"s_add_u32 s{sT0}, s{sT0}, s{sJOB}")
    signal(1, sT0)
    e("s_branch Lpubr")
    pads(PADLOOP)
    for w in range(4):
        c(f"================ attention wave {w}")
        phase1(True, w)
        if w < 3: e("s_branch Latt")
    attention()
    lab("Lend1")
    e("s_endpgm")
    walk()

def walk():
    n = PAD["n"]; W = []
    if n:
        W += ["s_lshr_b32 s82, s2, 3", "s_and_b32 s82, s82, 31", f"s_lshl_b32 s82, s82, 2", f"s_add_u32 s82, s82, s{sWAVE}",
              "s_and_b32 s83, s82, 7", "s_lshr_b32 s82, s82, 3", "s_mov_b64 exec, 0", "Lhop:"]
        ng = (n + 7) // 8
        for g in range(ng): W += [f"s_cmp_eq_u32 s82, {g}", f"s_cbranch_scc1 Lwg{g}"]
        W += ["s_branch Ldone"]
        for g in range(ng):
            W += [f"Lwg{g}:"]
            for k in range(8):
                if 8 * g + k < n: W += [f"s_cmp_eq_u32 s83, {k}", f"s_cbranch_scc1 Lpad{8*g+k}"]
            W += ["s_branch Lret"]
        W += ["Lret:", "s_add_u32 s82, s82, 16", f"s_cmp_lt_u32 s82, {ng}", "s_cbranch_scc1 Lhop", "Ldone:", "s_mov_b64 exec, -1"]
    i = L.index("@@WALK@@")
    L[i:i+1] = [x if x.endswith(":") else "    " + x for x in W]

def wo_stage(j):
    o = []
    for p in range(5):
        o.append(f"s_add_u32 m0, s{sCUR}, {(j % 6) * SLOT + p * 1024}")
        o.append(f"s_add_u32 s{sT1}, s{sT3}, {p * 8 * 1152 + j * 128}")
        o.append(f"buffer_load_dwordx4 v{vWO}, {sr(sSRD,4)}, s{sT1} offen lds")
    return o

def attention():
    lab("Latt")
    pads(True)
    stamp(6)
    Q = 16
    QBASE, QSTR = 30720, 336
    e(f"s_mov_b32 s{sSRD}, s{kwo}")
    e(f"s_and_b32 s{sSRD+1}, s{kwo+1}, 0xffff")
    e(f"s_mov_b32 s{sSRD+2}, {0 if NOW else 576*1152}")
    e(f"s_mul_i32 s{sCUR}, s{sWAVE}, 5120")
    e(f"s_sub_u32 s{sT3}, s{sJOB}, 12")
    e(f"s_mul_i32 s{sT3}, s{sT3}, {144*1152}")
    wa = 192
    e(f"s_lshl_b32 s{sT0}, s{sWAVE}, 5")
    e("s_nop 7")
    e(f"v_add_u32 v{wa+2}, s{sT0}, v{vM}")
    e(f"v_mul_u32_u24 v{wa}, {KVSTR}, v{wa+2}")
    e(f"v_add_u32 v{wa}, {KVBASE + 16*KVSTR}, v{wa}")
    e(f"v_lshl_add_u32 v{wa+3}, v{vHH}, 5, v{wa}")
    e(f"v_mul_u32_u24 v{wa+4}, {QSTR}, v{wa+2}")
    e(f"v_add_u32 v{wa+4}, {QBASE}, v{wa+4}")
    e(f"v_lshl_add_u32 v{wa+5}, v{vHH}, 5, v{wa+4}")
    e(f"v_mul_u32_u24 v{wa+1}, 144, v{vHH}")
    e(f"v_add_u32 v{wa}, v{wa}, v{wa+1}")
    e(f"v_add_u32 v{wa+4}, v{wa+4}, v{wa+1}")
    e(f"v_lshlrev_b32 v{wa+1}, 1, v{wa+1}")
    for i in range(16): e(f"v_mul_f32 v{ACC[1]+i}, v{ACC[1]+i}, v{vRSTD}")
    for i in range(8): e(f"v_cvt_pk_bf16_f32 v{H+104+i}, v{ACC[1]+2*i}, v{ACC[1]+2*i+1}")
    e("s_waitcnt vmcnt(0) lgkmcnt(0)")
    e("s_barrier")
    c("early look at the halo flag (wave 0, rb > 0; otherwise out of range)")
    e(f"s_lshl_b32 s{sT1}, s{sRB}, 4")
    e(f"s_sub_u32 s{sT1}, s{sT1}, 4")
    e(f"s_cselect_b32 s{sT1}, {OOR}, s{sT1}")
    e(f"s_cmp_eq_u32 s{sWAVE}, 0")
    e(f"s_cselect_b32 s{sT1}, s{sT1}, {OOR}")
    e(f"buffer_load_dword a61, off, {sr(sDBG,4)}, s{sT1} sc0 sc1")
    c("Wo stage 0")
    emit_list(wo_stage(0))
    c("write q,k,v to LDS")
    for u in range(10):
        e(f"ds_write_b128 v{wa+5}, {vr(H+72+4*u,4)} offset:{64*(u//2)+16*(u%2)}")
    for u in range(18):
        e(f"ds_write_b128 v{wa+3}, {vr(H+4*u,4)} offset:{64*(u//2)+16*(u%2)}")
    for i in range(9):
        e(f"ds_read_b128 {vr(Q+4*i,4)}, v{wa+4} offset:{16*i}")
    kva = vT
    e("s_waitcnt lgkmcnt(9)")
    e(f"v_mov_b32 v{kva}, v{wa}")
    e(f"v_mov_b32 v{kva+1}, v{wa+1}")
    c("halo (wave 0)")
    e(f"s_cmp_eq_u32 s{sWAVE}, 0")
    e("s_cbranch_scc0 Lhalo_done")
    HB = 112
    e(f"v_and_b32 v{kva+2}, 15, v{vM}")
    e(f"v_lshrrev_b32 v{kva+3}, 4, v{vM}")
    e(f"v_mul_u32_u24 v{kva+3}, 144, v{kva+3}")
    e(f"v_add_u32 v{kva+3}, v{kva+3}, v{kva+1}")
    e(f"v_mul_u32_u24 v{kva+4}, 576, v{kva+2}")
    e(f"v_add_u32 v{kva+4}, v{kva+4}, v{kva+3}")
    e(f"v_mul_u32_u24 v{kva+5}, {KVSTR}, v{kva+2}")
    e(f"v_add_u32 v{kva+5}, v{kva+5}, v{kva+3}")
    e(f"v_add_u32 v{kva+5}, {KVBASE}, v{kva+5}")
    for i in range(36): e(f"v_mov_b32 v{HB+i}, 0")
    e(f"s_cmp_eq_u32 s{sRB}, 0")
    e("s_cbranch_scc1 Lhalo_wr")
    e(f"s_lshl_b32 s{sT0}, s{sRB}, 2")
    e(f"s_add_u32 s{sT0}, s{sT0}, s{sJOB}")
    e(f"s_sub_u32 s{sT0}, s{sT0}, 16")
    e(f"s_lshl_b32 s{sT1}, s{sRB}, 4")
    e(f"s_sub_u32 s{sT1}, s{sT1}, 4")
    e(f"s_lshl_b32 s62, s{sJOB}, 3")
    e(f"s_lshl_b32 s62, 1, s62")
    poll("h", sT1, 1, "s62", "s62", kva+6, 2, keep=True)
    e(f"s_mul_i32 s{sT0}, s{sT0}, 9216")
    e(f"s_add_u32 s{sT0}, s{sT0}, {HALO_OFF}")
    for i in range(9):
        e(f"buffer_load_dwordx4 {vr(HB+4*i,4)}, v{kva+4}, {sr(sWS,4)}, s{sT0} offen offset:{16*i} sc0 sc1")
    e("s_waitcnt vmcnt(0)")
    lab("Lhalo_wr")
    for i in range(9):
        e(f"ds_write_b128 v{kva+5}, {vr(HB+4*i,4)} offset:{16*i}")
    lab("Lhalo_done")
    e("s_waitcnt lgkmcnt(0)")
    e("s_barrier")
    stamp(7)
    for j in range(1, 3): emit_list(wo_stage(j))
    if WOPF:
        c("pull Wo stages 3..8 of this job towards L2")
        e(f"v_min_u32 v{kva+2}, 35, v{vLANE}")
        e(f"s_mul_i32 s{sT0}, s{sWAVE}, 36")
        e(f"v_add_u32 v{kva+2}, s{sT0}, v{kva+2}")
        e(f"v_mul_u32_u24 v{kva+2}, 1152, v{kva+2}")
        for i in range(6):
            e(f"buffer_load_dword a63, v{kva+2}, {sr(sSRD,4)}, s{sT3} offen offset:{384+128*i}")
    e(f"s_cmp_eq_u32 s{sWAVE}, 0")
    e("s_cbranch_scc0 Lnordl")
    ready_load()
    lab("Lnordl")
    c("QK^T")
    LG = 52
    KB = [112, 148]
    e(f"v_subrev_u32 v{kva}, {14*KVSTR}, v{kva}")
    for i in range(32): e(f"v_mov_b32 v{LG+i}, 0")
    def rd(w, buf, voff):
        for i in range(9):
            e(f"ds_read_b128 {vr(KB[buf]+4*i,4)}, v{kva} offset:{(14-2*w)*KVSTR + voff + 16*i}")
    rd(0, 0, 0)
    for w in range(8):
        if w < 7: rd(w + 1, (w + 1) % 2, 0)
        else: rd(0, 0, 288)
        e("s_waitcnt lgkmcnt(9)")
        b = KB[w % 2]
        for i in range(9):
            for h in range(4):
                e(f"v_dot2c_f32_bf16 v{LG+8*h+w}, v{Q+9*h+i}, v{b+9*h+i}")
    c("mask + softmax")
    e(f"s_lshl_b32 s{sT0}, s{sRB}, 7")
    e(f"s_lshl_b32 s{sT1}, s{sWAVE}, 5")
    e(f"s_add_u32 s{sT0}, s{sT0}, s{sT1}")
    e(f"v_add_u32 v{kva+2}, s{sT0}, v{vM}")
    e(f"v_mov_b32 v{kva+3}, 0xce6e6b28")
    sc = (18 ** -0.5)
    for i in range(32):
        emit_list(round_bf16(LG+i, kva+4+(i % 4)))
    import struct
    for i in range(32):
        e(f"v_mul_f32 v{LG+i}, {sc:.9e}, v{LG+i}")
    for i in range(32):
        emit_list(round_bf16(LG+i, kva+4+(i % 4)))
    for w in range(1, 8):
        e(f"v_cmp_le_u32 vcc, {2*w}, v{kva+2}")
        e("s_nop 1")
        for h in range(4):
            e(f"v_cndmask_b32 v{LG+8*h+w}, v{kva+3}, v{LG+8*h+w}, vcc")
    MX = kva + 4
    for h in range(4):
        b = LG + 8 * h
        e(f"v_max3_f32 v{MX+h}, v{b}, v{b+1}, v{b+2}")
        e(f"v_max3_f32 v{MX+h}, v{MX+h}, v{b+3}, v{b+4}")
        e(f"v_max3_f32 v{MX+h}, v{MX+h}, v{b+5}, v{b+6}")
        e(f"v_max_f32 v{MX+h}, v{MX+h}, v{b+7}")
    for h in range(4):
        for w in range(8):
            e(f"v_sub_f32 v{LG+8*h+w}, v{LG+8*h+w}, v{MX+h}")
    for i in range(32): e(f"v_mul_f32 v{LG+i}, 0x3fb8aa3b, v{LG+i}")
    for i in range(32): e(f"v_exp_f32 v{LG+i}, v{LG+i}")
    e("s_nop 0")
    for h in range(4):
        b = LG + 8 * h
        e(f"v_add_f32 v{MX+h}, v{b}, v{b+1}")
    for w in range(2, 8):
        for h in range(4):
            e(f"v_add_f32 v{MX+h}, v{MX+h}, v{LG+8*h+w}")
    for h in range(4): e(f"v_rcp_f32 v{MX+h}, v{MX+h}")
    e("s_nop 0")
    for h in range(4):
        for w in range(8):
            e(f"v_mul_f32 v{LG+8*h+w}, v{LG+8*h+w}, v{MX+h}")
    PLO, PHI = LG, 16
    for i in range(32):
        e(f"v_cvt_pk_bf16_f32 v{PLO+i}, v{LG+i}, 0")
    for i in range(32):
        e(f"v_lshlrev_b32 v{PHI+i}, 16, v{PLO+i}")
    O = 184
    for i in range(72): e(f"v_mov_b32 v{O+i}, 0")
    c("PV")
    for w in range(8):
        if w < 7:
            rd(w + 1, (w + 1) % 2, 288)
            e("s_waitcnt lgkmcnt(9)")
        else:
            e("s_waitcnt lgkmcnt(0)")
        b = KB[w % 2]
        for i in range(36):
            h = i // 9
            e(f"v_dot2c_f32_bf16 v{O+2*i}, v{b+i}, v{PLO+8*h+w}")
            e(f"v_dot2c_f32_bf16 v{O+2*i+1}, v{b+i}, v{PHI+8*h+w}")
    e("s_barrier")
    stamp(8)
    c("kv area free: Wo stages 3..4")
    for j in range(3, 5): emit_list(wo_stage(j))
    OP = 112
    for i in range(36):
        e(f"v_cvt_pk_bf16_f32 v{OP+i}, v{O+2*i}, v{O+2*i+1}")
    c("gemm2 (attention): loop over 9 stages x 18 slots")
    R2, D2 = 9, int(os.environ.get("D2", "7"))
    vA, vB = 148, 149
    sCS, sWR, sNX, sDO, sPREV, sCURO = sMB0, sMB1, sRD, sSOFF, sINC, sINC + 1
    e(f"v_mov_b32 v{vA}, v{vBASE_AG2}")
    e(f"v_xor_b32 v{vB}, 64, v{vBASE_AG2}")
    e(f"s_mov_b32 s{sG}, 0")
    e(f"s_mov_b32 s{sCS}, {5*SLOT}")
    e(f"s_mov_b32 s{sNX}, 0")
    e(f"s_add_u32 s{sDO}, s{sT3}, {4*128}")
    for p in range(1, 5): e(f"v_add_u32 v{149+p}, {p*9216 - (p%4)*1024}, v{vWO}")
    e(f"s_mov_b32 s{sPREV}, {OOR}")
    e(f"s_mov_b32 s{sCURO}, s{sSTOFF}")
    e("s_waitcnt vmcnt(10)")
    e("s_barrier")
    stamp(9)
    def rds(i):
        w = i % 18
        t, ks = divmod(w, 9)
        return tr_reads(i % R2, [vA, vB][t], ks * 1024, 512)
    for i in range(D2): emit_list(rds(i))
    def wst(k, so):
        e(f"buffer_store_dwordx4 {vr(PK[k//2]+4*(k%2),4)}, v{vST}, {sr(sWS,4)}, s{so} offen offset:{1024*k} sc0 sc1")
    for dma, lim, nv in ((True, 4, 27), (False, 9, 16)):
        pads(False)
        e(".p2align 6")
        lab(f"Lwo{lim}")
        for w in range(18):
            t, ks = divmod(w, 9)
            emit_list(rds(w + D2))
            if w % 2 == 0: e(f"s_waitcnt lgkmcnt({2*D2-2})")
            acc = vr(ACC[t], 16)
            e(f"v_mfma_f32_32x32x16_bf16 {acc}, {ar(FR+4*(w%R2),4)}, {vr(OP+4*ks,4)}, {'0' if ks == 0 else acc}")
            if w == 0:
                if dma: e(f"s_add_u32 s{sWR}, s{sCS}, s{sCUR}")
                e(f"s_mov_b32 s{sCS}, s{sNX}")
                if dma: e(f"s_add_u32 s{sDO}, s{sDO}, 128")
            if w == 1: e(f"s_add_u32 s{sNX}, s{sCS}, {SLOT}")
            if w == 3:
                e(f"s_cmp_eq_u32 s{sNX}, {6*SLOT}")
                e(f"s_cselect_b32 s{sNX}, 0, s{sNX}")
            if w == 6: e(f"v_add_u32 v{vA}, s{sNX}, v{vBASE_AG2}")
            if w == 10: e(f"v_xor_b32 v{vB}, 64, v{vA}")
            if w == 8:
                e(f"s_waitcnt vmcnt({nv})")
                e("s_barrier")
            if dma and w in (8, 16): e(f"s_add_u32 m0, s{sWR}, {4096 if w == 16 else 0}")
            if dma and w in (9, 11, 13, 15, 17):
                p = (w - 9) // 2
                e(f"buffer_load_dwordx4 v{149+p if p else vWO}, {sr(sSRD,4)}, s{sDO} offen offset:{(p%4)*1024} lds")
            cv = {2: (0, 1, 2), 4: (3, 4, 5), 6: (6, 7)}
            for tt, w0 in ((0, 10), (1, 0)):
                for i2 in cv.get(w - w0, ()):
                    e(f"v_cvt_pk_bf16_f32 v{PK[tt]+i2}, v{ACC[tt]+2*i2}, v{ACC[tt]+2*i2+1}")
            if w in (1, 3, 5, 7): wst(w // 2, sPREV)
            if w == 10:
                e(f"s_mov_b32 s{sPREV}, s{sCURO}")
                e(f"s_add_u32 s{sCURO}, s{sCURO}, 4096")
            if w == 17:
                e(f"s_add_u32 s{sG}, s{sG}, 1")
                e(f"s_cmp_lt_u32 s{sG}, {lim}")
        e(f"s_cbranch_scc1 Lwo{lim}")
        if dma: stamp(10)
    pads(True)
    wst(0, sPREV); wst(1, sPREV)
    e("s_nop 7")
    e("s_nop 7")
    for i2 in range(8):
        e(f"v_cvt_pk_bf16_f32 v{PK[1]+i2}, v{ACC[1]+2*i2}, v{ACC[1]+2*i2+1}")
    wst(2, sPREV); wst(3, sPREV)
    stamp(11)
    wg_signal("a", 1)
    pads(False)
    prof_out()
    e("s_endpgm")

def k2():
    kn = "k2_kernel"
    L.append(f".globl {kn}\n.p2align 8\n.type {kn},@function")
    lab(kn)
    e("s_cmp_ge_u32 s2, 576")
    e("s_cbranch_scc1 Lend2")
    e("s_load_dwordx2 s[4:5], s[0:1], 0")
    e("s_load_dwordx2 s[6:7], s[0:1], 48")
    e("s_load_dwordx2 s[8:9], s[0:1], 64")
    if PROF: e("s_memrealtime s[32:33]")
    e("v_lshrrev_b32 v1, 6, v0")
    e("v_and_b32 v2, 63, v0")
    e("v_readfirstlane_b32 s3, v1")
    c("rb = wg/36 ; wv = (wg%36)*4+wave")
    e("s_mul_i32 s10, s2, 1821")
    e("s_lshr_b32 s10, s10, 16")
    e("s_mul_i32 s11, s10, 36")
    e("s_sub_u32 s11, s2, s11")
    e("s_lshl_b32 s11, s11, 2")
    e("s_add_u32 s11, s11, s3")
    e("s_mul_i32 s24, s11, 1821")
    e("s_lshr_b32 s24, s24, 16")
    e("s_mul_i32 s25, s24, 36")
    e("s_sub_u32 s25, s11, s25")
    e("s_and_b32 s26, s25, 1")
    e("s_lshr_b32 s25, s25, 1")
    c("partial offset = rb*16*PCHUNK + wv*1024 + lane*16")
    e(f"s_mul_i32 s27, s10, {16*PCHUNK}")
    e("s_lshl_b32 s28, s11, 10")
    e("s_add_u32 s27, s27, s28")
    e("v_lshlrev_b32 v3, 4, v2")
    c("x/out offset = (128rb+32r+lane%32)*1152 + tile*64 + (lane/32)*32 + half*16")
    e("s_lshl_b32 s28, s10, 7")
    e("s_lshl_b32 s29, s24, 5")
    e("s_add_u32 s28, s28, s29")
    e("s_mul_i32 s28, s28, 1152")
    e("s_lshl_b32 s29, s25, 6")
    e("s_add_u32 s28, s28, s29")
    e("s_lshl_b32 s29, s26, 4")
    e("s_add_u32 s28, s28, s29")
    e("v_and_b32 v4, 31, v2")
    e("v_mul_u32_u24 v4, 1152, v4")
    e("v_lshrrev_b32 v5, 5, v2")
    e("v_lshl_add_u32 v4, v5, 5, v4")
    e("s_mov_b32 s30, 0x00003f80")
    e("s_mov_b32 s31, 0x3f800000")
    e("s_waitcnt lgkmcnt(0)")
    for (s, k, sz) in ((12, 4, 2048*1152), (16, 6, 2048*1152), (20, 8, WS_BYTES)):
        e(f"s_mov_b32 s{s}, s{k}")
        e(f"s_and_b32 s{s+1}, s{k+1}, 0xffff")
        e(f"s_mov_b32 s{s+2}, {sz}")
        e(f"s_mov_b32 s{s+3}, 0x00020000")
    P = 32
    for j in range(16):
        e(f"buffer_load_dwordx4 {vr(P+4*j,4)}, v3, s[20:23], s27 offen")
        if j < 15: e(f"s_add_u32 s27, s27, {PCHUNK}")
    e("buffer_load_dwordx4 v[28:31], v4, s[12:15], s28 offen")
    e("s_lshl_b32 s27, s10, 9")
    e("s_lshl_b32 s29, s24, 7")
    e("s_add_u32 s27, s27, s29")
    e(f"s_add_u32 s27, s27, {RSTD_OFF}")
    e("v_and_b32 v5, 31, v2")
    e("v_lshlrev_b32 v5, 2, v5")
    e("buffer_load_dword v6, v5, s[20:23], s27 offen")
    F, S = 8, 16
    for i in range(16): e(f"v_mov_b32 v{F+i}, 0")
    for j in range(16):
        e(f"s_waitcnt vmcnt({17-j})")
        a = F if j < 12 else S
        for i in range(4):
            e(f"v_dot2c_f32_bf16 v{a+2*i}, s30, v{P+4*j+i}")
            e(f"v_dot2c_f32_bf16 v{a+2*i+1}, s31, v{P+4*j+i}")
    e("s_nop 2")
    T = 32
    e("s_waitcnt vmcnt(0)")
    for i in range(8): e(f"v_mul_f32 v{F+i}, v{F+i}, v6")
    c("f,s -> bf16")
    for i in range(8):
        e(f"v_cvt_pk_bf16_f32 v{T+i}, v{F+2*i}, v{F+2*i+1}")
    for i in range(8):
        e(f"v_lshlrev_b32 v{F+2*i}, 16, v{T+i}")
        e(f"v_and_b32 v{F+2*i+1}, 0xffff0000, v{T+i}")
    c("g = silu(f) = f/(1+exp(-f))")
    for i in range(8): e(f"v_mul_f32 v{T+i}, 0xbfb8aa3b, v{F+i}")
    for i in range(8): e(f"v_exp_f32 v{T+i}, v{T+i}")
    for i in range(8): e(f"v_add_f32 v{T+i}, 1.0, v{T+i}")
    for i in range(8): e(f"v_rcp_f32 v{T+i}, v{T+i}")
    for i in range(8): e(f"v_mul_f32 v{F+i}, v{F+i}, v{T+i}")
    for i in range(4): e(f"v_cvt_pk_bf16_f32 v{T+i}, v{F+2*i}, v{F+2*i+1}")
    for i in range(4):
        e(f"v_lshlrev_b32 v{F+2*i}, 16, v{T+i}")
        e(f"v_and_b32 v{F+2*i+1}, 0xffff0000, v{T+i}")
    for i in range(8): e(f"v_mul_f32 v{F+i}, v{F+i}, v{S+i}")
    for i in range(4): e(f"v_cvt_pk_bf16_f32 v{T+i}, v{F+2*i}, v{F+2*i+1}")
    e("s_waitcnt vmcnt(0)")
    for i in range(4):
        e(f"v_lshlrev_b32 v{F+2*i}, 16, v{T+i}")
        e(f"v_and_b32 v{F+2*i+1}, 0xffff0000, v{T+i}")
        e(f"v_lshlrev_b32 v{S+2*i}, 16, v{28+i}")
        e(f"v_and_b32 v{S+2*i+1}, 0xffff0000, v{28+i}")
    for i in range(8): e(f"v_add_f32 v{F+i}, v{F+i}, v{S+i}")
    for i in range(4): e(f"v_cvt_pk_bf16_f32 v{T+i}, v{F+2*i}, v{F+2*i+1}")
    e(f"buffer_store_dwordx4 {vr(T,4)}, v4, s[16:19], s28 offen")
    if PROF:
        e("s_waitcnt vmcnt(0)")
        e("s_memrealtime s[34:35]")
        e("s_waitcnt lgkmcnt(0)")
        e("s_lshl_b32 s36, s2, 2")
        e("s_add_u32 s36, s36, s3")
        e("s_lshl_b32 s36, s36, 4")
        e(f"s_add_u32 s36, s36, {65<<20}")
        e("v_mov_b32 v1, 0")
        e("v_mov_b32 v8, s32")
        e("v_mov_b32 v9, 0")
        e("v_mov_b32 v10, s34")
        e("v_mov_b32 v11, 0")
        e("v_cmp_eq_u32 vcc, 0, v2")
        e("s_and_saveexec_b64 s[38:39], vcc")
        e("buffer_store_dwordx4 v[8:11], v1, s[20:23], s36 offen")
        e("s_waitcnt vmcnt(0)")
    lab("Lend2")
    e("s_endpgm")

def desc(kn, vg, acc, sg):
    return f""".amdhsa_kernel {kn}
  .amdhsa_next_free_vgpr {vg}
  .amdhsa_next_free_sgpr {sg}
  .amdhsa_accum_offset {acc}
  .amdhsa_group_segment_fixed_size 0
  .amdhsa_kernarg_size 72
  .amdhsa_user_sgpr_count 2
  .amdhsa_user_sgpr_kernarg_segment_ptr 1
  .amdhsa_system_sgpr_workgroup_id_x 1
.end_amdhsa_kernel
"""

def main(out):
    hdr = open(f"cdna_kernels/{NAME}.s.ref").read().split("; Override")[0]
    L.append(hdr.rstrip("\n"))
    L.append("; @launch grid=(256,1,1) block=(256,1,1) lds=163840")
    L.append('.amdgcn_target "amdgcn-amd-amdhsa--gfx950"')
    L.append(".text")
    k1()
    L.append('.section .rodata,"a"')
    L.append(".p2align 6")
    L.append(desc(NAME + "_kernel", 512, 256, 102))
    open(out, "w").write("\n".join(L) + "\n")

if __name__ == "__main__":
    main(sys.argv[1] if len(sys.argv) > 1 else f"cdna_kernels/{NAME}.s")
```
